```python
import torch

def _softmax(x, axis=-1):
    return torch.softmax(x, dim=axis)

def _gelu(x):
    return torch.nn.functional.gelu(x, approximate='tanh')

def _silu(x):
    return torch.nn.functional.silu(x)

def _sigmoid(x):
    return torch.sigmoid(x)

def _layernorm(x, axis=-1, eps=1e-05):
    m = x.mean(dim=axis, keepdim=True)
    v = x.var(dim=axis, keepdim=True, unbiased=False)
    return (x - m) / torch.sqrt(v + eps)

def _scatter_add(tgt, idx, src, axis=0):
    return tgt.clone().index_add_(axis, idx, src)

def _segment_sum(src, seg, n):
    out = torch.zeros((n,) + src.shape[1:], dtype=src.dtype)
    return out.index_add_(0, seg, src)

def _pad(x, pw):
    flat = tuple((v for pair in reversed(pw) for v in pair))
    return torch.nn.functional.pad(x, flat)
kernel_name = 'adaLN_cond__spectral_fnet__dense_activation_relu__prompt'

def setup_inputs():

    _w = lambda a: (lambda t: t.to(torch.bfloat16) if t.is_floating_point() else t)(torch.as_tensor(a))

    def _A_setup():
        B, S, D = (1, 2048, 576)
        ns = torch.arange(S)[:, None] * torch.arange(S)[None, :]
        nd = torch.arange(D)[:, None] * torch.arange(D)[None, :]
        Ws_re = torch.cos(-2.0 * torch.pi * ns / S).to(float)
        Ws_im = torch.sin(-2.0 * torch.pi * ns / S).to(float)
        Wd_re = torch.cos(-2.0 * torch.pi * nd / D).to(float)
        Wd_im = torch.sin(-2.0 * torch.pi * nd / D).to(float)
        return {'x': _w((lambda *s: torch.randn(*s, dtype=torch.bfloat16) * 0.05)(B, S, D)), 'dft_seq_re': _w(Ws_re), 'dft_seq_im': _w(Ws_im), 'dft_hid_re': _w(Wd_re), 'dft_hid_im': _w(Wd_im)}
    _A_in = _A_setup()

    def _B_setup():
        B, S, D, Dff = (1, 2048, 576, 4608)
        return {'x': _w((lambda *s: torch.randn(*s, dtype=torch.bfloat16) * 0.05)(B, S, D)), 'w1': _w((lambda *s: torch.randn(*s, dtype=torch.bfloat16) * 1.6)(D, Dff)), 'w2': _w((lambda *s: torch.randn(*s, dtype=torch.bfloat16) * 1.6)(Dff, D))}
    _B_in = _B_setup()
    return {'A_x': _A_in['x'], 'A_dft_seq_re': _A_in['dft_seq_re'], 'A_dft_seq_im': _A_in['dft_seq_im'], 'A_dft_hid_re': _A_in['dft_hid_re'], 'A_dft_hid_im': _A_in['dft_hid_im'], 'B_x': _B_in['x'], 'B_w1': _B_in['w1'], 'B_w2': _B_in['w2'], 'c': _w((lambda *s: torch.randn(*s, dtype=torch.bfloat16) * 0.1)(1, 576) * 8.0), 'w_mod': _w((lambda *s: torch.randn(*s, dtype=torch.bfloat16) * 0.1)(576, 6 * 576) * 576 ** (-0.5) * 8.0)}

def reference(A_x, A_dft_seq_re, A_dft_seq_im, A_dft_hid_re, A_dft_hid_im, B_x, B_w1, B_w2, c, w_mod):

    def _A_ref(x, dft_seq_re, dft_seq_im, dft_hid_re, dft_hid_im):
        a = torch.einsum('bsd,ed->bse', x, dft_hid_re)
        b = torch.einsum('bsd,ed->bse', x, dft_hid_im)
        y = torch.einsum('ts,bse->bte', dft_seq_re, a) - torch.einsum('ts,bse->bte', dft_seq_im, b)
        return y

    def _B_ref(x, w1, w2):
        h = torch.einsum('bsd,df->bsf', x, w1)
        zero = torch.zeros_like(h)
        h = torch.maximum(h, zero)
        return torch.einsum('bsf,fd->bsd', h, w2)
    x = A_x
    mod = (_silu(c) @ w_mod).reshape(c.shape[0], 6, 1, -1)
    sa, ca, ga, sb, cb, gb = (mod[:, 0].clone(), mod[:, 1].clone(), mod[:, 2].clone(), mod[:, 3].clone(), mod[:, 4].clone(), mod[:, 5].clone())
    h = _layernorm(x, axis=-1) * (1 + ca) + sa
    x = x + ga * _A_ref(h, A_dft_seq_re, A_dft_seq_im, A_dft_hid_re, A_dft_hid_im)
    h = _layernorm(x, axis=-1) * (1 + cb) + sb
    x = x + gb * _B_ref(h, B_w1, B_w2)
    return x
```

```python
class Asm:
    def __init__(self):
        self.lines=[]; self.kernels=[]; self.launches=[]; self._lab=0
    def __call__(self, s, *a):
        if a: s = s % a
        for l in s.split('\n'):
            l=l.strip()
            if l: self.lines.append('    '+l if not l.endswith(':') else l)
    def c(self, s): self.lines.append('    ; '+s)
    def label(self, base='L'):
        self._lab+=1; return f'{base}_{self._lab}'
    def begin(self, name):
        self.lines.append(f'.globl {name}\n.p2align 8\n.type {name},@function\n{name}:')
    def end(self, name, vgpr, sgpr=96, agpr=0):
        acc=(vgpr+3)//4*4
        nfv=acc+agpr if agpr else vgpr
        self.kernels.append((name,nfv,sgpr,acc))
    def launch(self, name, grid, block, lds):
        self.launches.append(f'; @launch kernel={name} grid=({grid},1,1) block=({block},1,1) lds={lds}')
    def text(self, header=''):
        s='\n'.join(self.launches)+'\n'
        if header: s+= '\n'.join('; '+l for l in header.strip('\n').split('\n'))+'\n'
        s+='.amdgcn_target "amdgcn-amd-amdhsa--gfx950"\n.text\n'
        s+='\n'.join(self.lines)+'\n'
        s+='.section .rodata,"a"\n'
        for (n,nfv,sg,acc) in self.kernels:
            s+=f'''.p2align 6
.amdhsa_kernel {n}
  .amdhsa_next_free_vgpr {nfv}
  .amdhsa_next_free_sgpr {sg}
  .amdhsa_accum_offset {acc}
  .amdhsa_group_segment_fixed_size 0
  .amdhsa_kernarg_size 104
  .amdhsa_user_sgpr_count 2
  .amdhsa_user_sgpr_kernarg_segment_ptr 1
  .amdhsa_system_sgpr_workgroup_id_x 1
  .amdhsa_float_denorm_mode_32 3
.end_amdhsa_kernel
'''
        return s

def v(i,n=1): return f'v{i}' if n==1 else f'v[{i}:{i+n-1}]'
def a(i,n=1): return f'a{i}' if n==1 else f'a[{i}:{i+n-1}]'
def s(i,n=1): return f's{i}' if n==1 else f's[{i}:{i+n-1}]'

KA=dict(x=0,Cs=8,Ss=16,Cd=24,Sd=32,Bx=40,w1=48,w2=56,c=64,wmod=72,out=80,dbg=88,ws=96)
SZ=dict(x=2048*576*2,Cs=2048*2048*2,Ss=2048*2048*2,Cd=576*576*2,Sd=576*576*2,w1=576*4608*2,w2=4608*576*2,c=1152,wmod=576*3456*2,out=2048*576*2,dbg=256,ws=268435456)

def load_srds(A, items):
    for n,r in items:
        A(f's_load_dwordx2 {s(r,2)}, s[0:1], {KA[n]}')
    for n,r in items:
        A(f's_mov_b32 {s(r+2)}, {SZ[n]}')
        A(f's_mov_b32 {s(r+3)}, 0x00020000')
```

```python
from asmlib import *

WS_MOD   = 0x0000000
WS_AE1024= 0x0004000
WS_CS    = 0x0008000
WS_BV    = 0x0010000
WS_STAT  = 0x0020000
WS_AE    = 0x0100000
WS_BO    = 0x0200000
WS_X2    = 0x0300000
WS_W1P   = 0x0600000
WS_W2P   = 0x0C00000
WS_PART  = 0x1200000
LOG2E=0x3fb8aa3b

def bf16_round(A, dst, src, tmp=None):
    A(f'v_cvt_pk_bf16_f32 {dst}, {src}, {src}')
    A(f'v_and_b32 {dst}, 0xffff0000, {dst}')

def gen_k1(A):
    name='k1_mod_kernel'
    NMOD=54; NW2=324
    A.launch(name, NMOD+NW2, 256, 8192)
    A.begin(name)
    Lw2=A.label('k1_w2'); Lend=A.label('k1_end')
    load_srds(A,[('wmod',8),('c',12),('ws',16),('w2',20)])
    A(f's_cmp_ge_u32 s2, {NMOD+NW2}')
    A(f's_cbranch_scc1 {Lend}')
    A(f's_cmp_ge_u32 s2, {NMOD}')
    A(f's_cbranch_scc1 {Lw2}')
    vCC,vRG,vOff,vCo=1,2,3,4
    vC=8; vW=32; vAcc=112; vT=120
    A(f'v_and_b32 v{vCC}, 7, v0')
    A(f'v_lshrrev_b32 v{vRG}, 3, v0')
    A(f'v_mul_u32_u24 v{vOff}, 6912, v{vRG}')
    A(f'v_lshl_add_u32 v{vOff}, v{vCC}, 4, v{vOff}')
    A(f'v_lshlrev_b32 v{vCo}, 1, v{vRG}')
    A(f's_lshl_b32 s24, s2, 7')
    A('s_waitcnt lgkmcnt(0)')
    for p in range(18):
        A(f'buffer_load_ushort v{vC+p}, v{vCo}, s[12:15], 0 offen offset:{64*p}')
    for p in range(18):
        A(f'buffer_load_dwordx4 {v(vW+4*p,4)}, v{vOff}, s[8:11], s24 offen')
        if p<17: A(f's_add_u32 s24, s24, {32*6912}')
    for i in range(8): A(f'v_mov_b32 v{vAcc+i}, 0')
    A(f's_mov_b32 s25, 0x{LOG2E:x}')
    A('s_waitcnt vmcnt(18)')
    for p in range(18):
        c=vC+p
        A(f'v_lshlrev_b32 v{c}, 16, v{c}')
        A(f'v_mul_f32 v{vT}, s25, v{c}')
        A(f'v_exp_f32 v{vT}, -v{vT}')
        A('s_nop 0')
        A(f'v_add_f32 v{vT}, 1.0, v{vT}')
        A(f'v_rcp_f32 v{vT}, v{vT}')
        A('s_nop 0')
        A(f'v_mul_f32 v{c}, v{c}, v{vT}')
        bf16_round(A,f'v{c}',f'v{c}')
    for p in range(18):
        A(f's_waitcnt vmcnt({17-p})')
        for i in range(4):
            w=vW+4*p+i
            A(f'v_lshlrev_b32 v{vT}, 16, v{w}')
            A(f'v_and_b32 v{vT+1}, 0xffff0000, v{w}')
            A(f'v_fmac_f32 v{vAcc+2*i}, v{vT}, v{vC+p}')
            A(f'v_fmac_f32 v{vAcc+2*i+1}, v{vT+1}, v{vC+p}')
    A(f'v_lshlrev_b32 v{vT}, 8, v{vRG}')
    A(f'v_lshl_add_u32 v{vT}, v{vCC}, 5, v{vT}')
    A(f'ds_write_b128 v{vT}, {v(vAcc,4)}')
    A(f'ds_write_b128 v{vT}, {v(vAcc+4,4)} offset:16')
    A('s_waitcnt lgkmcnt(0)')
    A('s_barrier')
    A('v_cmp_gt_u32 vcc, 64, v0')
    A('s_and_saveexec_b64 s[26:27], vcc')
    A(f's_cbranch_execz {Lend}')
    A(f'v_lshlrev_b32 v{vT}, 2, v0')
    for r in range(32):
        A(f'ds_read_b32 v{vW+r}, v{vT} offset:{256*r}')
    A('s_mul_i32 s28, s2, 7282')
    A('s_lshr_b32 s28, s28, 16')
    A('s_mul_i32 s29, s28, 9')
    A('s_sub_u32 s29, s2, s29')
    A('s_lshl_b32 s29, s29, 6')
    A(f'v_add_u32 v{vOff}, s29, v0')
    A(f'v_sub_u32 v{vCo}, 864, v{vOff}')
    A(f'v_cmp_lt_u32 vcc, 288, v{vOff}')
    A('s_cmp_eq_u32 s28, 5')
    A('s_cselect_b64 s[30:31], 0, vcc')
    A('s_nop 1')
    A(f'v_cndmask_b32 v{vOff}, v{vOff}, v{vCo}, s[30:31]')
    A('s_mul_i32 s29, s28, 576')
    A(f'v_add_u32 v{vOff}, s29, v{vOff}')
    A(f'v_lshlrev_b32 v{vOff}, 2, v{vOff}')
    A('s_waitcnt lgkmcnt(0)')
    for st in (16,8,4,2,1):
        for r in range(st):
            A(f'v_add_f32 v{vW+r}, v{vW+r}, v{vW+r+st}')
    bf16_round(A,f'v{vW}',f'v{vW}')
    Lns=A.label('k1_ns')
    A('s_cmp_eq_u32 s28, 1')
    A('s_cselect_b32 s29, 1, 0')
    A('s_cmp_eq_u32 s28, 4')
    A('s_cselect_b32 s29, 1, s29')
    A('s_cmp_eq_u32 s29, 0')
    A(f's_cbranch_scc1 {Lns}')
    A(f'v_add_f32 v{vW}, 1.0, v{vW}')
    bf16_round(A,f'v{vW}',f'v{vW}')
    A(f'{Lns}:')
    A(f'buffer_store_dword v{vW}, v{vOff}, s[16:19], 0 offen offset:{WS_MOD}')
    A('s_endpgm')
    A(f'{Lw2}:')
    vT_,vFk,vNq,vO1,vO2,vD=1,2,3,4,5,6
    vR=8; vOut=24
    A(f's_sub_u32 s24, s2, {NMOD}')
    A('s_lshl_b32 s24, s24, 8')
    A(f'v_add_u32 v{vT_}, s24, v0')
    A(f's_mov_b32 s25, {(2**32+143)//144}')
    A(f'v_mul_hi_u32 v{vFk}, v{vT_}, s25')
    A(f'v_mul_u32_u24 v{vNq}, 144, v{vFk}')
    A(f'v_sub_u32 v{vNq}, v{vT_}, v{vNq}')
    A(f'v_mul_u32_u24 v{vO1}, {8*1152}, v{vFk}')
    A(f'v_lshl_add_u32 v{vO1}, v{vNq}, 3, v{vO1}')
    A(f'v_add_u32 v{vO2}, 4608, v{vO1}')
    A('s_waitcnt lgkmcnt(0)')
    for j in range(8):
        A(f'buffer_load_dwordx2 {v(vR+2*j,2)}, v{vO1 if j<4 else vO2}, s[20:23], 0 offen offset:{(j&3)*1152}')
    A(f's_mov_b32 s25, {(2**32+35)//36}')
    A(f'v_mul_hi_u32 v{vD}, v{vFk}, s25')
    A(f'v_mul_u32_u24 v{vO2}, 36, v{vD}')
    A(f'v_sub_u32 v{vFk}, v{vFk}, v{vO2}')
    A(f'v_mul_u32_u24 v{vD}, 18, v{vD}')
    A(f'v_lshrrev_b32 v{vO2}, 3, v{vNq}')
    A(f'v_add_u32 v{vD}, v{vD}, v{vO2}')
    A(f'v_mul_u32_u24 v{vD}, 18, v{vD}')
    A(f'v_lshrrev_b32 v{vO2}, 1, v{vFk}')
    A(f'v_add_u32 v{vD}, v{vD}, v{vO2}')
    A(f'v_lshlrev_b32 v{vD}, 10, v{vD}')
    A(f'v_and_b32 v{vO2}, 1, v{vFk}')
    A(f'v_lshl_add_u32 v{vD}, v{vO2}, 9, v{vD}')
    A(f'v_bfe_u32 v{vO2}, v{vNq}, 2, 1')
    A(f'v_lshl_add_u32 v{vD}, v{vO2}, 8, v{vD}')
    A(f'v_and_b32 v{vO2}, 1, v{vNq}')
    A(f'v_lshl_add_u32 v{vD}, v{vO2}, 7, v{vD}')
    A(f'v_bfe_u32 v{vO2}, v{vNq}, 1, 1')
    A(f'v_lshl_add_u32 v{vD}, v{vO2}, 6, v{vD}')
    A('s_mov_b32 s26, 0x05040100')
    A('s_mov_b32 s27, 0x07060302')
    A(f's_mov_b32 s28, {WS_W2P}')
    A('s_waitcnt vmcnt(0)')
    for r in range(4):
        for i in range(4):
            lo=vR+2*(2*i)+(r>>1); hi=vR+2*(2*i+1)+(r>>1)
            A(f'v_perm_b32 v{vOut+4*r+i}, v{hi}, v{lo}, s{26+(r&1)}')
    for r in range(4):
        A(f'buffer_store_dwordx4 {v(vOut+4*r,4)}, v{vD}, s[16:19], s28 offen offset:{16*r}')
    A(f'{Lend}:')
    A('s_endpgm')
    A.end(name, 128, 40)
```

```python
from asmlib import *
from gen1 import *

OOB=0x40000000
def row_allreduce16(A, regs):
    for sh in (8,4,2,1):
        if len(regs)<3: A('s_nop 1')
        for r in regs:
            A(f'v_add_f32_dpp v{r}, v{r}, v{r} row_ror:{sh} row_mask:0xf bank_mask:0xf')

def gen_k2(A):
    name='k2_hid_kernel'
    ND=195; NP=72
    PITCH=592; L_HOO=16*PITCH; L_NQ=32*PITCH
    A.launch(name, ND+NP, 256, 20480)
    A.begin(name)
    Lp=A.label('k2_pre'); Lend=A.label('k2_end')
    load_srds(A,[('x',8),('Cd',12),('ws',16),('Sd',20),('w1',24)])
    A(f's_cmp_ge_u32 s2, {ND+NP}')
    A(f's_cbranch_scc1 {Lend}')
    A(f's_cmp_ge_u32 s2, {ND}')
    A(f's_cbranch_scc1 {Lp}')
    sST,sEG,sW=28,29,30
    A(f's_mul_i32 s{sST}, s2, 21846')
    A(f's_lshr_b32 s{sST}, s{sST}, 16')
    A(f's_mul_i32 s{sEG}, s{sST}, 3')
    A(f's_sub_u32 s{sEG}, s2, s{sEG}')
    vRP,vL16,vS,vA1,vM1,vA3,vM3,vG1,vG2,vT0,vT1,vLane=1,2,3,4,5,6,7,8,9,10,11,12
    vMu=14
    T=32
    M=128
    def Tr(row,reg,i): return T+((row*2+reg)*3+i)*8
    G1=lambda i:M+8*i; G2=lambda i:M+24+8*i; SA1=lambda i:M+48+8*i; SA2=lambda i:M+72+8*i
    A(f'v_lshrrev_b32 v{vRP}, 4, v0')
    A(f'v_and_b32 v{vL16}, 15, v0')
    A(f'v_lshrrev_b32 v{vT0}, 6, v0')
    A(f's_lshl_b32 s31, s{sST}, 4')
    A(f'v_readfirstlane_b32 s{sW}, v{vT0}')
    A(f'v_add_u32 v{vS}, s31, v{vRP}')
    A(f'v_and_b32 v{vLane}, 63, v0')
    A(f'v_cmp_gt_u32 s[32:33], 12, v{vL16}')
    A(f'v_cmp_eq_u32 s[34:35], 12, v{vL16}')
    A(f'v_cmp_ge_u32 vcc, 1024, v{vS}')
    A('s_and_b64 s[36:37], vcc, s[32:33]')
    A(f'v_add_u32 v{vT0}, -1, v{vS}')
    A(f'v_cmp_gt_u32 vcc, 1023, v{vT0}')
    A('s_mov_b64 s[38:39], vcc')
    A('s_and_b64 s[40:41], s[38:39], s[32:33]')
    A(f'v_mul_u32_u24 v{vT0}, 48, v{vL16}')
    A(f'v_mul_u32_u24 v{vA1}, 1152, v{vS}')
    A(f'v_sub_u32 v{vT1}, 2048, v{vS}')
    A(f'v_mul_u32_u24 v{vA3}, 1152, v{vT1}')
    A(f'v_sub_u32 v{vM1}, v{vA1}, v{vT0}')
    A(f'v_add_u32 v{vM1}, {1136-32}, v{vM1}')
    A(f'v_sub_u32 v{vM3}, v{vA3}, v{vT0}')
    A(f'v_add_u32 v{vM3}, {1136-32}, v{vM3}')
    A(f'v_add_u32 v{vA1}, v{vA1}, v{vT0}')
    A(f'v_add_u32 v{vA3}, v{vA3}, v{vT0}')
    A(f'v_mov_b32 v{vT1}, 0x{OOB:x}')
    for r,m in ((vA1,36),(vM1,36),(vA3,40),(vM3,40)):
        A(f'v_cndmask_b32 v{r}, v{vT1}, v{r}, s[{m}:{m+1}]')
    A(f'v_lshlrev_b32 v{vG1}, 1, v{vT0}')
    A(f'v_add_u32 v{vG2}, {288*4}, v{vG1}')
    A(f'v_cndmask_b32 v{vG1}, v{vT1}, v{vG1}, s[32:33]')
    A(f'v_mov_b32 v{vT1}, {288*4}')
    A(f'v_cndmask_b32 v{vG2}, v{vG2}, v{vT1}, s[34:35]')
    A('s_waitcnt lgkmcnt(0)')
    for row,(va,vm) in enumerate(((vA1,vM1),(vA3,vM3))):
        for i in range(3):
            A(f'buffer_load_dwordx4 {v(Tr(row,0,i)+4,4)}, v{va}, s[8:11], 0 offen offset:{16*i}')
        for i in range(3):
            A(f'buffer_load_dwordx4 {v(Tr(row,1,i)+4,4)}, v{vm}, s[8:11], 0 offen offset:{32-16*i}')
    for i in range(3):
        for hh in range(2):
            A(f'buffer_load_dwordx4 {v(G1(i)+4*hh,4)}, v{vG1}, s[16:19], 0 offen offset:{WS_MOD+576*4+32*i+16*hh}')
            A(f'buffer_load_dwordx4 {v(G2(i)+4*hh,4)}, v{vG2}, s[16:19], 0 offen offset:{WS_MOD+576*4+32*i+16*hh}')
            A(f'buffer_load_dwordx4 {v(SA1(i)+4*hh,4)}, v{vG1}, s[16:19], 0 offen offset:{WS_MOD+32*i+16*hh}')
            A(f'buffer_load_dwordx4 {v(SA2(i)+4*hh,4)}, v{vG2}, s[16:19], 0 offen offset:{WS_MOD+32*i+16*hh}')
    A(f's_cmp_lt_u32 s{sW}, 2')
    A('s_cselect_b32 s44, s12, s20')
    A('s_cselect_b32 s45, s13, s21')
    A(f's_mov_b32 s46, {SZ["Cd"]}')
    A('s_mov_b32 s47, 0x00020000')
    A('s_cselect_b32 s48, -1, 0')
    A(f's_and_b32 s49, s{sW}, 1')
    A('s_mul_i32 s49, s49, 3')
    A(f's_mul_i32 s50, s{sEG}, 6')
    A('s_add_u32 s49, s49, s50')
    A('s_mul_i32 s50, s49, 18432')
    vTab=13
    A(f'v_and_b32 v{vT0}, 15, v{vLane}')
    A(f'v_mul_u32_u24 v{vTab}, 1152, v{vT0}')
    A(f'v_lshrrev_b32 v{vT0}, 4, v{vLane}')
    A(f'v_lshl_add_u32 v{vTab}, v{vT0}, 4, v{vTab}')
    for t in range(3):
        for kd in range(9):
            A(f'buffer_load_dwordx4 {a(36*t+4*kd,4)}, v{vTab}, s[44:47], s50 offen offset:{64*kd}')
        A('s_add_u32 s50, s50, 18432')
    Lx1=A.label('k2_x1')
    A(f's_lshl_b32 s51, s{sW}, 2')
    A(f's_add_u32 s51, s51, s{sEG}')
    A('s_cmp_lg_u32 s51, 2')
    A(f's_cbranch_scc1 {Lx1}')
    A(f's_mov_b32 s50, {18*18432}')
    A('s_waitcnt vmcnt(51)')
    for kd in range(9):
        A(f'buffer_load_dwordx4 {a(108+4*kd,4)}, v{vTab}, s[44:47], s50 offen offset:{64*kd}')
    A(f'{Lx1}:')
    A('s_waitcnt vmcnt(51)')
    for row in range(2):
        for i in range(3):
            R=Tr(row,0,i)
            for q in range(4):
                src=R+4+q
                A(f'v_lshlrev_b32 v{R+2*q}, 16, v{src}')
                A(f'v_and_b32 v{R+2*q+1}, 0xffff0000, v{src}')
            R=Tr(row,1,i)
            A(f'v_lshlrev_b32 v{R+0}, 16, v{R+5}'); A(f'v_and_b32 v{R+3}, 0xffff0000, v{R+5}')
            A(f'v_lshlrev_b32 v{R+2}, 16, v{R+6}'); A(f'v_and_b32 v{R+5}, 0xffff0000, v{R+6}')
            A(f'v_and_b32 v{R+1}, 0xffff0000, v{R+4}'); A(f'v_lshlrev_b32 v{R+6}, 16, v{R+4}')
            A(f'v_lshlrev_b32 v{R+4}, 16, v{R+7}'); A(f'v_and_b32 v{R+7}, 0xffff0000, v{R+7}')
    mu=[14,16]; rr=[18,20]; ac=[22,24]; mean=[26,27]; vWf=28
    for row in range(2):
        base=Tr(row,0,0)
        A(f'v_pk_add_f32 {v(ac[row],2)}, {v(base,2)}, {v(base+2,2)}')
    for p in range(2,24):
        for row in range(2):
            base=Tr(row,0,0)
            A(f'v_pk_add_f32 {v(ac[row],2)}, {v(ac[row],2)}, {v(base+2*p,2)}')
    for row in range(2): A(f'v_add_f32 v{mean[row]}, v{ac[row]}, v{ac[row]+1}')
    row_allreduce16(A,mean)
    A(f's_mov_b32 s52, 0x{0x3ae38e39:x}')
    for row in range(2):
        A(f'v_mul_f32 v{mean[row]}, s52, v{mean[row]}')
        bf16_round(A,f'v{mu[row]}',f'v{mean[row]}')
        A(f'v_sub_f32 v{mean[row]}, v{mean[row]}, v{mu[row]}')
        m=(36,40)[row]
        A(f'v_cndmask_b32 v{mu[row]}, 0, v{mu[row]}, s[{m}:{m+1}]')
    for p in range(24):
        for row in range(2):
            r=Tr(row,0,0)+2*p
            A(f'v_pk_add_f32 {v(r,2)}, {v(r,2)}, {v(mu[row],2)} op_sel_hi:[1,0] neg_lo:[0,1] neg_hi:[0,1]')
    for p in range(24):
        for row in range(2):
            r=Tr(row,0,0)+2*p
            if p==0: A(f'v_pk_mul_f32 {v(ac[row],2)}, {v(r,2)}, {v(r,2)}')
            else: A(f'v_pk_fma_f32 {v(ac[row],2)}, {v(r,2)}, {v(r,2)}, {v(ac[row],2)}')
    for row in range(2): A(f'v_add_f32 v{rr[row]}, v{ac[row]}, v{ac[row]+1}')
    row_allreduce16(A,rr)
    A(f's_mov_b32 s53, 0x3727c5ac')
    for row in range(2):
        r=rr[row]
        A(f'v_mul_f32 v{r}, s52, v{r}')
        A(f'v_fma_f32 v{r}, -v{mean[row]}, v{mean[row]}, v{r}')
        A(f'v_max_f32 v{r}, 0, v{r}')
        bf16_round(A,f'v{r}',f'v{r}')
        A(f'v_add_f32 v{r}, s53, v{r}')
        bf16_round(A,f'v{r}',f'v{r}')
        A(f'v_sqrt_f32 v{r}, v{r}')
        A('s_nop 0')
        bf16_round(A,f'v{r}',f'v{r}')
        A(f'v_rcp_f32 v{r}, v{r}')
    A(f'v_cndmask_b32 v{vWf}, 1.0, 2.0, s[38:39]')
    A('s_mov_b32 s54, -2.0'); A('s_mov_b32 s55, -2.0')
    for p in range(24):
        r1=Tr(0,0,0)+2*p; r3=Tr(1,0,0)+2*p
        A(f'v_pk_mul_f32 {v(r3,2)}, {v(r3,2)}, {v(rr[1],2)} op_sel_hi:[1,0]')
        A(f'v_pk_fma_f32 {v(r1,2)}, {v(r1,2)}, {v(rr[0],2)}, {v(r3,2)} op_sel_hi:[1,0,1]')
        A(f'v_pk_fma_f32 {v(r3,2)}, {v(r3,2)}, s[54:55], {v(r1,2)}')
    for row in range(2):
        m0=[Tr(row,1,i)+6 for i in range(3)]
        A('s_nop 1')
        A(f'v_mov_b32_dpp v{vT0}, v{m0[2]} row_shr:1 row_mask:0xf bank_mask:0xf bound_ctrl:0')
        A(f'v_mov_b32 v{m0[2]}, v{m0[1]}')
        A(f'v_mov_b32 v{m0[1]}, v{m0[0]}')
        A(f'v_mov_b32 v{m0[0]}, v{vT0}')
    A('s_waitcnt vmcnt(27)')
    A(f'v_cmp_eq_u32 vcc, 0, v{vL16}')
    A('s_nop 1')
    A(f'v_cndmask_b32 v{SA2(0)}, v{SA2(0)}, 0, vcc')
    for i in range(3):
        for p in range(4):
            g1=G1(i)+2*p; g2=G2(i)+2*p; s1=SA1(i)+2*p; s2=SA2(i)+2*p
            ned=Tr(0,0,i)+2*p; neD=Tr(0,1,i)+2*(3-p); nod=Tr(1,0,i)+2*p; noD=Tr(1,1,i)+2*(3-p)
            A(f'v_pk_add_f32 {v(s1,2)}, {v(s1,2)}, {v(s2,2)}')
            A(f'v_pk_mul_f32 {v(s1,2)}, {v(s1,2)}, {v(vWf,2)} op_sel_hi:[1,0]')
            A(f'v_pk_fma_f32 {v(s1,2)}, {v(neD,2)}, {v(g2,2)}, {v(s1,2)}')
            A(f'v_pk_fma_f32 {v(s1,2)}, {v(ned,2)}, {v(g1,2)}, {v(s1,2)}')
            A(f'v_pk_mul_f32 {v(s2,2)}, {v(noD,2)}, {v(g2,2)}')
            A(f'v_pk_fma_f32 {v(s2,2)}, {v(nod,2)}, {v(g1,2)}, {v(s2,2)} neg_lo:[0,0,1] neg_hi:[0,0,1]')
        for p in range(4):
            A(f'v_cvt_pk_bf16_f32 v{G1(i)+p}, v{SA1(i)+2*p}, v{SA1(i)+2*p+1}')
            A(f'v_cvt_pk_bf16_f32 v{G1(i)+4+p}, v{SA2(i)+2*p}, v{SA2(i)+2*p+1}')
    A(f'v_mul_u32_u24 v{vT0}, {PITCH}, v{vRP}')
    A(f'v_mul_u32_u24 v{vT1}, 48, v{vL16}')
    A(f'v_add_u32 v{vT0}, v{vT0}, v{vT1}')
    A(f'v_lshlrev_b32 v{vT1}, 2, v{vRP}')
    A('s_mov_b64 exec, s[32:33]')
    for i in range(3):
        A(f'ds_write_b128 v{vT0}, {v(G1(i),4)} offset:{16*i}')
        A(f'ds_write_b128 v{vT0}, {v(G1(i)+4,4)} offset:{L_HOO+16*i}')
    A('s_mov_b64 exec, s[34:35]')
    A(f'ds_write_b32 v{vT1}, v{SA1(0)} offset:{L_NQ}')
    A('s_mov_b64 exec, -1')
    A(f'v_and_b32 v{vT0}, 15, v{vLane}')
    A(f'v_mul_u32_u24 v{vA1}, {PITCH}, v{vT0}')
    A(f'v_lshrrev_b32 v{vT1}, 4, v{vLane}')
    A(f'v_lshl_add_u32 v{vA1}, v{vT1}, 4, v{vA1}')
    A(f's_andn2_b32 s52, {L_HOO}, s48')
    A(f'v_add_u32 v{vA1}, s52, v{vA1}')
    A(f'v_lshlrev_b32 v{vM1}, 4, v{vT1}')
    A('s_waitcnt lgkmcnt(0)')
    A('s_barrier')
    AF=T; CI=T+40; ACC=T+48
    A(f'ds_read_b128 {v(CI,4)}, v{vM1} offset:{L_NQ}')
    for kd in range(9):
        A(f'ds_read_b128 {v(AF+4*kd,4)}, v{vA1} offset:{64*kd}')
    A(f'v_lshlrev_b32 v{vM3}, 31, v{vLane}')
    A(f'v_lshrrev_b32 v{vA3}, 1, v{vT1}')
    A(f'v_lshlrev_b32 v{vA3}, 8, v{vA3}')
    A(f'v_lshl_add_u32 v{vA3}, v{vT0}, 4, v{vA3}')
    A(f'v_and_b32 v{vG1}, 1, v{vT1}')
    A(f'v_lshl_add_u32 v{vA3}, v{vG1}, 3, v{vA3}')
    A(f's_lshr_b32 s52, s{sST}, 1')
    A('s_lshl_b32 s52, s52, 10')
    A(f's_and_b32 s53, s{sST}, 1')
    A('s_lshl_b32 s53, s53, 9')
    A('s_add_u32 s52, s52, s53')
    A(f's_cmp_lt_u32 s{sW}, 2')
    A(f's_cselect_b32 s53, 0, {WS_BO-WS_AE}')
    A(f's_add_u32 s53, s53, {WS_AE}')
    A('s_add_u32 s52, s52, s53')
    A('s_lshl_b32 s54, s49, 15')
    A('s_add_u32 s54, s54, s52')
    A('s_waitcnt lgkmcnt(9)')
    for r in range(4):
        A(f'v_xor_b32 v{CI+r}, v{CI+r}, v{vM3}')
        A(f'v_and_b32 v{CI+r}, s48, v{CI+r}')
    A('s_waitcnt vmcnt(0) lgkmcnt(0)')
    A('s_nop 1')
    for kd in range(9):
        for t in range(3):
            c = v(CI,4) if kd==0 else v(ACC+4*t,4)
            A(f'v_mfma_f32_16x16x32_bf16 {v(ACC+4*t,4)}, {v(AF+4*kd,4)}, {a(36*t+4*kd,4)}, {c}')
    Lx2=A.label('k2_x2'); Lx3=A.label('k2_x3'); Lny=A.label('k2_ny')
    A('s_cmp_lg_u32 s51, 2')
    A(f's_cbranch_scc1 {Lx2}')
    for kd in range(9):
        c = v(CI,4) if kd==0 else v(ACC+12,4)
        A(f'v_mfma_f32_16x16x32_bf16 {v(ACC+12,4)}, {v(AF+4*kd,4)}, {a(108+4*kd,4)}, {c}')
    A(f'{Lx2}:')
    A('s_nop 7')
    A(f's_cmp_eq_u32 s{sST}, 64')
    A(f's_cbranch_scc1 {Lny}')
    for t in range(3):
        A(f'v_cvt_pk_bf16_f32 v{ACC+4*t}, v{ACC+4*t}, v{ACC+4*t+1}')
        A(f'v_cvt_pk_bf16_f32 v{ACC+4*t+1}, v{ACC+4*t+2}, v{ACC+4*t+3}')
        A(f'buffer_store_dwordx2 {v(ACC+4*t,2)}, v{vA3}, s[16:19], s54 offen')
        A('s_add_u32 s54, s54, 32768')
    A('s_cmp_lg_u32 s51, 2')
    A(f's_cbranch_scc1 {Lend}')
    A(f's_add_u32 s54, s52, {18*32768}')
    A(f'v_cvt_pk_bf16_f32 v{ACC+12}, v{ACC+12}, v{ACC+13}')
    A(f'v_cvt_pk_bf16_f32 v{ACC+13}, v{ACC+14}, v{ACC+15}')
    A(f'buffer_store_dwordx2 {v(ACC+12,2)}, v{vA3}, s[16:19], s54 offen')
    A('s_endpgm')
    A(f'{Lny}:')
    A(f's_cmp_ge_u32 s{sW}, 2')
    A(f's_cbranch_scc1 {Lend}')
    A(f'v_lshlrev_b32 v{vA3}, 2, v{vLane}')
    A('s_lshl_b32 s54, s49, 6')
    A('s_mov_b64 exec, 0xffff')
    A(f's_add_u32 s54, s54, {WS_AE1024}')
    for t in range(3):
        A(f'buffer_store_dword v{ACC+4*t}, v{vA3}, s[16:19], s54 offen offset:{64*t}')
    A('s_cmp_lg_u32 s51, 2')
    A(f's_cbranch_scc1 {Lend}')
    A(f's_mov_b32 s54, {WS_AE1024+18*64}')
    A(f'buffer_store_dword v{ACC+12}, v{vA3}, s[16:19], s54 offen')
    A('s_endpgm')
    A(f'{Lp}:')
    vFq,vCg,vC,vB,vSt,vMo,vD,vT0,vT1,vFo=1,2,3,4,5,6,7,8,9,10
    vO=12
    vCS=20; vBV=24
    W=32
    vDst=192
    U=200
    A(f's_sub_u32 s28, s2, {ND}')
    A(f'v_and_b32 v{vFq}, 15, v0')
    A(f'v_lshrrev_b32 v{vCg}, 4, v0')
    A('s_lshl_b32 s29, s28, 7')
    A(f'v_lshlrev_b32 v{vFo}, 3, v{vFq}')
    A(f'v_add_u32 v{vFo}, s29, v{vFo}')
    A(f'v_lshrrev_b32 v{vT0}, 3, v{vFq}')
    A(f'v_mul_u32_u24 v{vD}, {36*1024}, v{vT0}')
    A(f'v_bfe_u32 v{vT0}, v{vFq}, 2, 1'); A(f'v_lshl_add_u32 v{vD}, v{vT0}, 8, v{vD}')
    A(f'v_and_b32 v{vT0}, 1, v{vFq}');    A(f'v_lshl_add_u32 v{vD}, v{vT0}, 7, v{vD}')
    A(f'v_bfe_u32 v{vT0}, v{vFq}, 1, 1'); A(f'v_lshl_add_u32 v{vD}, v{vT0}, 6, v{vD}')
    A(f's_mul_i32 s30, s28, {72*1024}')
    A(f's_add_u32 s30, s30, {WS_W1P}')
    A('s_waitcnt lgkmcnt(0)')
    for it in range(5):
        R=W+32*it
        A(f'v_add_u32 v{vC}, {16*it}, v{vCg}')
        A(f'v_lshlrev_b32 v{vT0}, 3, v{vC}')
        A(f'v_sub_u32 v{vT1}, 864, v{vT0}')
        A(f'v_cmp_gt_u32 vcc, 36, v{vC}')
        A(f'v_mov_b32 v{vSt}, -9216')
        A(f'v_mov_b32 v{vB}, 9216')
        A(f'v_cndmask_b32 v{vSt}, v{vSt}, v{vB}, vcc')
        A(f'v_cndmask_b32 v{vB}, v{vT1}, v{vT0}, vcc')
        A(f'v_mul_u32_u24 v{vB}, 9216, v{vB}')
        A(f'v_add_u32 v{vB}, v{vB}, v{vFo}')
        A(f'v_lshlrev_b32 v{vMo}, 5, v{vC}')
        A(f'v_lshrrev_b32 v{vT0}, 1, v{vC}')
        A(f'v_lshl_add_u32 v{vDst+it}, v{vT0}, 10, v{vD}')
        A(f'v_and_b32 v{vT0}, 1, v{vC}')
        A(f'v_lshl_add_u32 v{vDst+it}, v{vT0}, 9, v{vDst+it}')
        if it==4:
            A(f'v_cmp_gt_u32 vcc, 72, v{vC}')
            A(f'v_mov_b32 v{vT0}, 0x{OOB:x}')
            A('s_nop 0')
            A(f'v_cndmask_b32 v{vB}, v{vT0}, v{vB}, vcc')
            A(f'v_cndmask_b32 v{vDst+it}, v{vT0}, v{vDst+it}, vcc')
        for j in range(1,8):
            A(f'v_add_u32 v{vO+j}, v{vSt}, v{vB if j==1 else vO+j-1}')
        if it==2:
            A(f'v_cmp_eq_u32 vcc, 36, v{vC}')
            A(f'v_add_u32 v{vT0}, {288*9216}, v{vFo}')
            A('s_nop 0')
            A(f'v_cndmask_b32 v{vB}, v{vB}, v{vT0}, vcc')
        for j in range(8):
            A(f'buffer_load_dwordx2 {v(R+2*j,2)}, v{vB if j==0 else vO+j}, s[24:27], 0 offen')
        A(f's_mov_b32 s31, {WS_MOD+4*576*4}')
        A(f's_mov_b32 s32, {WS_MOD+3*576*4}')
        for hh in range(2):
            A(f'buffer_load_dwordx4 {v(R+16+4*hh,4)}, v{vMo}, s[16:19], s31 offen offset:{16*hh}')
            A(f'buffer_load_dwordx4 {v(R+24+4*hh,4)}, v{vMo}, s[16:19], s32 offen offset:{16*hh}')
    for i in range(8): A(f'v_mov_b32 v{vCS+i}, 0')
    A('s_mov_b32 s33, 0x3f803f80')
    for it in range(5):
        R=W+32*it
        A(f's_waitcnt vmcnt({12*(4-it)+4*it})')
        for jp in range(4):
            for jj in range(2):
                j=2*jp+jj
                for q in range(2):
                    A(f'v_lshlrev_b32 v{U+4*jj+2*q}, 16, v{R+2*j+q}')
                    A(f'v_and_b32 v{U+4*jj+2*q+1}, 0xffff0000, v{R+2*j+q}')
                for r in range(4):
                    A(f'v_fmac_f32 v{vBV+r}, v{U+4*jj+r}, v{R+24+j}')
                for r in range(4):
                    A(f'v_mul_f32 v{U+4*jj+r}, v{U+4*jj+r}, v{R+16+j}')
            for r in range(4):
                A(f'v_cvt_pk_bf16_f32 v{U+16+4*r+jp}, v{U+r}, v{U+4+r}')
            for r in range(4):
                A(f'v_dot2_f32_bf16 v{vCS+r}, v{U+16+4*r+jp}, s33, v{vCS+r}')
        for r in range(4):
            A(f'buffer_store_dwordx4 {v(U+16+4*r,4)}, v{vDst+it}, s[16:19], s30 offen offset:{16*r}')
        A('s_nop 1')
    A(f'v_lshlrev_b32 v{vT0}, 8, v{vCg}')
    A(f'v_lshl_add_u32 v{vT0}, v{vFq}, 4, v{vT0}')
    A('s_nop 2')
    A(f'ds_write_b128 v{vT0}, {v(vCS,4)}')
    A(f'ds_write_b128 v{vT0}, {v(vBV,4)} offset:4096')
    A('s_waitcnt lgkmcnt(0)')
    A('s_barrier')
    A('v_cmp_gt_u32 vcc, 128, v0')
    A('s_and_saveexec_b64 s[34:35], vcc')
    A(f's_cbranch_execz {Lend}')
    A(f'v_and_b32 v{vT0}, 63, v0')
    A(f'v_lshrrev_b32 v{vT1}, 6, v0')
    A(f'v_lshlrev_b32 v{vT0}, 2, v{vT0}')
    A(f'v_lshl_add_u32 v{vB}, v{vT1}, 12, v{vT0}')
    for r in range(16):
        A(f'ds_read_b32 v{W+r}, v{vB} offset:{256*r}')
    assert WS_BV-WS_CS==0x8000
    A(f'v_lshl_add_u32 v{vB}, v{vT1}, 15, v{vT0}')
    A('s_lshl_b32 s29, s28, 8')
    A(f's_add_u32 s29, s29, {WS_CS}')
    A('s_waitcnt lgkmcnt(0)')
    for st in (8,4,2,1):
        for r in range(st):
            A(f'v_add_f32 v{W+r}, v{W+r}, v{W+r+st}')
    A(f'buffer_store_dword v{W}, v{vB}, s[16:19], s29 offen')
    A(f'{Lend}:')
    A('s_endpgm')
    A.end(name, 232, 64, agpr=144)
```

```python
from asmlib import *
from gen1 import *
from gen2 import OOB

def gen_k3(A):
    name='k3_seq_kernel'
    NW=192
    A.launch(name, NW, 256, 4*18*1024+3072)
    A.begin(name)
    Lend=A.label('k3_end')
    load_srds(A,[('x',8),('Cs',12),('ws',16),('Ss',20)])
    A(f's_cmp_ge_u32 s2, {NW}')
    A(f's_cbranch_scc1 {Lend}')
    sET,sTT,sW=28,29,30
    A(f's_lshr_b32 s{sET}, s2, 5')
    A(f's_and_b32 s{sTT}, s2, 31')
    vLane,vT0,vT1,vAo,vBo,vC,vG=1,2,3,4,5,6,7
    vTl,vEc,vR1,vR2,vE0=8,9,10,11,12
    vXo=14
    X=20
    GA=40
    AE4=56
    ACC=68
    BF=140
    BE=204
    A(f'v_and_b32 v{vLane}, 63, v0')
    A(f'v_lshrrev_b32 v{vT0}, 6, v0')
    A(f'v_and_b32 v{vC}, 15, v0')
    A(f'v_readfirstlane_b32 s{sW}, v{vT0}')
    A(f'v_lshrrev_b32 v{vG}, 4, v{vLane}')
    A(f'v_lshlrev_b32 v{vAo}, 4, v{vLane}')
    A(f'v_lshlrev_b32 v{vBo}, 12, v{vC}')
    A(f'v_lshl_add_u32 v{vBo}, v{vG}, 4, v{vBo}')
    A(f's_mul_i32 s31, s{sET}, {3*32768}')
    A(f's_lshl_b32 s32, s{sW}, 13')
    A('s_add_u32 s31, s31, s32')
    A(f's_add_u32 s33, s31, {WS_AE}')
    A(f's_add_u32 s34, s31, {WS_BO}')
    A(f's_lshl_b32 s35, s{sTT}, 17')
    A(f's_lshl_b32 s36, s{sW}, 9')
    A('s_add_u32 s35, s35, s36')
    A('s_add_u32 s37, s35, 65536')
    A('s_waitcnt lgkmcnt(0)')
    def ldA(dst, sbase, a_i, ks):
        A(f'buffer_load_dwordx4 {dst}, v{vAo if ks<4 else vT1}, s[16:19], s{sbase} offen offset:{(ks&3)*1024}')
    A(f'v_add_u32 v{vT1}, 4096, v{vAo}')
    cnt=0
    for b in range(2):
        for ks in range(8):
            A(f'buffer_load_dwordx4 {v(BF+32*b+4*ks,4)}, v{vBo}, s[12:15], s{35 if b==0 else 37} offen offset:{64*ks}'); cnt+=1
    for ai in range(3):
        for ks in range(8):
            ldA(a(32*ai+4*ks,4),33,ai,ks); cnt+=1
        A('s_add_u32 s33, s33, 32768')
    for b in range(2):
        for ks in range(8):
            A(f'buffer_load_dwordx4 {a(192+32*b+4*ks,4)}, v{vBo}, s[20:23], s{35 if b==0 else 37} offen offset:{64*ks}'); cnt+=1
    A(f'v_and_b32 v{vTl}, 31, v0')
    A(f'v_lshrrev_b32 v{vEc}, 5, v0')
    A(f's_lshl_b32 s38, s{sTT}, 5')
    A(f'v_add_u32 v{vR1}, s38, v{vTl}')
    A(f'v_sub_u32 v{vR2}, 2048, v{vR1}')
    A(f'v_cmp_eq_u32 s[40:41], 0, v{vR1}')
    A(f'v_mov_b32 v{vT0}, 1024')
    A(f's_mul_i32 s38, s{sET}, 48')
    A(f'v_cndmask_b32 v{vR2}, v{vR2}, v{vT0}, s[40:41]')
    A(f'v_lshl_add_u32 v{vE0}, v{vEc}, 3, s38')
    A(f'v_cmp_eq_u32 s[42:43], 0, v{vE0}')
    A(f'v_cmp_gt_u32 s[44:45], 6, v{vEc}')
    for ri,vr in enumerate((vR1,vR2)):
        A(f'v_mul_u32_u24 v{vT0}, 1152, v{vr}')
        A(f'v_lshl_add_u32 v{vXo+3*ri}, v{vE0}, 1, v{vT0}')
        A(f'v_lshlrev_b32 v{vXo+3*ri+1}, 1, v{vE0}')
        A(f'v_sub_u32 v{vXo+3*ri+1}, v{vT0}, v{vXo+3*ri+1}')
        A(f'v_add_u32 v{vXo+3*ri+1}, {1152-16}, v{vXo+3*ri+1}')
        A(f'v_add_u32 v{vXo+3*ri+2}, 16, v{vXo+3*ri+1}')
        A(f'v_add_u32 v{vT0}, 576, v{vT0}')
        A(f'v_cndmask_b32 v{vXo+3*ri+2}, v{vXo+3*ri+2}, v{vT0}, s[42:43]')
    A('s_waitcnt vmcnt(32)')
    for ks in range(8):
        for b in range(2):
            c='0' if ks==0 else v(ACC+4*(0*2+b),4)
            A(f'v_mfma_f32_16x16x32_bf16 {v(ACC+4*(0*2+b),4)}, {a(4*ks,4)}, {v(BF+32*b+4*ks,4)}, {c}')
    for ai in range(3):
        for ks in range(8):
            ldA(a(96+32*ai+4*ks,4),34,ai,ks)
        A('s_add_u32 s34, s34, 32768')
    for ai in (1,2):
        A(f's_waitcnt vmcnt({56-8*ai})')
        for ks in range(8):
            for b in range(2):
                c='0' if ks==0 else v(ACC+4*(ai*2+b),4)
                A(f'v_mfma_f32_16x16x32_bf16 {v(ACC+4*(ai*2+b),4)}, {a(32*ai+4*ks,4)}, {v(BF+32*b+4*ks,4)}, {c}')
    for ri in range(2):
        A(f'buffer_load_dwordx4 {v(X+4*ri,4)}, v{vXo+3*ri}, s[8:11], 0 offen')
        A(f'buffer_load_dwordx4 {v(X+8+4*ri,4)}, v{vXo+3*ri+1}, s[8:11], 0 offen')
        A(f'buffer_load_ushort v{X+16+ri}, v{vXo+3*ri+2}, s[8:11], 0 offen')
    A(f'v_lshlrev_b32 v{vT0}, 2, v{vE0}')
    A(f's_mov_b32 s38, {WS_MOD+2*576*4}')
    A(f's_mov_b32 s39, {WS_AE1024}')
    for hh in range(2):
        A(f'buffer_load_dwordx4 {v(GA+4*hh,4)}, v{vT0}, s[16:19], s38 offen offset:{16*hh}')
        A(f'buffer_load_dwordx4 {v(GA+8+4*hh,4)}, v{vT0}, s[16:19], s38 offen offset:{288*4+16*hh}')
        A(f'buffer_load_dwordx4 {v(AE4+4*hh,4)}, v{vT0}, s[16:19], s39 offen offset:{16*hh}')
    A(f'buffer_load_dword v{AE4+8}, off, s[16:19], s39 offset:{288*4}')
    Lne=A.label('k3_ne'); Lnt=A.label('k3_nt'); Lnc=A.label('k3_nc')
    A(f's_cmp_lg_u32 s{sTT}, 0')
    A(f's_cbranch_scc1 {Lnt}')
    A(f's_add_u32 s46, s36, {1024*4096}')
    for ks in range(8):
        A(f'buffer_load_dwordx4 {v(BE+4*ks,4)}, v{vBo}, s[12:15], s46 offen offset:{64*ks}')
    A('s_waitcnt vmcnt(0)')
    for ks in range(8):
        for ai in range(3):
            c='0' if ks==0 else v(ACC+4*(14+ai),4)
            A(f'v_mfma_f32_16x16x32_bf16 {v(ACC+4*(14+ai),4)}, {a(32*ai+4*ks,4)}, {v(BE+4*ks,4)}, {c}')
    A(f'{Lnt}:')
    A(f's_cmp_lg_u32 s{sET}, 0')
    A(f's_cbranch_scc1 {Lne}')
    A(f's_add_u32 s33, s32, {WS_AE+18*32768}')
    A('s_nop 7')
    for ks in range(8):
        ldA(a(4*ks,4),33,0,ks)
    A('s_waitcnt vmcnt(0)')
    for ks in range(8):
        for b in range(2):
            c='0' if ks==0 else v(ACC+4*(12+b),4)
            A(f'v_mfma_f32_16x16x32_bf16 {v(ACC+4*(12+b),4)}, {a(4*ks,4)}, {v(BF+32*b+4*ks,4)}, {c}')
    A(f's_cmp_lg_u32 s{sTT}, 0')
    A(f's_cbranch_scc1 {Lne}')
    for ks in range(8):
        c='0' if ks==0 else v(ACC+4*17,4)
        A(f'v_mfma_f32_16x16x32_bf16 {v(ACC+4*17,4)}, {a(4*ks,4)}, {v(BE+4*ks,4)}, {c}')
    A(f'{Lne}:')
    for ai in range(3):
        A(f's_waitcnt vmcnt({13+16-8*ai})')
        for ks in range(8):
            for b in range(2):
                c='0' if ks==0 else v(ACC+4*(6+ai*2+b),4)
                A(f'v_mfma_f32_16x16x32_bf16 {v(ACC+4*(6+ai*2+b),4)}, {a(96+32*ai+4*ks,4)}, {a(192+32*b+4*ks,4)}, {c}')
    A(f's_mul_i32 s46, s{sW}, {18*1024}')
    A(f'v_add_u32 v{vT0}, s46, v{vAo}')
    order=list(range(0,6))+list(range(12,18))+list(range(6,12))
    for i,t in enumerate(order):
        if i==12: A('s_nop 7')
        A(f'ds_write_b128 v{vT0}, {v(ACC+4*t,4)} offset:{1024*t}')
    vLa,vLe,vLt=BF,BF+1,BF+2
    A(f'v_lshrrev_b32 v{vT0}, 1, v{vEc}')
    A(f'v_lshrrev_b32 v{vT1}, 4, v{vTl}')
    A(f'v_and_b32 v{vLe}, 15, v{vTl}')
    A(f'v_lshlrev_b32 v{vLe}, 4, v{vLe}')
    A(f'v_and_b32 v{vLt}, 1, v{vEc}')
    A(f'v_lshlrev_b32 v{vLt}, 9, v{vLt}')
    A(f'v_add_u32 v{vLa}, v{vLe}, v{vLt}')
    A(f'v_lshl_add_u32 v{vLt}, v{vT0}, 10, v{vLt}')
    A(f'v_lshl_add_u32 v{vLe}, v{vT1}, 10, v{vLe}')
    A(f'v_lshl_add_u32 v{vT0}, v{vT0}, 1, v{vT1}')
    A(f'v_lshl_add_u32 v{vLa}, v{vT0}, 10, v{vLa}')
    for r in range(3): A(f'v_add_u32 v{BF+4+r}, {2*18*1024}, v{BF+r}')
    def lds(reg,w,off): return (f'v{reg}' if w<2 else f'v{reg+4}')+f' offset:{(w&1)*18*1024+off}'
    A('s_waitcnt lgkmcnt(0)')
    A('s_barrier')
    A('s_and_saveexec_b64 s[46:47], s[44:45]')
    A(f's_cbranch_execz {Lend}')
    R=ACC
    for w in range(4):
        for hh in range(2):
            A(f'ds_read_b128 {v(R+8*w+4*hh,4)}, {lds(vLa,w,256*hh)}')
    for w in range(4):
        for hh in range(2):
            A(f'ds_read_b128 {v(R+32+8*w+4*hh,4)}, {lds(vLa,w,6*1024+256*hh)}')
    vSg=BF+3
    A(f'v_lshlrev_b32 v{vSg}, 31, v{vR1}')
    A('s_waitcnt vmcnt(0)')
    S=BF+8
    for i in range(9): A(f'v_xor_b32 v{S+i}, v{vSg}, v{AE4+i}')
    A('s_waitcnt lgkmcnt(8)')
    P=R; Q=R+32
    def sum4(base):
        for p in range(4):
            A(f'v_pk_add_f32 {v(base+2*p,2)}, {v(base+2*p,2)}, {v(base+8+2*p,2)}')
            A(f'v_pk_add_f32 {v(base+16+2*p,2)}, {v(base+16+2*p,2)}, {v(base+24+2*p,2)}')
        for p in range(4):
            A(f'v_pk_add_f32 {v(base+2*p,2)}, {v(base+2*p,2)}, {v(base+16+2*p,2)}')
    sum4(P)
    for p in range(4): A(f'v_pk_add_f32 {v(P+2*p,2)}, {v(P+2*p,2)}, {v(S+2*p,2)}')
    A('s_waitcnt lgkmcnt(0)')
    sum4(Q)
    O1,O2,O3,O4=P+8,P+16,Q+8,Q+16
    for p in range(4):
        A(f'v_pk_add_f32 {v(O1+2*p,2)}, {v(P+2*p,2)}, {v(Q+2*p,2)} neg_lo:[0,1] neg_hi:[0,1]')
        A(f'v_pk_add_f32 {v(O2+2*p,2)}, {v(P+2*p,2)}, {v(Q+2*p,2)}')
    for p in range(4):
        A(f'v_mov_b64 {v(O3+2*p,2)}, {v(O2+2*p,2)}')
        A(f'v_mov_b64 {v(O4+2*p,2)}, {v(O1+2*p,2)}')
    E=BF+20
    Le2=A.label('k3_e2'); Lt2=A.label('k3_t2')
    A(f's_cmp_lg_u32 s{sET}, 0')
    A(f's_cbranch_scc1 {Le2}')
    for w in range(4):
        A(f'ds_read_b32 v{E+w}, {lds(vLe,w,12*1024)}')
    A('s_waitcnt lgkmcnt(0)')
    A(f'v_add_f32 v{E}, v{E}, v{E+1}'); A(f'v_add_f32 v{E+2}, v{E+2}, v{E+3}')
    A(f'v_add_f32 v{E}, v{E}, v{E+2}'); A(f'v_add_f32 v{E}, v{E}, v{S+8}')
    A(f'v_cndmask_b32 v{O2}, v{O2}, v{E}, s[42:43]')
    A(f'v_cndmask_b32 v{O4}, v{O4}, v{E}, s[42:43]')
    A(f'{Le2}:')
    A(f's_cmp_lg_u32 s{sTT}, 0')
    A(f's_cbranch_scc1 {Lt2}')
    for w in range(4):
        for hh in range(2):
            A(f'ds_read_b128 {v(E+8*w+4*hh,4)}, {lds(vLt,w,14*1024+256*hh)}')
    A(f'v_mov_b32 v{vT0}, {17*1024}')
    for w in range(4):
        A(f'ds_read_b32 v{E+32+w}, v{vT0} offset:{w*18*1024}')
    A('s_waitcnt lgkmcnt(0)')
    sum4(E)
    for p in range(4): A(f'v_pk_add_f32 {v(E+2*p,2)}, {v(E+2*p,2)}, {v(AE4+2*p,2)}')
    A(f'v_add_f32 v{E+32}, v{E+32}, v{E+33}'); A(f'v_add_f32 v{E+34}, v{E+34}, v{E+35}')
    A(f'v_add_f32 v{E+32}, v{E+32}, v{E+34}'); A(f'v_add_f32 v{E+32}, v{E+32}, v{AE4+8}')
    A(f'v_cndmask_b32 v{E+33}, v{E}, v{E+32}, s[42:43]')
    for i in range(8):
        A(f'v_cndmask_b32 v{O3+i}, v{O3+i}, v{E+i}, s[40:41]')
        A(f'v_cndmask_b32 v{O4+i}, v{O4+i}, v{E+33 if i==0 else E+i}, s[40:41]')
    A(f'{Lt2}:')
    U=E
    def finish(O, ga, xs, dst):
        for p in range(4):
            A(f'v_cvt_pk_bf16_f32 v{U+p}, v{O+2*p}, v{O+2*p+1}')
        for p in range(4):
            A(f'v_lshlrev_b32 v{O+2*p}, 16, v{U+p}')
            A(f'v_and_b32 v{O+2*p+1}, 0xffff0000, v{U+p}')
        for p in range(4):
            A(f'v_pk_mul_f32 {v(O+2*p,2)}, {v(O+2*p,2)}, {v(ga+2*p,2)}')
        for p in range(4):
            A(f'v_cvt_pk_bf16_f32 v{U+p}, v{O+2*p}, v{O+2*p+1}')
        for p in range(4):
            A(f'v_lshlrev_b32 v{O+2*p}, 16, v{U+p}')
            A(f'v_and_b32 v{O+2*p+1}, 0xffff0000, v{U+p}')
        for i,(r,h) in enumerate(xs):
            if h=='lo': A(f'v_lshlrev_b32 v{U+8+i}, 16, v{r}')
            else: A(f'v_and_b32 v{U+8+i}, 0xffff0000, v{r}')
        for p in range(4):
            A(f'v_pk_add_f32 {v(O+2*p,2)}, {v(O+2*p,2)}, {v(U+8+2*p,2)}')
        for p in range(4):
            A(f'v_cvt_pk_bf16_f32 v{dst+p}, v{O+2*p}, v{O+2*p+1}')
    def xdir(ri): return [(X+4*ri+(i>>1),'lo' if i%2==0 else 'hi') for i in range(8)]
    def xmir(ri):
        l=[(X+16+ri,'lo')]
        for q in range(1,8):
            e=8-q; l.append((X+8+4*ri+(e>>1),'lo' if e%2==0 else 'hi'))
        return l
    vD1,vD2=vXo,vXo+1
    A(f'v_lshrrev_b32 v{vT0}, 4, v{vE0}')
    A(f'v_lshlrev_b32 v{vT0}, 10, v{vT0}')
    A(f'v_bfe_u32 v{vT1}, v{vE0}, 3, 1')
    A(f'v_lshl_add_u32 v{vT0}, v{vT1}, 9, v{vT0}')
    for vd,vr in ((vD1,vR1),(vD2,vR2)):
        A(f'v_lshrrev_b32 v{vT1}, 5, v{vr}')
        A(f'v_mul_u32_u24 v{vd}, {36*1024}, v{vT1}')
        A(f'v_and_b32 v{vT1}, 31, v{vr}')
        A(f'v_lshl_add_u32 v{vd}, v{vT1}, 4, v{vd}')
        A(f'v_add_u32 v{vd}, v{vd}, v{vT0}')
    A(f's_mov_b32 s38, {WS_X2}')
    A(f's_mov_b32 s39, {WS_X2+18*1024}')
    D=U+16
    finish(O1,GA,xdir(0),D);     A(f'buffer_store_dwordx4 {v(D,4)}, v{vD1}, s[16:19], s38 offen')
    finish(O2,GA+8,xmir(0),D+4); A(f'buffer_store_dwordx4 {v(D+4,4)}, v{vD1}, s[16:19], s39 offen')
    finish(O3,GA,xdir(1),D+8);   A(f'buffer_store_dwordx4 {v(D+8,4)}, v{vD2}, s[16:19], s38 offen')
    finish(O4,GA+8,xmir(1),D+12);A(f'buffer_store_dwordx4 {v(D+12,4)}, v{vD2}, s[16:19], s39 offen')
    ST=U
    A('s_mov_b32 s38, 0x3f803f80')
    for i in range(4): A(f'v_mov_b32 v{ST+i}, 0')
    for i in range(8):
        for ri in range(2):
            A(f'v_dot2_f32_bf16 v{ST+2*ri}, v{D+8*ri+i}, s38, v{ST+2*ri}')
            A(f'v_dot2_f32_bf16 v{ST+2*ri+1}, v{D+8*ri+i}, v{D+8*ri+i}, v{ST+2*ri+1}')
    A(f'v_lshlrev_b32 v{vT0}, 9, v{vEc}')
    A(f'v_lshl_add_u32 v{vT0}, v{vTl}, 3, v{vT0}')
    A(f'v_add_u32 v{vT0}, {72*1024}, v{vT0}')
    A(f'ds_write_b64 v{vT0}, {v(ST,2)}')
    A(f'ds_write_b64 v{vT0}, {v(ST+2,2)} offset:256')
    A('s_waitcnt lgkmcnt(0)')
    A('s_barrier')
    A(f's_cmp_lg_u32 s{sW}, 0')
    A(f's_cbranch_scc1 {Lend}')
    A(f'v_lshlrev_b32 v{vT0}, 3, v{vLane}')
    A(f'v_add_u32 v{vT0}, {72*1024}, v{vT0}')
    for ec in range(6):
        A(f'ds_read_b64 {v(U+2*ec,2)}, v{vT0} offset:{512*ec}')
    A(f'v_cmp_gt_u32 vcc, 32, v{vLane}')
    A(f's_lshl_b32 s38, s{sET}, 3')
    A(f's_add_u32 s38, s38, {WS_STAT}')
    A(f'v_cndmask_b32 v{vT1}, v{vR2}, v{vR1}, vcc')
    A(f'v_lshlrev_b32 v{vT1}, 6, v{vT1}')
    A('s_waitcnt lgkmcnt(0)')
    for ec in range(1,6):
        A(f'v_pk_add_f32 {v(U,2)}, {v(U,2)}, {v(U+2*ec,2)}')
    A(f'buffer_store_dwordx2 {v(U,2)}, v{vT1}, s[16:19], s38 offen')
    A(f'{Lend}:')
    A('s_endpgm')
    A.end(name, 236, 64, agpr=256)
```

```python
from asmlib import *
from gen1 import *
from gen2 import OOB

class Cnt:
    def __init__(s,name,maxv): s.name=name; s.n=0; s.done=0; s.maxv=maxv
    def issue(s): s.n+=1; return s.n
    def need(s,idn):
        if idn<=s.done: return None
        w=s.n-idn
        assert w<=s.maxv,(s.name,w)
        s.done=idn
        return w

def gen_k4(A, store_flags='', P=5, DEPTH=10, dma=True):
    name='k4_mlp_kernel'
    NW=256; SLOT=12288; NS=12; L0=NS*SLOT
    A.launch(name, NW, 256, L0+2304)
    A.begin(name)
    Lend=A.label('k4_end')
    load_srds(A,[('ws',16)])
    A(f's_cmp_ge_u32 s2, {NW}')
    A(f's_cbranch_scc1 {Lend}')
    sFC,sMT,sW,sSrc,sM0,sDst=28,29,30,31,32,33
    vLane16,vT0,vT1,vCB,vR,vNmr,vL16b=1,2,3,4,5,6,7
    vLB=8
    NB=P+1
    FR=12
    ACC=FR+4*NB; ACC+= ACC%2
    TMP=ACC+16; CB=TMP+16; H1=CB+32; OUT=H1+72; NV=OUT+8
    ST=CB
    A(f's_and_b32 s{sFC}, s2, 7')
    A(f's_lshl_b32 s{sFC}, s{sFC}, 1')
    A(f's_bfe_u32 s34, s2, 0x10003')
    A(f's_add_u32 s{sFC}, s{sFC}, s34')
    A(f's_lshr_b32 s{sMT}, s2, 4')
    A(f'v_lshrrev_b32 v{vT0}, 6, v0')
    A(f'v_and_b32 v{vT1}, 63, v0')
    A(f'v_readfirstlane_b32 s{sW}, v{vT0}')
    A(f'v_lshlrev_b32 v{vLane16}, 4, v{vT1}')
    A(f'v_add_u32 v{vL16b}, 4096, v{vLane16}')
    for k in range(3): A(f'v_add_u32 v{vLB+k}, {k*49152}, v{vLane16}')
    A(f'v_lshrrev_b32 v{vCB}, 5, v{vT1}')
    A(f'v_lshlrev_b32 v{vCB}, 5, v{vCB}')
    A(f'v_add_u32 v{vCB}, {L0}, v{vCB}')
    A(f's_mul_i32 s{sM0}, s{sW}, 3072')
    A(f's_mul_i32 s{sSrc}, s{sFC}, 331776')
    A(f's_add_u32 s{sSrc}, s{sSrc}, s{sM0}')
    A(f's_add_u32 s{sSrc}, s{sSrc}, {WS_W1P}')
    A(f's_lshl_b32 s34, s{sMT}, 2')
    A(f's_add_u32 s34, s34, s{sW}')
    A(f's_mul_i32 s35, s34, {36*1024}')
    A(f's_add_u32 s35, s35, {WS_X2}')
    A(f's_lshl_b32 s36, s{sFC}, 6')
    A('s_add_u32 s36, s36, s34')
    A(f's_mul_i32 s{sDst}, s36, {18*2048}')
    A(f's_add_u32 s{sDst}, s{sDst}, {WS_PART}')
    vm=Cnt('vm',63); lg=Cnt('lgkm',15)
    slot_id={}
    def dma_slot(i):
        if i>=54: return
        if i==27:
            A(f's_add_u32 s{sSrc}, s{sSrc}, {WS_W2P-WS_W1P-27*SLOT}')
        A(f's_add_u32 m0, s{sM0}, {(i%NS)*SLOT}')
        A('s_nop 0')
        for j in range(3):
            if dma: A(f'buffer_load_dwordx4 v{vLane16}, s[16:19], s{sSrc} offen offset:{1024*j} lds')
            else: A('s_nop 0')
            if dma: slot_id[i]=vm.issue()
            else: slot_id[i]=0
        A(f's_add_u32 s{sSrc}, s{sSrc}, {SLOT}')
    A('s_waitcnt lgkmcnt(0)')
    dma_slot(0)
    xid=[]
    for ks in range(36):
        A(f'buffer_load_dwordx4 {a(4*ks,4)}, v{vLane16}, s[16:19], s35 offen offset:{(ks&3)*1024}'); xid.append(vm.issue())
        if ks&3==3: A('s_add_u32 s35, s35, 4096')
    dma_slot(1)
    A(f'v_and_b32 v{vT0}, 31, v0')
    A(f's_lshl_b32 s36, s34, 5')
    A(f'v_add_u32 v{vT0}, s36, v{vT0}')
    A(f'v_lshlrev_b32 v{vT0}, 6, v{vT0}')
    A(f's_mov_b32 s36, {WS_STAT}')
    for i in range(3):
        A(f'buffer_load_dwordx4 {v(ST+4*i,4)}, v{vT0}, s[16:19], s36 offen offset:{16*i}'); sid=vm.issue()
    A(f'v_lshlrev_b32 v{vT1}, 4, v0')
    A(f'v_add_u32 v{vR}, {0x8000-1152}, v{vT1}')
    A('v_cmp_gt_u32 vcc, 72, v0')
    A(f's_mul_i32 s36, s{sFC}, 1152')
    A(f's_add_u32 s36, s36, {WS_CS}')
    A(f'v_cndmask_b32 v{vR}, v{vR}, v{vT1}, vcc')
    A(f'buffer_load_dwordx4 {v(ST+16,4)}, v{vR}, s[16:19], s36 offen'); cid=vm.issue()
    for i in range(2,7): dma_slot(i)
    w=vm.need(cid); A(f's_waitcnt vmcnt({w})')
    for i in range(7,DEPTH): dma_slot(i)
    A(f'v_add_u32 v{vT1}, {L0}, v{vT1}')
    A('v_cmp_gt_u32 vcc, 144, v0')
    A('s_and_saveexec_b64 s[36:37], vcc')
    A(f'ds_write_b128 v{vT1}, {v(ST+16,4)}')
    A('s_mov_b64 exec, s[36:37]')
    for i in range(1,6):
        A(f'v_pk_add_f32 {v(ST,2)}, {v(ST,2)}, {v(ST+2*i,2)}')
    A(f's_mov_b32 s36, 0x3ae38e39')
    A(f's_mov_b32 s37, 0x3727c5ac')
    A(f'v_mul_f32 v{ST}, s36, v{ST}')
    A(f'v_mul_f32 v{ST+1}, s36, v{ST+1}')
    A(f'v_fma_f32 v{ST+1}, -v{ST}, v{ST}, v{ST+1}')
    A(f'v_max_f32 v{ST+1}, 0, v{ST+1}')
    bf16_round(A,f'v{ST+1}',f'v{ST+1}')
    A(f'v_add_f32 v{ST+1}, s37, v{ST+1}')
    bf16_round(A,f'v{ST+1}',f'v{ST+1}')
    A(f'v_sqrt_f32 v{ST+1}, v{ST+1}')
    A('s_nop 0')
    bf16_round(A,f'v{ST+1}',f'v{ST+1}')
    A(f'v_rcp_f32 v{vR}, v{ST+1}')
    bf16_round(A,f'v{ST}',f'v{ST}')
    A(f'v_mul_f32 v{vNmr}, -v{ST}, v{vR}')
    A('s_waitcnt lgkmcnt(0)')
    NSTEP=648
    side={}
    def add(n,f): side.setdefault(n,[]).append(f)
    rd_id={}
    cb_id={}
    def read_frag(n):
        if n>=NSTEP: return
        if n%12==0:
            i=n//12
            w=vm.need(slot_id[i])
            if w is not None: A(f's_waitcnt vmcnt({w})')
            A('s_barrier')
            dma_slot(i+DEPTH)
        addr=((n//12)%NS)*SLOT+(n%12)*1024
        A(f'ds_read_b128 {v(FR+4*(n%NB),4)}, v{vLB+addr//49152} offset:{addr%49152}')
        rd_id[n]=lg.issue()
    def lgwait(idn):
        w=lg.need(idn)
        if w is not None: A(f's_waitcnt lgkmcnt({w})')
    def cb_read(ft,k):
        def f():
            arr=k>>2; qp=(k>>1)&1; i=k&1
            A(f'ds_read_b128 {v(CB+16*arr+8*qp+4*i,4)}, v{vCB} offset:{1152*arr+128*ft+64*qp+16*i}')
            cb_id[ft]=lg.issue()
        return f
    def epi1_ops(ft):
        ops=[]
        ops.append(lambda: lgwait(cb_id[ft]))
        for r in range(16):
            ops.append(lambda r=r: A(f'v_fma_f32 v{TMP+r}, v{TMP+r}, v{vR}, v{CB+16+r}'))
            ops.append(lambda r=r: A(f'v_fmac_f32 v{TMP+r}, v{CB+r}, v{vNmr}'))
            if r&1:
                d=H1+8*ft+(r>>1)
                ops.append(lambda r=r,d=d: A(f'v_cvt_pk_bf16_f32 v{d}, v{TMP+r-1}, v{TMP+r}'))
                ops.append(lambda d=d: A(f'v_pk_max_i16 v{d}, v{d}, 0'))
        return ops
    def epi2_ops(nt):
        ops=[]
        for qp in range(2):
            for p in range(4):
                ops.append(lambda qp=qp,p=p: A(f'v_cvt_pk_bf16_f32 v{OUT+4*qp+p}, v{TMP+8*qp+2*p}, v{TMP+8*qp+2*p+1}'))
            def st(qp=qp):
                A(f'buffer_store_dwordx4 {v(OUT+4*qp,4)}, v{vLane16}, s[16:19], s{sDst} offen offset:{1024*qp} {store_flags}')
                vm.issue()
                if qp==1: A(f's_add_u32 s{sDst}, s{sDst}, 2048')
            ops.append(st)
        return ops
    def spread(ops, start, per):
        for i,o in enumerate(ops): add(start+i//per, o)
    for ft in range(9):
        for k in range(8): add(36*ft+26+k, cb_read(ft,k))
        spread(epi1_ops(ft), 36*(ft+1)+5, 3 if ft<8 else 5)
    for nt in range(18):
        spread(epi2_ops(nt), 324+18*(nt+1)+5, 2)
    for n in range(P): read_frag(n)
    for n in range(NSTEP):
        lgwait(rd_id[n])
        if n<324:
            ks=n%36; first=ks==0; last=ks==35
            if n<36:
                w=vm.need(xid[ks])
                if w is not None: A(f's_waitcnt vmcnt({w})')
            B=a(4*ks,4)
        else:
            ks=(n-324)%18; first=ks==0; last=ks==17
            B=v(H1+4*ks,4)
        d=v(TMP,16) if last else v(ACC,16)
        c='0' if first else v(ACC,16)
        A(f'v_mfma_f32_32x32x16_bf16 {d}, {v(FR+4*(n%NB),4)}, {B}, {c}')
        read_frag(n+P)
        for f in side.get(n,[]): f()
    A('s_nop 7'); A('s_nop 3')
    for n in sorted(k for k in side if k>=NSTEP):
        for f in side[n]: f()
    A(f'{Lend}:')
    A('s_endpgm')
    A.end(name, NV, 64, agpr=144)

def gen_k5(A):
    name='k5_red_kernel'
    NW=576
    A.launch(name, NW, 256, 0)
    A.begin(name)
    Lend=A.label('k5_end'); Lm=A.label('k5_m'); Lj=A.label('k5_j')
    load_srds(A,[('ws',16),('out',20)])
    A(f's_cmp_ge_u32 s2, {NW}')
    A(f's_cbranch_scc1 {Lend}')
    vT0,vT1,vG,vLane,vH,vM,vXm,vXe,vN0,vO=1,2,3,4,5,6,7,8,9,10
    PD=12
    XR=76; XE=80; GB=84; AC=92; U=100
    A(f'v_lshrrev_b32 v{vT0}, 6, v0')
    A(f's_lshl_b32 s24, s2, 12')
    A(f'v_readfirstlane_b32 s25, v{vT0}')
    A(f'v_lshlrev_b32 v{vG}, 4, v0')
    A(f's_add_u32 s24, s24, {WS_PART}')
    A('s_waitcnt lgkmcnt(0)')
    for fc in range(16):
        A(f'buffer_load_dwordx4 {v(PD+4*fc,4)}, v{vG}, s[16:19], s24 offen')
        if fc<15: A(f's_add_u32 s24, s24, {64*18*2048}')
    A('s_lshl_b32 s26, s2, 2')
    A('s_add_u32 s26, s26, s25')
    A('s_mul_i32 s27, s26, 1821')
    A('s_lshr_b32 s27, s27, 16')
    A('s_mul_i32 s28, s27, 36')
    A('s_sub_u32 s28, s26, s28')
    A(f'v_and_b32 v{vLane}, 63, v0')
    A(f'v_lshrrev_b32 v{vH}, 5, v{vLane}')
    A(f'v_and_b32 v{vM}, 31, v{vLane}')
    A('s_lshl_b32 s29, s28, 1')
    A(f'v_add_u32 v{vN0}, s29, v{vH}')
    def chunk(dst,c):
        A(f'v_lshrrev_b32 v{vT1}, 1, v{c}')
        A(f'v_lshlrev_b32 v{dst}, 10, v{vT1}')
        A(f'v_and_b32 v{vT1}, 1, v{c}')
        A(f'v_lshl_add_u32 v{dst}, v{vT1}, 9, v{dst}')
        A(f'v_lshl_add_u32 v{dst}, v{vM}, 4, v{dst}')
    A(f's_mul_i32 s30, s27, {36*1024}')
    A(f's_add_u32 s30, s30, {WS_X2}')
    A(f'v_lshlrev_b32 v{vT0}, 5, v{vN0}')
    A(f's_mov_b32 s31, {WS_MOD+5*576*4}')
    A(f'buffer_load_dwordx4 {v(GB,4)}, v{vT0}, s[16:19], s31 offen')
    A(f'buffer_load_dwordx4 {v(GB+4,4)}, v{vT0}, s[16:19], s31 offen offset:16')
    A('s_lshl_b32 s31, s27, 5')
    A(f'v_add_u32 v{vO}, s31, v{vM}')
    A(f'v_mul_u32_u24 v{vO}, 1152, v{vO}')
    A(f'v_lshl_add_u32 v{vO}, v{vN0}, 4, v{vO}')
    A('s_cmp_ge_u32 s28, 18')
    A(f's_cbranch_scc1 {Lm}')
    chunk(vXm,vN0)
    A(f'buffer_load_dwordx4 {v(XR,4)}, v{vXm}, s[16:19], s30 offen')
    A('s_waitcnt vmcnt(0)')
    for p in range(4):
        A(f'v_lshlrev_b32 v{U+2*p}, 16, v{XR+p}')
        A(f'v_and_b32 v{U+2*p+1}, 0xffff0000, v{XR+p}')
    A(f's_branch {Lj}')
    A(f'{Lm}:')
    A(f'v_sub_u32 v{vT0}, 107, v{vN0}')
    chunk(vXm,vT0)
    A(f'v_add_u32 v{vT0}, 1, v{vT0}')
    A(f'v_cmp_eq_u32 vcc, 72, v{vT0}')
    A('s_nop 1')
    A(f'v_cndmask_b32 v{vT0}, v{vT0}, 36, vcc')
    chunk(vXe,vT0)
    A(f'buffer_load_dwordx4 {v(XR,4)}, v{vXm}, s[16:19], s30 offen')
    A(f'buffer_load_ushort v{XE}, v{vXe}, s[16:19], s30 offen')
    A('s_waitcnt vmcnt(0)')
    A(f'v_lshlrev_b32 v{U}, 16, v{XE}')
    for q in range(1,8):
        e=8-q
        if e%2==0: A(f'v_lshlrev_b32 v{U+q}, 16, v{XR+(e>>1)}')
        else: A(f'v_and_b32 v{U+q}, 0xffff0000, v{XR+(e>>1)}')
    A(f'{Lj}:')
    T=U+8
    for fc in range(16):
        for p in range(4):
            if fc==0:
                A(f'v_lshlrev_b32 v{AC+2*p}, 16, v{PD+p}')
                A(f'v_and_b32 v{AC+2*p+1}, 0xffff0000, v{PD+p}')
            else:
                A(f'v_lshlrev_b32 v{T+2*p}, 16, v{PD+4*fc+p}')
                A(f'v_and_b32 v{T+2*p+1}, 0xffff0000, v{PD+4*fc+p}')
                A(f'v_pk_add_f32 {v(AC+2*p,2)}, {v(AC+2*p,2)}, {v(T+2*p,2)}')
    def rnd():
        for p in range(4): A(f'v_cvt_pk_bf16_f32 v{T+p}, v{AC+2*p}, v{AC+2*p+1}')
        for p in range(4):
            A(f'v_lshlrev_b32 v{AC+2*p}, 16, v{T+p}')
            A(f'v_and_b32 v{AC+2*p+1}, 0xffff0000, v{T+p}')
    rnd()
    for p in range(4): A(f'v_pk_mul_f32 {v(AC+2*p,2)}, {v(AC+2*p,2)}, {v(GB+2*p,2)}')
    rnd()
    for p in range(4): A(f'v_pk_add_f32 {v(AC+2*p,2)}, {v(AC+2*p,2)}, {v(U+2*p,2)}')
    for p in range(4): A(f'v_cvt_pk_bf16_f32 v{T+p}, v{AC+2*p}, v{AC+2*p+1}')
    A(f'buffer_store_dwordx4 {v(T,4)}, v{vO}, s[20:23], 0 offen')
    A(f'{Lend}:')
    A('s_endpgm')
    A.end(name, 120, 40)
```

```python
import sys
from asmlib import *
from gen1 import *
from gen2 import *
from gen3 import *
from gen4 import *
A=Asm()
gen_k1(A); gen_k2(A); gen_k3(A); gen_k4(A); gen_k5(A)
out=sys.argv[1] if len(sys.argv)>1 else 'adaLN_cond__spectral_fnet__dense_activation_relu__prompt.s'
open(out,'w').write(A.text())
```

```python
class Asm:
    def __init__(self):
        self.lines=[]; self.kernels=[]; self.launches=[]; self._lab=0; self.prof=False; self.kidx=-1
    def __call__(self, s, *a):
        if a: s = s % a
        for l in s.split('\n'):
            l=l.strip()
            if l: self.lines.append('    '+l if not l.endswith(':') else l)
    def c(self, s): self.lines.append('    ; '+s)
    def label(self, base='L'):
        self._lab+=1; return f'{base}_{self._lab}'
    def stamp(self, i):
        if not self.prof: return
        self(f's_memrealtime s[{80+2*i}:{81+2*i}]')
        self('s_waitcnt lgkmcnt(0)')
    def cstamp(self, i):
        if not self.prof: return
        self(f's_memtime s[{80+2*i}:{81+2*i}]')
        self('s_waitcnt lgkmcnt(0)')
    def endpgm(self, wsrd=16):
        if self.prof:
            self.stamp(7)
            self('s_mov_b64 exec, 1')
            self('v_lshrrev_b32 v1, 6, v0')
            self('s_lshl_b32 s78, s2, 4')
            self('v_add_u32 v1, s78, v1')
            self('v_lshlrev_b32 v1, 5, v1')
            self(f's_mov_b32 s78, {0x8000000+self.kidx*0x100000}')
            for i in range(8):
                self(f'v_mov_b32 v2, s{80+2*i}')
                self(f'buffer_store_dword v2, v1, s[{wsrd}:{wsrd+3}], s78 offen offset:{4*i}')
        self('s_endpgm')
    def begin(self, name):
        self.kidx+=1
        self.lines.append(f'.globl {name}\n.p2align 8\n.type {name},@function\n{name}:')
        if self.prof:
            for i in range(1,8): self(f's_mov_b64 s[{80+2*i}:{81+2*i}], 0')
            self.stamp(0)
    def end(self, name, vgpr, sgpr=96, agpr=0):
        acc=(vgpr+3)//4*4
        nfv=acc+agpr if agpr else vgpr
        if self.prof: sgpr=100
        self.kernels.append((name,nfv,sgpr,acc))
    def launch(self, name, grid, block, lds):
        self.launches.append(f'; @launch kernel={name} grid=({grid},1,1) block=({block},1,1) lds={lds}')
    def text(self, header=''):
        s='\n'.join(self.launches)+'\n'
        if header: s+= '\n'.join('; '+l for l in header.strip('\n').split('\n'))+'\n'
        s+='.amdgcn_target "amdgcn-amd-amdhsa--gfx950"\n.text\n'
        s+='\n'.join(self.lines)+'\n'
        s+='.section .rodata,"a"\n'
        for (n,nfv,sg,acc) in self.kernels:
            s+=f'''.p2align 6
.amdhsa_kernel {n}
  .amdhsa_next_free_vgpr {nfv}
  .amdhsa_next_free_sgpr {sg}
  .amdhsa_accum_offset {acc}
  .amdhsa_group_segment_fixed_size 0
  .amdhsa_kernarg_size 104
  .amdhsa_user_sgpr_count 2
  .amdhsa_user_sgpr_kernarg_segment_ptr 1
  .amdhsa_system_sgpr_workgroup_id_x 1
  .amdhsa_float_denorm_mode_32 3
.end_amdhsa_kernel
'''
        return s

def v(i,n=1): return f'v{i}' if n==1 else f'v[{i}:{i+n-1}]'
def a(i,n=1): return f'a{i}' if n==1 else f'a[{i}:{i+n-1}]'
def s(i,n=1): return f's{i}' if n==1 else f's[{i}:{i+n-1}]'

KA=dict(x=0,Cs=8,Ss=16,Cd=24,Sd=32,Bx=40,w1=48,w2=56,c=64,wmod=72,out=80,dbg=88,ws=96)
SZ=dict(x=2048*576*2,Cs=2048*2048*2,Ss=2048*2048*2,Cd=576*576*2,Sd=576*576*2,w1=576*4608*2,w2=4608*576*2,c=1152,wmod=576*3456*2,out=2048*576*2,dbg=256,ws=268435456)

def load_srds(A, items):
    for n,r in items:
        A(f's_load_dwordx2 {s(r,2)}, s[0:1], {KA[n]}')
    for n,r in items:
        A(f's_mov_b32 {s(r+2)}, {SZ[n]}')
        A(f's_mov_b32 {s(r+3)}, 0x00020000')
```

```python
from asmlib import *

WS_MOD   = 0x0000000
WS_AE1024= 0x0004000
WS_CS    = 0x0008000
WS_BV    = 0x0010000
WS_STAT  = 0x0020000
WS_AE    = 0x0100000
WS_BO    = 0x0200000
WS_X2    = 0x0300000
WS_W1P   = 0x0600000
WS_W2P   = 0x0C00000
WS_PART  = 0x1200000
LOG2E=0x3fb8aa3b

def bf16_round(A, dst, src, tmp=None):
    A(f'v_cvt_pk_bf16_f32 {dst}, {src}, {src}')
    A(f'v_and_b32 {dst}, 0xffff0000, {dst}')

def gen_k1(A, NW2=202):
    name='k1_mod_kernel'
    NMOD=54
    A.launch(name, NMOD+NW2, 256, 8192)
    A.begin(name)
    Lw2=A.label('k1_w2'); Lend=A.label('k1_end')
    load_srds(A,[('wmod',8),('c',12),('ws',16),('x',20),('Cd',40),('Sd',44),('Cs',48),('Ss',52)])
    A(f's_cmp_ge_u32 s2, {NMOD+NW2}')
    A(f's_cbranch_scc1 {Lend}')
    A(f's_cmp_ge_u32 s2, {NMOD}')
    A(f's_cbranch_scc1 {Lw2}')
    vCC,vRG,vOff,vCo=1,2,3,4
    vC=8; vW=32; vAcc=112; vT=120
    A(f'v_and_b32 v{vCC}, 7, v0')
    A(f'v_lshrrev_b32 v{vRG}, 3, v0')
    A(f'v_mul_u32_u24 v{vOff}, 6912, v{vRG}')
    A(f'v_lshl_add_u32 v{vOff}, v{vCC}, 4, v{vOff}')
    A(f'v_lshlrev_b32 v{vCo}, 1, v{vRG}')
    A(f's_lshl_b32 s24, s2, 7')
    A('s_waitcnt lgkmcnt(0)')
    for p in range(18):
        A(f'buffer_load_ushort v{vC+p}, v{vCo}, s[12:15], 0 offen offset:{64*p}')
    for p in range(18):
        A(f'buffer_load_dwordx4 {v(vW+4*p,4)}, v{vOff}, s[8:11], s24 offen')
        if p<17: A(f's_add_u32 s24, s24, {32*6912}')
    for i in range(8): A(f'v_mov_b32 v{vAcc+i}, 0')
    A(f's_mov_b32 s25, 0x{LOG2E:x}')
    A.stamp(1)
    A('s_waitcnt vmcnt(18)')
    A.stamp(2)
    for p in range(18):
        c=vC+p
        A(f'v_lshlrev_b32 v{c}, 16, v{c}')
        A(f'v_mul_f32 v{vT}, s25, v{c}')
        A(f'v_exp_f32 v{vT}, -v{vT}')
        A('s_nop 0')
        A(f'v_add_f32 v{vT}, 1.0, v{vT}')
        A(f'v_rcp_f32 v{vT}, v{vT}')
        A('s_nop 0')
        A(f'v_mul_f32 v{c}, v{c}, v{vT}')
        bf16_round(A,f'v{c}',f'v{c}')
    for p in range(18):
        A(f's_waitcnt vmcnt({17-p})')
        for i in range(4):
            w=vW+4*p+i
            A(f'v_lshlrev_b32 v{vT}, 16, v{w}')
            A(f'v_and_b32 v{vT+1}, 0xffff0000, v{w}')
            A(f'v_fmac_f32 v{vAcc+2*i}, v{vT}, v{vC+p}')
            A(f'v_fmac_f32 v{vAcc+2*i+1}, v{vT+1}, v{vC+p}')
    A.stamp(3)
    A(f'v_lshlrev_b32 v{vT}, 8, v{vRG}')
    A(f'v_lshl_add_u32 v{vT}, v{vCC}, 5, v{vT}')
    A(f'ds_write_b128 v{vT}, {v(vAcc,4)}')
    A(f'ds_write_b128 v{vT}, {v(vAcc+4,4)} offset:16')
    A('s_waitcnt lgkmcnt(0)')
    A('s_barrier')
    A.stamp(4)
    A('v_cmp_gt_u32 vcc, 64, v0')
    A('s_and_saveexec_b64 s[26:27], vcc')
    A(f's_cbranch_execz {Lend}')
    A(f'v_lshlrev_b32 v{vT}, 2, v0')
    for r in range(32):
        A(f'ds_read_b32 v{vW+r}, v{vT} offset:{256*r}')
    A('s_mul_i32 s28, s2, 7282')
    A('s_lshr_b32 s28, s28, 16')
    A('s_mul_i32 s29, s28, 9')
    A('s_sub_u32 s29, s2, s29')
    A('s_lshl_b32 s29, s29, 6')
    A(f'v_add_u32 v{vOff}, s29, v0')
    A(f'v_sub_u32 v{vCo}, 864, v{vOff}')
    A(f'v_cmp_lt_u32 vcc, 288, v{vOff}')
    A('s_cmp_eq_u32 s28, 5')
    A('s_cselect_b64 s[30:31], 0, vcc')
    A('s_nop 1')
    A(f'v_cndmask_b32 v{vOff}, v{vOff}, v{vCo}, s[30:31]')
    A('s_mul_i32 s29, s28, 576')
    A(f'v_add_u32 v{vOff}, s29, v{vOff}')
    A(f'v_lshlrev_b32 v{vOff}, 2, v{vOff}')
    A('s_waitcnt lgkmcnt(0)')
    for st in (16,8,4,2,1):
        for r in range(st):
            A(f'v_add_f32 v{vW+r}, v{vW+r}, v{vW+r+st}')
    bf16_round(A,f'v{vW}',f'v{vW}')
    Lns=A.label('k1_ns')
    A('s_cmp_eq_u32 s28, 1')
    A('s_cselect_b32 s29, 1, 0')
    A('s_cmp_eq_u32 s28, 4')
    A('s_cselect_b32 s29, 1, s29')
    A('s_cmp_eq_u32 s29, 0')
    A(f's_cbranch_scc1 {Lns}')
    A(f'v_add_f32 v{vW}, 1.0, v{vW}')
    bf16_round(A,f'v{vW}',f'v{vW}')
    A(f'{Lns}:')
    A(f'buffer_store_dword v{vW}, v{vOff}, s[16:19], 0 offen offset:{WS_MOD}')
    A.endpgm()
    A(f'{Lw2}:')
    A('s_cmp_lt_u32 s2, 56')
    A(f's_cbranch_scc1 {Lend}')
    Lnc=A.label('k1_nc'); Lpc=A.label('k1_pc')
    A('s_cmp_lt_u32 s2, 248')
    A(f's_cbranch_scc1 {Lnc}')
    A('s_getpc_b64 s[32:33]')
    A(f'{Lpc}:')
    A('v_lshlrev_b32 v1, 7, v0')
    for r in range(3):
        A(f'v_add_u32 v2, {32768*r}, v1')
        A(f'v_min_u32 v2, code_end-{Lpc}, v2')
        A(f'global_load_dword v{10+r}, v2, s[32:33]')
    A('s_waitcnt vmcnt(0) lgkmcnt(0)')
    A(f's_branch {Lend}')
    A(f'{Lnc}:')
    A('s_and_b32 s31, s2, 7')
    A('s_sub_u32 s32, s2, 56'); A('s_lshr_b32 s32, s32, 3')
    A('s_lshl_b32 s33, s32, 8')
    A('v_add_u32 v1, s33, v0')
    A('v_mov_b32 v6, 0x40000000')
    A(f's_mov_b32 s36, {(2**32+8)//9}')
    A('v_mul_hi_u32 v2, v1, s36')
    A('v_mul_u32_u24 v3, 9, v2'); A('v_sub_u32 v3, v1, v3')
    A('v_lshrrev_b32 v4, 5, v2'); A('v_lshlrev_b32 v4, 3, v4'); A('v_add_u32 v4, s31, v4'); A('v_lshlrev_b32 v4, 4, v4')
    A('v_and_b32 v5, 15, v2'); A('v_add_u32 v4, v4, v5')
    A('v_sub_u32 v5, 2048, v4')
    A('v_and_b32 v7, 16, v2'); A('v_cmp_eq_u32 vcc, 0, v7'); A('s_nop 1')
    A('v_cndmask_b32 v4, v5, v4, vcc')
    A('v_mul_u32_u24 v4, 1152, v4'); A('v_lshl_add_u32 v4, v3, 7, v4')
    A('v_cmp_gt_u32 vcc, 256, v2'); A('s_nop 1')
    A('v_cndmask_b32 v4, v6, v4, vcc')
    A('v_subrev_u32 v8, 2304, v1')
    A(f's_mov_b32 s36, {(2**32+4)//5}')
    A('v_mul_hi_u32 v2, v8, s36')
    A('v_mul_u32_u24 v3, 5, v2'); A('v_sub_u32 v3, v8, v3')
    A('v_mul_u32_u24 v5, 1152, v2'); A('v_lshl_add_u32 v5, v3, 7, v5')
    A('v_cmp_gt_u32 vcc, 1520, v8'); A('s_nop 1')
    A('v_cndmask_b32 v5, v6, v5, vcc')
    A('v_subrev_u32 v8, 3840, v1')
    A('v_lshrrev_b32 v2, 4, v8'); A('v_and_b32 v3, 15, v8')
    A('s_lshr_b32 s34, s31, 1'); A('s_lshl_b32 s34, s34, 7')
    A('v_add_u32 v7, s34, v2'); A('v_add_u32 v9, 384, v2')
    A('v_cmp_gt_u32 vcc, 128, v2'); A('s_nop 1')
    A('v_cndmask_b32 v7, v9, v7, vcc')
    A('v_lshlrev_b32 v7, 12, v7'); A('v_lshl_add_u32 v7, v3, 7, v7')
    A('v_cmp_gt_u32 vcc, 144, v2'); A('s_nop 1')
    A('v_cndmask_b32 v7, v6, v7, vcc')
    A('s_waitcnt lgkmcnt(0)')
    A('buffer_load_dword v13, v7, s[48:51], 0 offen')
    A('buffer_load_dword v14, v7, s[52:55], 0 offen')
    A('buffer_load_dword v10, v4, s[20:23], 0 offen')
    A('buffer_load_dword v11, v5, s[40:43], 0 offen')
    A('buffer_load_dword v12, v5, s[44:47], 0 offen')
    A('s_waitcnt vmcnt(0)')
    A(f'{Lend}:')
    A.endpgm()
    A.end(name, 128, 64)
```

```python
from asmlib import *
from gen1 import *
WS_PMOD=0x0008000
OOB=0x40000000

def silu_bf16(A, c, t, sLog2e):
    A(f'v_lshlrev_b32 v{c}, 16, v{c}')
    A(f'v_mul_f32 v{t}, s{sLog2e}, v{c}')
    A(f'v_exp_f32 v{t}, -v{t}')
    A('s_nop 0')
    A(f'v_add_f32 v{t}, 1.0, v{t}')
    A(f'v_rcp_f32 v{t}, v{t}')
    A('s_nop 0')
    A(f'v_mul_f32 v{c}, v{c}, v{t}')
    bf16_round(A,f'v{c}',f'v{c}')

def mod_block(A, NRG, NP, sCol, sRow0, nrows, srdW, srdC, Lend, finish, after_issue=None, extra=0):
    vCC,vRG,vOff,vCo=1,2,3,4
    vC=8; vW=32; vAcc=112; vT=120
    A(f'v_and_b32 v{vCC}, 7, v0')
    A(f'v_lshrrev_b32 v{vRG}, 3, v0')
    A(f'v_add_u32 v{vCo}, s{sRow0}, v{vRG}')
    A(f'v_mul_u32_u24 v{vOff}, 6912, v{vCo}')
    A(f'v_lshl_add_u32 v{vOff}, v{vCC}, 4, v{vOff}')
    A(f'v_lshlrev_b32 v{vCo}, 1, v{vCo}')
    last_partial = nrows%NRG
    if last_partial:
        A(f'v_cmp_gt_u32 vcc, {last_partial}, v{vRG}')
        A(f'v_mov_b32 v{vT}, 0x{OOB:x}')
        A('s_nop 0')
        A(f'v_cndmask_b32 v5, v{vT}, v{vOff}, vcc')
    A('s_waitcnt lgkmcnt(0)')
    for p in range(NP):
        A(f'buffer_load_dwordx4 {v(vW+4*p,4)}, v{5 if (last_partial and p==NP-1) else vOff}, {srdW}, s{sCol} offen')
        if p<NP-1: A(f's_add_u32 s{sCol}, s{sCol}, {NRG*6912}')
    for p in range(NP):
        A(f'buffer_load_ushort v{vC+p}, v{vCo}, {srdC}, 0 offen offset:{2*NRG*p}')
    for i in range(8): A(f'v_mov_b32 v{vAcc+i}, 0')
    A(f's_mov_b32 s25, 0x{LOG2E:x}')
    if after_issue: after_issue()
    A.stamp(1)
    A(f's_waitcnt vmcnt({extra})')
    A.stamp(2)
    for p in range(NP): silu_bf16(A,vC+p,vT,25)
    for p in range(NP):
        for i in range(4):
            w=vW+4*p+i
            A(f'v_lshlrev_b32 v{vT}, 16, v{w}')
            A(f'v_and_b32 v{vT+1}, 0xffff0000, v{w}')
            A(f'v_fmac_f32 v{vAcc+2*i}, v{vT}, v{vC+p}')
            A(f'v_fmac_f32 v{vAcc+2*i+1}, v{vT+1}, v{vC+p}')
    def xr(kind):
        for i in range(8):
            r=vAcc+i
            if kind=='8': A(f'v_add_f32_dpp v{r}, v{r}, v{r} row_ror:8 row_mask:0xf bank_mask:0xf')
            else:
                A(f'v_mov_b32 v{vW+i}, v{r}')
        if kind!='8':
            A('s_nop 1')
            for i in range(8): A(f'v_permlane{kind}_swap_b32 v{vW+i}, v{vAcc+i}')
            A('s_nop 1')
            for i in range(8): A(f'v_add_f32 v{vAcc+i}, v{vAcc+i}, v{vW+i}')
    A('s_nop 1'); xr('8'); xr('16'); xr('32')
    NWV=NRG//8
    A(f'v_lshrrev_b32 v{vT}, 6, v0')
    A(f'v_lshlrev_b32 v{vT}, 8, v{vT}')
    A(f'v_lshl_add_u32 v{vT}, v{vCC}, 5, v{vT}')
    A('s_mov_b64 exec, 0xff')
    A(f'ds_write_b128 v{vT}, {v(vAcc,4)}')
    A(f'ds_write_b128 v{vT}, {v(vAcc+4,4)} offset:16')
    A('s_mov_b64 exec, -1')
    A('s_waitcnt lgkmcnt(0)')
    A('s_barrier')
    A.stamp(3)
    A('v_cmp_gt_u32 vcc, 64, v0')
    A('s_and_saveexec_b64 s[26:27], vcc')
    A(f's_cbranch_execz {Lend}')
    A(f'v_lshlrev_b32 v{vT}, 2, v0')
    for r in range(NWV): A(f'ds_read_b32 v{vW+r}, v{vT} offset:{256*r}')
    finish('pre')
    A('s_waitcnt lgkmcnt(0)')
    st=NWV//2
    while st:
        for r in range(st): A(f'v_add_f32 v{vW+r}, v{vW+r}, v{vW+r+st}')
        st//=2
    finish('post')

def kappa_pos(A, vD, vTmp, sMask=None):
    A(f'v_sub_u32 v{vTmp}, 864, v{vD}')
    A(f'v_cmp_lt_u32 vcc, 288, v{vD}')
    if sMask: A(sMask)
    A('s_nop 1')
    A(f'v_cndmask_b32 v{vD}, v{vD}, v{vTmp}, vcc')

def k1_prefetch(A, V):
    v1,v2,v3,v4,v5,v6,v7,v8=[f'v{V+i}' for i in range(8)]
    Lpc=A.label('k1_pc')
    A('s_and_b32 s56, s2, 7')
    A('s_lshr_b32 s57, s2, 3')
    A(f'v_mov_b32 {v6}, 0x{OOB:x}')
    Lx=A.label('pfx'); Lh=A.label('pfh'); Ls=A.label('pfs'); Lc=A.label('pfc'); Ld=A.label('pfd')
    A('s_cmp_lt_u32 s57, 9'); A(f's_cbranch_scc1 {Lx}')
    A('s_cmp_lt_u32 s57, 21'); A(f's_cbranch_scc1 {Lh}')
    A('s_cmp_lt_u32 s57, 30'); A(f's_cbranch_scc1 {Ls}')
    A('s_getpc_b64 s[58:59]')
    A(f'{Lpc}:')
    A('s_sub_u32 s57, s57, 30'); A('s_lshl_b32 s57, s57, 15')
    A(f'v_lshlrev_b32 {v1}, 7, v0'); A(f'v_add_u32 {v1}, s57, {v1}')
    for r in range(2):
        A(f'v_add_u32 {v2}, {65536*r}, {v1}')
        A(f'v_min_u32 {v2}, code_end-{Lpc}, {v2}')
        A(f'global_load_dword v{V+8+r}, {v2}, s[58:59]')
    A(f's_branch {Ld}')
    A(f'{Lx}:')
    A('s_lshl_b32 s58, s57, 8'); A(f'v_add_u32 {v1}, s58, v0')
    A(f's_mov_b32 s59, {(2**32+8)//9}')
    A(f'v_mul_hi_u32 {v2}, {v1}, s59')
    A(f'v_mul_u32_u24 {v3}, 9, {v2}'); A(f'v_sub_u32 {v3}, {v1}, {v3}')
    A(f'v_lshrrev_b32 {v4}, 5, {v2}'); A(f'v_lshlrev_b32 {v4}, 3, {v4}'); A(f'v_add_u32 {v4}, s56, {v4}'); A(f'v_lshlrev_b32 {v4}, 4, {v4}')
    A(f'v_and_b32 {v5}, 15, {v2}'); A(f'v_add_u32 {v4}, {v4}, {v5}')
    A(f'v_sub_u32 {v5}, 2048, {v4}')
    A(f'v_and_b32 {v7}, 16, {v2}'); A(f'v_cmp_eq_u32 vcc, 0, {v7}'); A('s_nop 1')
    A(f'v_cndmask_b32 {v4}, {v5}, {v4}, vcc')
    A(f'v_mul_u32_u24 {v4}, 1152, {v4}'); A(f'v_lshl_add_u32 {v4}, {v3}, 7, {v4}')
    A(f'buffer_load_dword v{V+8}, {v4}, s[20:23], 0 offen')
    A(f's_branch {Ld}')
    A(f'{Lh}:')
    A('s_sub_u32 s57, s57, 9')
    A('s_cmp_ge_u32 s57, 6')
    A('s_cselect_b32 s60, s44, s40'); A('s_cselect_b32 s61, s45, s41'); A('s_cselect_b32 s58, 6, 0')
    A(f's_mov_b32 s62, {SZ["Cd"]}'); A('s_mov_b32 s63, 0x00020000')
    A('s_sub_u32 s57, s57, s58'); A('s_lshl_b32 s58, s57, 8'); A(f'v_add_u32 {v8}, s58, v0')
    A(f's_mov_b32 s59, {(2**32+4)//5}')
    A(f'v_mul_hi_u32 {v2}, {v8}, s59')
    A(f'v_mul_u32_u24 {v3}, 5, {v2}'); A(f'v_sub_u32 {v3}, {v8}, {v3}')
    A(f'v_mul_u32_u24 {v5}, 1152, {v2}'); A(f'v_lshl_add_u32 {v5}, {v3}, 7, {v5}')
    A(f'buffer_load_dword v{V+8}, {v5}, s[60:63], 0 offen')
    A(f's_branch {Ld}')
    A(f'{Ls}:')
    A('s_sub_u32 s57, s57, 21'); A('s_lshl_b32 s58, s57, 8'); A(f'v_add_u32 {v1}, s58, v0')
    A(f'v_lshrrev_b32 {v2}, 4, {v1}'); A(f'v_and_b32 {v3}, 15, {v1}')
    A('s_lshr_b32 s58, s56, 1'); A('s_lshl_b32 s58, s58, 7')
    A(f'v_add_u32 {v7}, s58, {v2}'); A(f'v_add_u32 {v8}, 384, {v2}')
    A(f'v_cmp_gt_u32 vcc, 128, {v2}'); A('s_nop 1')
    A(f'v_cndmask_b32 {v7}, {v8}, {v7}, vcc')
    A(f'v_lshlrev_b32 {v7}, 12, {v7}'); A(f'v_lshl_add_u32 {v7}, {v3}, 7, {v7}')
    A(f'v_cmp_gt_u32 vcc, 129, {v2}'); A('s_nop 1')
    A(f'v_cndmask_b32 {v7}, {v6}, {v7}, vcc')
    A(f'buffer_load_dword v{V+8}, {v7}, s[48:51], 0 offen')
    A(f'buffer_load_dword v{V+9}, {v7}, s[52:55], 0 offen')
    A(f'{Ld}:')
    A('s_lshr_b32 s57, s2, 3'); A('s_mul_i32 s57, s57, 114'); A('s_add_u32 s57, s57, 1536')
    A(f'v_min_u32 {v1}, 113, v0'); A(f'v_add_u32 {v1}, s57, {v1}')
    A(f's_mov_b32 s59, {(2**32+8)//9}')
    A(f'v_mul_hi_u32 {v2}, {v1}, s59')
    A(f'v_mul_u32_u24 {v3}, 9, {v2}'); A(f'v_sub_u32 {v3}, {v1}, {v3}')
    A(f'v_mul_u32_u24 {v2}, 9216, {v2}'); A(f'v_lshl_add_u32 {v2}, {v3}, 7, {v2}')
    A('s_mul_i32 s58, s56, 1152')
    A(f'buffer_load_dword v{V+10}, {v2}, s[64:67], s58 offen')

def gen_k1b(A, name='k1_mod_kernel', pf=True):
    NMOD=144; NT=256 if pf else 144
    A.launch(name, NT, 256, 2048)
    A.begin(name)
    Lpf=A.label('k1_pf'); Lend=A.label('k1_end')
    load_srds(A,[('wmod',8),('c',12),('ws',16),('x',20),('Cd',40),('Sd',44),('Cs',48),('Ss',52),('w1',64)])
    A(f's_cmp_ge_u32 s2, {NT}')
    A(f's_cbranch_scc1 {Lend}')
    A(f's_cmp_ge_u32 s2, {NMOD}')
    A(f's_cbranch_scc1 {Lpf}')
    A('s_and_b32 s28, s2, 7')
    A('s_lshr_b32 s29, s2, 3')
    A('s_lshl_b32 s24, s29, 7')
    A('s_mul_i32 s30, s28, 72')
    def fin(ph):
        if ph=='pre':
            A('s_cmp_ge_u32 s29, 9'); A('s_cselect_b32 s31, 9, 0'); A('s_cselect_b32 s32, 576, 0')
            A('s_sub_u32 s31, s29, s31'); A('s_lshl_b32 s31, s31, 6')
            A('v_add_u32 v3, s31, v0')
            kappa_pos(A,3,4)
            A('s_mul_i32 s33, s28, 1152'); A('s_add_u32 s33, s33, s32')
            A('v_add_u32 v3, s33, v3'); A('v_lshlrev_b32 v3, 2, v3')
            A(f's_mov_b32 s33, {WS_PMOD}')
        else:
            A('buffer_store_dword v32, v3, s[16:19], s33 offen')
    mod_block(A,32,3,24,30,72,'s[8:11]','s[12:15]',Lend,fin, after_issue=(lambda: k1_prefetch(A,64)) if pf else None, extra=2 if pf else 0)
    A.endpgm()
    A(f'{Lpf}:')
    A('s_waitcnt lgkmcnt(0)')
    k1_prefetch(A,64)
    A('s_waitcnt vmcnt(0)')
    A(f'{Lend}:')
    A.endpgm()
    A.end(name, 128, 72)
```

```python
from asmlib import *
from gen1 import *

OOB=0x40000000
def row_allreduce16(A, regs):
    for sh in (8,4,2,1):
        if len(regs)<3: A('s_nop 1')
        for r in regs:
            A(f'v_add_f32_dpp v{r}, v{r}, v{r} row_ror:{sh} row_mask:0xf bank_mask:0xf')

def gen_k2(A, NP=0):
    name='k2_hid_kernel'
    ND=195
    PITCH=592; L_HOO=16*PITCH; L_NQ=32*PITCH
    A.launch(name, ND+NP, 256, 20480)
    A.begin(name)
    Lp=A.label('k2_pre'); Lend=A.label('k2_end')
    load_srds(A,[('x',8),('Cd',12),('ws',16),('Sd',20),('w1',24)])
    A(f's_cmp_ge_u32 s2, {ND+NP}')
    A(f's_cbranch_scc1 {Lend}')
    A(f's_cmp_ge_u32 s2, {ND}')
    A(f's_cbranch_scc1 {Lp}')
    sST,sEG,sW=28,29,30
    A(f's_mul_i32 s{sST}, s2, 21846')
    A(f's_lshr_b32 s{sST}, s{sST}, 16')
    A(f's_mul_i32 s{sEG}, s{sST}, 3')
    A(f's_sub_u32 s{sEG}, s2, s{sEG}')
    vRP,vL16,vS,vA1,vM1,vA3,vM3,vG1,vG2,vT0,vT1,vLane=1,2,3,4,5,6,7,8,9,10,11,12
    vMu=14
    T=32
    M=128
    def Tr(row,reg,i): return T+((row*2+reg)*3+i)*8
    G1=lambda i:M+8*i; G2=lambda i:M+24+8*i; SA1=lambda i:M+48+8*i; SA2=lambda i:M+72+8*i
    A(f'v_lshrrev_b32 v{vRP}, 4, v0')
    A(f'v_and_b32 v{vL16}, 15, v0')
    A(f'v_lshrrev_b32 v{vT0}, 6, v0')
    A(f's_lshl_b32 s31, s{sST}, 4')
    A(f'v_readfirstlane_b32 s{sW}, v{vT0}')
    A(f'v_add_u32 v{vS}, s31, v{vRP}')
    A(f'v_and_b32 v{vLane}, 63, v0')
    A(f'v_cmp_gt_u32 s[32:33], 12, v{vL16}')
    A(f'v_cmp_eq_u32 s[34:35], 12, v{vL16}')
    A(f'v_cmp_ge_u32 vcc, 1024, v{vS}')
    A('s_and_b64 s[36:37], vcc, s[32:33]')
    A(f'v_add_u32 v{vT0}, -1, v{vS}')
    A(f'v_cmp_gt_u32 vcc, 1023, v{vT0}')
    A('s_mov_b64 s[38:39], vcc')
    A('s_and_b64 s[40:41], s[38:39], s[32:33]')
    A(f'v_mul_u32_u24 v{vT0}, 48, v{vL16}')
    A(f'v_mul_u32_u24 v{vA1}, 1152, v{vS}')
    A(f'v_sub_u32 v{vT1}, 2048, v{vS}')
    A(f'v_mul_u32_u24 v{vA3}, 1152, v{vT1}')
    A(f'v_sub_u32 v{vM1}, v{vA1}, v{vT0}')
    A(f'v_add_u32 v{vM1}, {1136-32}, v{vM1}')
    A(f'v_sub_u32 v{vM3}, v{vA3}, v{vT0}')
    A(f'v_add_u32 v{vM3}, {1136-32}, v{vM3}')
    A(f'v_add_u32 v{vA1}, v{vA1}, v{vT0}')
    A(f'v_add_u32 v{vA3}, v{vA3}, v{vT0}')
    A(f'v_mov_b32 v{vT1}, 0x{OOB:x}')
    for r,m in ((vA1,36),(vM1,36),(vA3,40),(vM3,40)):
        A(f'v_cndmask_b32 v{r}, v{vT1}, v{r}, s[{m}:{m+1}]')
    A(f'v_lshlrev_b32 v{vG1}, 1, v{vT0}')
    A(f'v_add_u32 v{vG2}, {288*4}, v{vG1}')
    A(f'v_cndmask_b32 v{vG1}, v{vT1}, v{vG1}, s[32:33]')
    A(f'v_mov_b32 v{vT1}, {288*4}')
    A(f'v_cndmask_b32 v{vG2}, v{vG2}, v{vT1}, s[34:35]')
    A('s_waitcnt lgkmcnt(0)')
    for row,(va,vm) in enumerate(((vA1,vM1),(vA3,vM3))):
        for i in range(3):
            A(f'buffer_load_dwordx4 {v(Tr(row,0,i)+4,4)}, v{va}, s[8:11], 0 offen offset:{16*i}')
        for i in range(3):
            A(f'buffer_load_dwordx4 {v(Tr(row,1,i)+4,4)}, v{vm}, s[8:11], 0 offen offset:{32-16*i}')
    for i in range(3):
        for hh in range(2):
            A(f'buffer_load_dwordx4 {v(G1(i)+4*hh,4)}, v{vG1}, s[16:19], 0 offen offset:{WS_MOD+576*4+32*i+16*hh}')
            A(f'buffer_load_dwordx4 {v(G2(i)+4*hh,4)}, v{vG2}, s[16:19], 0 offen offset:{WS_MOD+576*4+32*i+16*hh}')
            A(f'buffer_load_dwordx4 {v(SA1(i)+4*hh,4)}, v{vG1}, s[16:19], 0 offen offset:{WS_MOD+32*i+16*hh}')
            A(f'buffer_load_dwordx4 {v(SA2(i)+4*hh,4)}, v{vG2}, s[16:19], 0 offen offset:{WS_MOD+32*i+16*hh}')
    A(f's_cmp_lt_u32 s{sW}, 2')
    A('s_cselect_b32 s44, s12, s20')
    A('s_cselect_b32 s45, s13, s21')
    A(f's_mov_b32 s46, {SZ["Cd"]}')
    A('s_mov_b32 s47, 0x00020000')
    A('s_cselect_b32 s48, -1, 0')
    A(f's_and_b32 s49, s{sW}, 1')
    A('s_mul_i32 s49, s49, 3')
    A(f's_mul_i32 s50, s{sEG}, 6')
    A('s_add_u32 s49, s49, s50')
    A('s_mul_i32 s50, s49, 18432')
    vTab=13
    A(f'v_and_b32 v{vT0}, 15, v{vLane}')
    A(f'v_mul_u32_u24 v{vTab}, 1152, v{vT0}')
    A(f'v_lshrrev_b32 v{vT0}, 4, v{vLane}')
    A(f'v_lshl_add_u32 v{vTab}, v{vT0}, 4, v{vTab}')
    for t in range(3):
        for kd in range(9):
            A(f'buffer_load_dwordx4 {a(36*t+4*kd,4)}, v{vTab}, s[44:47], s50 offen offset:{64*kd}')
        A('s_add_u32 s50, s50, 18432')
    Lx1=A.label('k2_x1')
    A(f's_lshl_b32 s51, s{sW}, 2')
    A(f's_add_u32 s51, s51, s{sEG}')
    A('s_cmp_lg_u32 s51, 2')
    A(f's_cbranch_scc1 {Lx1}')
    A(f's_mov_b32 s50, {18*18432}')
    A('s_waitcnt vmcnt(51)')
    for kd in range(9):
        A(f'buffer_load_dwordx4 {a(108+4*kd,4)}, v{vTab}, s[44:47], s50 offen offset:{64*kd}')
    A(f'{Lx1}:')
    A.stamp(1)
    A('s_waitcnt vmcnt(51)')
    A.stamp(2)
    for row in range(2):
        for i in range(3):
            R=Tr(row,0,i)
            for q in range(4):
                src=R+4+q
                A(f'v_lshlrev_b32 v{R+2*q}, 16, v{src}')
                A(f'v_and_b32 v{R+2*q+1}, 0xffff0000, v{src}')
            R=Tr(row,1,i)
            A(f'v_lshlrev_b32 v{R+0}, 16, v{R+5}'); A(f'v_and_b32 v{R+3}, 0xffff0000, v{R+5}')
            A(f'v_lshlrev_b32 v{R+2}, 16, v{R+6}'); A(f'v_and_b32 v{R+5}, 0xffff0000, v{R+6}')
            A(f'v_and_b32 v{R+1}, 0xffff0000, v{R+4}'); A(f'v_lshlrev_b32 v{R+6}, 16, v{R+4}')
            A(f'v_lshlrev_b32 v{R+4}, 16, v{R+7}'); A(f'v_and_b32 v{R+7}, 0xffff0000, v{R+7}')
    mu=[14,16]; rr=[18,20]; ac=[22,24]; mean=[26,27]; vWf=28
    for row in range(2):
        base=Tr(row,0,0)
        A(f'v_pk_add_f32 {v(ac[row],2)}, {v(base,2)}, {v(base+2,2)}')
    for p in range(2,24):
        for row in range(2):
            base=Tr(row,0,0)
            A(f'v_pk_add_f32 {v(ac[row],2)}, {v(ac[row],2)}, {v(base+2*p,2)}')
    for row in range(2): A(f'v_add_f32 v{mean[row]}, v{ac[row]}, v{ac[row]+1}')
    row_allreduce16(A,mean)
    A(f's_mov_b32 s52, 0x{0x3ae38e39:x}')
    for row in range(2):
        A(f'v_mul_f32 v{mean[row]}, s52, v{mean[row]}')
        bf16_round(A,f'v{mu[row]}',f'v{mean[row]}')
        A(f'v_sub_f32 v{mean[row]}, v{mean[row]}, v{mu[row]}')
        m=(36,40)[row]
        A(f'v_cndmask_b32 v{mu[row]}, 0, v{mu[row]}, s[{m}:{m+1}]')
    for p in range(24):
        for row in range(2):
            r=Tr(row,0,0)+2*p
            A(f'v_pk_add_f32 {v(r,2)}, {v(r,2)}, {v(mu[row],2)} op_sel_hi:[1,0] neg_lo:[0,1] neg_hi:[0,1]')
    for p in range(24):
        for row in range(2):
            r=Tr(row,0,0)+2*p
            if p==0: A(f'v_pk_mul_f32 {v(ac[row],2)}, {v(r,2)}, {v(r,2)}')
            else: A(f'v_pk_fma_f32 {v(ac[row],2)}, {v(r,2)}, {v(r,2)}, {v(ac[row],2)}')
    for row in range(2): A(f'v_add_f32 v{rr[row]}, v{ac[row]}, v{ac[row]+1}')
    row_allreduce16(A,rr)
    A(f's_mov_b32 s53, 0x3727c5ac')
    for row in range(2):
        r=rr[row]
        A(f'v_mul_f32 v{r}, s52, v{r}')
        A(f'v_fma_f32 v{r}, -v{mean[row]}, v{mean[row]}, v{r}')
        A(f'v_max_f32 v{r}, 0, v{r}')
        bf16_round(A,f'v{r}',f'v{r}')
        A(f'v_add_f32 v{r}, s53, v{r}')
        bf16_round(A,f'v{r}',f'v{r}')
        A(f'v_sqrt_f32 v{r}, v{r}')
        A('s_nop 0')
        bf16_round(A,f'v{r}',f'v{r}')
        A(f'v_rcp_f32 v{r}, v{r}')
    A(f'v_cndmask_b32 v{vWf}, 1.0, 2.0, s[38:39]')
    A('s_mov_b32 s54, -2.0'); A('s_mov_b32 s55, -2.0')
    for p in range(24):
        r1=Tr(0,0,0)+2*p; r3=Tr(1,0,0)+2*p
        A(f'v_pk_mul_f32 {v(r3,2)}, {v(r3,2)}, {v(rr[1],2)} op_sel_hi:[1,0]')
        A(f'v_pk_fma_f32 {v(r1,2)}, {v(r1,2)}, {v(rr[0],2)}, {v(r3,2)} op_sel_hi:[1,0,1]')
        A(f'v_pk_fma_f32 {v(r3,2)}, {v(r3,2)}, s[54:55], {v(r1,2)}')
    for row in range(2):
        m0=[Tr(row,1,i)+6 for i in range(3)]
        A('s_nop 1')
        A(f'v_mov_b32_dpp v{vT0}, v{m0[2]} row_shr:1 row_mask:0xf bank_mask:0xf bound_ctrl:0')
        A(f'v_mov_b32 v{m0[2]}, v{m0[1]}')
        A(f'v_mov_b32 v{m0[1]}, v{m0[0]}')
        A(f'v_mov_b32 v{m0[0]}, v{vT0}')
    A('s_waitcnt vmcnt(27)')
    A(f'v_cmp_eq_u32 vcc, 0, v{vL16}')
    A('s_nop 1')
    A(f'v_cndmask_b32 v{SA2(0)}, v{SA2(0)}, 0, vcc')
    for i in range(3):
        for p in range(4):
            g1=G1(i)+2*p; g2=G2(i)+2*p; s1=SA1(i)+2*p; s2=SA2(i)+2*p
            ned=Tr(0,0,i)+2*p; neD=Tr(0,1,i)+2*(3-p); nod=Tr(1,0,i)+2*p; noD=Tr(1,1,i)+2*(3-p)
            A(f'v_pk_add_f32 {v(s1,2)}, {v(s1,2)}, {v(s2,2)}')
            A(f'v_pk_mul_f32 {v(s1,2)}, {v(s1,2)}, {v(vWf,2)} op_sel_hi:[1,0]')
            A(f'v_pk_fma_f32 {v(s1,2)}, {v(neD,2)}, {v(g2,2)}, {v(s1,2)}')
            A(f'v_pk_fma_f32 {v(s1,2)}, {v(ned,2)}, {v(g1,2)}, {v(s1,2)}')
            A(f'v_pk_mul_f32 {v(s2,2)}, {v(noD,2)}, {v(g2,2)}')
            A(f'v_pk_fma_f32 {v(s2,2)}, {v(nod,2)}, {v(g1,2)}, {v(s2,2)} neg_lo:[0,0,1] neg_hi:[0,0,1]')
        for p in range(4):
            A(f'v_cvt_pk_bf16_f32 v{G1(i)+p}, v{SA1(i)+2*p}, v{SA1(i)+2*p+1}')
            A(f'v_cvt_pk_bf16_f32 v{G1(i)+4+p}, v{SA2(i)+2*p}, v{SA2(i)+2*p+1}')
    A.stamp(3)
    A(f'v_mul_u32_u24 v{vT0}, {PITCH}, v{vRP}')
    A(f'v_mul_u32_u24 v{vT1}, 48, v{vL16}')
    A(f'v_add_u32 v{vT0}, v{vT0}, v{vT1}')
    A(f'v_lshlrev_b32 v{vT1}, 2, v{vRP}')
    A('s_mov_b64 exec, s[32:33]')
    for i in range(3):
        A(f'ds_write_b128 v{vT0}, {v(G1(i),4)} offset:{16*i}')
        A(f'ds_write_b128 v{vT0}, {v(G1(i)+4,4)} offset:{L_HOO+16*i}')
    A('s_mov_b64 exec, s[34:35]')
    A(f'ds_write_b32 v{vT1}, v{SA1(0)} offset:{L_NQ}')
    A('s_mov_b64 exec, -1')
    A(f'v_and_b32 v{vT0}, 15, v{vLane}')
    A(f'v_mul_u32_u24 v{vA1}, {PITCH}, v{vT0}')
    A(f'v_lshrrev_b32 v{vT1}, 4, v{vLane}')
    A(f'v_lshl_add_u32 v{vA1}, v{vT1}, 4, v{vA1}')
    A(f's_andn2_b32 s52, {L_HOO}, s48')
    A(f'v_add_u32 v{vA1}, s52, v{vA1}')
    A(f'v_lshlrev_b32 v{vM1}, 4, v{vT1}')
    A('s_waitcnt lgkmcnt(0)')
    A('s_barrier')
    A.stamp(4)
    AF=T; CI=T+40; ACC=T+48
    A(f'ds_read_b128 {v(CI,4)}, v{vM1} offset:{L_NQ}')
    for kd in range(9):
        A(f'ds_read_b128 {v(AF+4*kd,4)}, v{vA1} offset:{64*kd}')
    A(f'v_lshlrev_b32 v{vM3}, 31, v{vLane}')
    A(f'v_lshrrev_b32 v{vA3}, 1, v{vT1}')
    A(f'v_lshlrev_b32 v{vA3}, 8, v{vA3}')
    A(f'v_lshl_add_u32 v{vA3}, v{vT0}, 4, v{vA3}')
    A(f'v_and_b32 v{vG1}, 1, v{vT1}')
    A(f'v_lshl_add_u32 v{vA3}, v{vG1}, 3, v{vA3}')
    A(f's_lshr_b32 s52, s{sST}, 1')
    A('s_lshl_b32 s52, s52, 10')
    A(f's_and_b32 s53, s{sST}, 1')
    A('s_lshl_b32 s53, s53, 9')
    A('s_add_u32 s52, s52, s53')
    A(f's_cmp_lt_u32 s{sW}, 2')
    A(f's_cselect_b32 s53, 0, {WS_BO-WS_AE}')
    A(f's_add_u32 s53, s53, {WS_AE}')
    A('s_add_u32 s52, s52, s53')
    A('s_lshl_b32 s54, s49, 15')
    A('s_add_u32 s54, s54, s52')
    A('s_waitcnt lgkmcnt(9)')
    for r in range(4):
        A(f'v_xor_b32 v{CI+r}, v{CI+r}, v{vM3}')
        A(f'v_and_b32 v{CI+r}, s48, v{CI+r}')
    A('s_waitcnt vmcnt(0) lgkmcnt(0)')
    A.stamp(5)
    A('s_nop 1')
    for kd in range(9):
        for t in range(3):
            c = v(CI,4) if kd==0 else v(ACC+4*t,4)
            A(f'v_mfma_f32_16x16x32_bf16 {v(ACC+4*t,4)}, {v(AF+4*kd,4)}, {a(36*t+4*kd,4)}, {c}')
    Lx2=A.label('k2_x2'); Lx3=A.label('k2_x3'); Lny=A.label('k2_ny')
    A('s_cmp_lg_u32 s51, 2')
    A(f's_cbranch_scc1 {Lx2}')
    for kd in range(9):
        c = v(CI,4) if kd==0 else v(ACC+12,4)
        A(f'v_mfma_f32_16x16x32_bf16 {v(ACC+12,4)}, {v(AF+4*kd,4)}, {a(108+4*kd,4)}, {c}')
    A(f'{Lx2}:')
    A('s_nop 7')
    A.stamp(6)
    A(f's_cmp_eq_u32 s{sST}, 64')
    A(f's_cbranch_scc1 {Lny}')
    for t in range(3):
        A(f'v_cvt_pk_bf16_f32 v{ACC+4*t}, v{ACC+4*t}, v{ACC+4*t+1}')
        A(f'v_cvt_pk_bf16_f32 v{ACC+4*t+1}, v{ACC+4*t+2}, v{ACC+4*t+3}')
        A(f'buffer_store_dwordx2 {v(ACC+4*t,2)}, v{vA3}, s[16:19], s54 offen')
        A('s_add_u32 s54, s54, 32768')
    A('s_cmp_lg_u32 s51, 2')
    A(f's_cbranch_scc1 {Lend}')
    A(f's_add_u32 s54, s52, {18*32768}')
    A(f'v_cvt_pk_bf16_f32 v{ACC+12}, v{ACC+12}, v{ACC+13}')
    A(f'v_cvt_pk_bf16_f32 v{ACC+13}, v{ACC+14}, v{ACC+15}')
    A(f'buffer_store_dwordx2 {v(ACC+12,2)}, v{vA3}, s[16:19], s54 offen')
    A.endpgm()
    A(f'{Lny}:')
    A(f's_cmp_ge_u32 s{sW}, 2')
    A(f's_cbranch_scc1 {Lend}')
    A(f'v_lshlrev_b32 v{vA3}, 2, v{vLane}')
    A('s_lshl_b32 s54, s49, 6')
    A('s_mov_b64 exec, 0xffff')
    A(f's_add_u32 s54, s54, {WS_AE1024}')
    for t in range(3):
        A(f'buffer_store_dword v{ACC+4*t}, v{vA3}, s[16:19], s54 offen offset:{64*t}')
    A('s_cmp_lg_u32 s51, 2')
    A(f's_cbranch_scc1 {Lend}')
    A(f's_mov_b32 s54, {WS_AE1024+18*64}')
    A(f'buffer_store_dword v{ACC+12}, v{vA3}, s[16:19], s54 offen')
    A.endpgm()
    A(f'{Lp}:')
    vFq,vCg,vC,vB,vSt,vMo,vD,vT0,vT1,vFo=1,2,3,4,5,6,7,8,9,10
    vO=12
    vCS=20; vBV=24
    W=32
    vDst=192
    U=200
    A(f's_sub_u32 s28, s2, {ND}')
    A(f'v_and_b32 v{vFq}, 15, v0')
    A(f'v_lshrrev_b32 v{vCg}, 4, v0')
    A('s_lshl_b32 s29, s28, 7')
    A(f'v_lshlrev_b32 v{vFo}, 3, v{vFq}')
    A(f'v_add_u32 v{vFo}, s29, v{vFo}')
    A(f'v_lshrrev_b32 v{vT0}, 3, v{vFq}')
    A(f'v_mul_u32_u24 v{vD}, {36*1024}, v{vT0}')
    A(f'v_bfe_u32 v{vT0}, v{vFq}, 2, 1'); A(f'v_lshl_add_u32 v{vD}, v{vT0}, 8, v{vD}')
    A(f'v_and_b32 v{vT0}, 1, v{vFq}');    A(f'v_lshl_add_u32 v{vD}, v{vT0}, 7, v{vD}')
    A(f'v_bfe_u32 v{vT0}, v{vFq}, 1, 1'); A(f'v_lshl_add_u32 v{vD}, v{vT0}, 6, v{vD}')
    A(f's_mul_i32 s30, s28, {72*1024}')
    A(f's_add_u32 s30, s30, {WS_W1P}')
    A('s_waitcnt lgkmcnt(0)')
    for it in range(5):
        R=W+32*it
        A(f'v_add_u32 v{vC}, {16*it}, v{vCg}')
        A(f'v_lshlrev_b32 v{vT0}, 3, v{vC}')
        A(f'v_sub_u32 v{vT1}, 864, v{vT0}')
        A(f'v_cmp_gt_u32 vcc, 36, v{vC}')
        A(f'v_mov_b32 v{vSt}, -9216')
        A(f'v_mov_b32 v{vB}, 9216')
        A(f'v_cndmask_b32 v{vSt}, v{vSt}, v{vB}, vcc')
        A(f'v_cndmask_b32 v{vB}, v{vT1}, v{vT0}, vcc')
        A(f'v_mul_u32_u24 v{vB}, 9216, v{vB}')
        A(f'v_add_u32 v{vB}, v{vB}, v{vFo}')
        A(f'v_lshlrev_b32 v{vMo}, 5, v{vC}')
        A(f'v_lshrrev_b32 v{vT0}, 1, v{vC}')
        A(f'v_lshl_add_u32 v{vDst+it}, v{vT0}, 10, v{vD}')
        A(f'v_and_b32 v{vT0}, 1, v{vC}')
        A(f'v_lshl_add_u32 v{vDst+it}, v{vT0}, 9, v{vDst+it}')
        if it==4:
            A(f'v_cmp_gt_u32 vcc, 72, v{vC}')
            A(f'v_mov_b32 v{vT0}, 0x{OOB:x}')
            A('s_nop 0')
            A(f'v_cndmask_b32 v{vB}, v{vT0}, v{vB}, vcc')
            A(f'v_cndmask_b32 v{vDst+it}, v{vT0}, v{vDst+it}, vcc')
        for j in range(1,8):
            A(f'v_add_u32 v{vO+j}, v{vSt}, v{vB if j==1 else vO+j-1}')
        if it==2:
            A(f'v_cmp_eq_u32 vcc, 36, v{vC}')
            A(f'v_add_u32 v{vT0}, {288*9216}, v{vFo}')
            A('s_nop 0')
            A(f'v_cndmask_b32 v{vB}, v{vB}, v{vT0}, vcc')
        for j in range(8):
            A(f'buffer_load_dwordx2 {v(R+2*j,2)}, v{vB if j==0 else vO+j}, s[24:27], 0 offen')
        A(f's_mov_b32 s31, {WS_MOD+4*576*4}')
        A(f's_mov_b32 s32, {WS_MOD+3*576*4}')
        for hh in range(2):
            A(f'buffer_load_dwordx4 {v(R+16+4*hh,4)}, v{vMo}, s[16:19], s31 offen offset:{16*hh}')
            A(f'buffer_load_dwordx4 {v(R+24+4*hh,4)}, v{vMo}, s[16:19], s32 offen offset:{16*hh}')
    for i in range(8): A(f'v_mov_b32 v{vCS+i}, 0')
    A('s_mov_b32 s33, 0x3f803f80')
    A.stamp(1)
    for it in range(5):
        R=W+32*it
        A(f's_waitcnt vmcnt({12*(4-it)+4*it})')
        if it in (0,4): A.stamp(2 if it==0 else 3)
        for jp in range(4):
            for jj in range(2):
                j=2*jp+jj
                for q in range(2):
                    A(f'v_lshlrev_b32 v{U+4*jj+2*q}, 16, v{R+2*j+q}')
                    A(f'v_and_b32 v{U+4*jj+2*q+1}, 0xffff0000, v{R+2*j+q}')
                for r in range(4):
                    A(f'v_fmac_f32 v{vBV+r}, v{U+4*jj+r}, v{R+24+j}')
                for r in range(4):
                    A(f'v_mul_f32 v{U+4*jj+r}, v{U+4*jj+r}, v{R+16+j}')
            for r in range(4):
                A(f'v_cvt_pk_bf16_f32 v{U+16+4*r+jp}, v{U+r}, v{U+4+r}')
            for r in range(4):
                A(f'v_dot2_f32_bf16 v{vCS+r}, v{U+16+4*r+jp}, s33, v{vCS+r}')
        for r in range(4):
            A(f'buffer_store_dwordx4 {v(U+16+4*r,4)}, v{vDst+it}, s[16:19], s30 offen offset:{16*r}')
        A('s_nop 1')
    A.stamp(4)
    A(f'v_lshlrev_b32 v{vT0}, 8, v{vCg}')
    A(f'v_lshl_add_u32 v{vT0}, v{vFq}, 4, v{vT0}')
    A('s_nop 2')
    A(f'ds_write_b128 v{vT0}, {v(vCS,4)}')
    A(f'ds_write_b128 v{vT0}, {v(vBV,4)} offset:4096')
    A('s_waitcnt lgkmcnt(0)')
    A('s_barrier')
    A('v_cmp_gt_u32 vcc, 128, v0')
    A('s_and_saveexec_b64 s[34:35], vcc')
    A(f's_cbranch_execz {Lend}')
    A(f'v_and_b32 v{vT0}, 63, v0')
    A(f'v_lshrrev_b32 v{vT1}, 6, v0')
    A(f'v_lshlrev_b32 v{vT0}, 2, v{vT0}')
    A(f'v_lshl_add_u32 v{vB}, v{vT1}, 12, v{vT0}')
    for r in range(16):
        A(f'ds_read_b32 v{W+r}, v{vB} offset:{256*r}')
    assert WS_BV-WS_CS==0x8000
    A(f'v_lshl_add_u32 v{vB}, v{vT1}, 15, v{vT0}')
    A('s_lshl_b32 s29, s28, 8')
    A(f's_add_u32 s29, s29, {WS_CS}')
    A('s_waitcnt lgkmcnt(0)')
    for st in (8,4,2,1):
        for r in range(st):
            A(f'v_add_f32 v{W+r}, v{W+r}, v{W+r+st}')
    A(f'buffer_store_dword v{W}, v{vB}, s[16:19], s29 offen')
    A(f'{Lend}:')
    A.endpgm()
    A.end(name, 232, 64, agpr=144)
```

```python
from asmlib import *
from gen1 import *
from gen2 import row_allreduce16
from gen1b import *
OOB=0x40000000

def gen_k2b(A, name='k2_hid_kernel', prefetch=True, NB1=14):
    ND=195; NT=256
    PITCH=592; L_HOO=16*PITCH; L_NQ=32*PITCH; L_MOD=19456; L_TB=L_MOD+5120
    A.launch(name, NT if prefetch else ND, 512, L_TB+13*9216)
    A.begin(name)
    Lp=A.label('k2_pf'); Lend=A.label('k2_end'); Lm=A.label('k2_mf')
    load_srds(A,[('x',8),('Cd',12),('ws',16),('Sd',20),('w1',24),('wmod',56),('c',60)])
    A(f's_cmp_ge_u32 s2, {NT if prefetch else ND}')
    A(f's_cbranch_scc1 {Lend}')
    if prefetch:
        A(f's_cmp_ge_u32 s2, {ND}')
        A(f's_cbranch_scc1 {Lp}')
    sST,sEG,sW=28,29,30
    A('s_lshr_b32 s31, s2, 3')
    A('s_mul_i32 s32, s31, 21846'); A('s_lshr_b32 s32, s32, 16')
    A('s_mul_i32 s33, s32, 3'); A(f's_sub_u32 s{sEG}, s31, s33')
    A('s_lshl_b32 s32, s32, 3'); A('s_and_b32 s33, s2, 7'); A(f's_add_u32 s{sST}, s32, s33')
    A('s_cmp_ge_u32 s2, 192')
    A(f's_cselect_b32 s{sST}, 64, s{sST}')
    A(f's_cselect_b32 s{sEG}, s33, s{sEG}')
    vRP,vL16,vS,vA1,vM1,vA3,vM3,vG1,vG2,vT0,vT1,vLane=1,2,3,4,5,6,7,8,9,10,11,12
    A(f'v_lshrrev_b32 v{vT0}, 6, v0')
    A(f'v_and_b32 v{vLane}, 63, v0')
    A(f'v_readfirstlane_b32 s{sW}, v{vT0}')
    A('s_nop 3')
    A(f's_cmp_ge_u32 s{sW}, 4')
    A(f's_cbranch_scc1 {Lm}')
    T=32; M=128
    def Tr(row,reg,i): return T+((row*2+reg)*3+i)*8
    G1=lambda i:M+8*i; G2=lambda i:M+24+8*i; SA1=lambda i:M+48+8*i; SA2=lambda i:M+72+8*i
    A(f'v_lshrrev_b32 v{vRP}, 4, v0')
    A(f'v_and_b32 v{vL16}, 15, v0')
    A(f's_lshl_b32 s31, s{sST}, 4')
    A(f'v_add_u32 v{vS}, s31, v{vRP}')
    A(f'v_cmp_gt_u32 s[32:33], 12, v{vL16}')
    A(f'v_cmp_eq_u32 s[34:35], 12, v{vL16}')
    A(f'v_cmp_ge_u32 vcc, 1024, v{vS}')
    A('s_and_b64 s[36:37], vcc, s[32:33]')
    A(f'v_add_u32 v{vT0}, -1, v{vS}')
    A(f'v_cmp_gt_u32 vcc, 1023, v{vT0}')
    A('s_mov_b64 s[38:39], vcc')
    A('s_and_b64 s[40:41], s[38:39], s[32:33]')
    A(f'v_lshlrev_b32 v{vT0}, 4, v{vL16}')
    A(f'v_mul_u32_u24 v{vA1}, 1152, v{vS}')
    A(f'v_sub_u32 v{vT1}, 2048, v{vS}')
    A(f'v_mul_u32_u24 v{vA3}, 1152, v{vT1}')
    A(f'v_sub_u32 v{vM1}, v{vA1}, v{vT0}')
    A(f'v_add_u32 v{vM1}, {1136-384}, v{vM1}')
    A(f'v_sub_u32 v{vM3}, v{vA3}, v{vT0}')
    A(f'v_add_u32 v{vM3}, {1136-384}, v{vM3}')
    A(f'v_add_u32 v{vA1}, v{vA1}, v{vT0}')
    A(f'v_add_u32 v{vA3}, v{vA3}, v{vT0}')
    A(f'v_mov_b32 v{vT1}, 0x{OOB:x}')
    for r,m in ((vA1,36),(vM1,36),(vA3,40),(vM3,40)):
        A(f'v_cndmask_b32 v{r}, v{vT1}, v{r}, s[{m}:{m+1}]')
    A('s_waitcnt lgkmcnt(0)')
    for row,(va,vm) in enumerate(((vA1,vM1),(vA3,vM3))):
        for i in range(3):
            A(f'buffer_load_dwordx4 {v(Tr(row,0,i)+4,4)}, v{va}, s[8:11], 0 offen offset:{192*i}')
        for i in range(3):
            A(f'buffer_load_dwordx4 {v(Tr(row,1,i)+4,4)}, v{vm}, s[8:11], 0 offen offset:{384-192*i}')
    A('s_barrier')
    A(f'v_min_u32 v{vG1}, 11, v{vL16}')
    A(f'v_lshlrev_b32 v{vG1}, 5, v{vG1}')
    A(f'v_add_u32 v{vG1}, {L_MOD}, v{vG1}')
    A(f'v_add_u32 v{vG2}, {288*4}, v{vG1}')
    A(f'v_mov_b32 v{vT1}, {L_MOD+288*4-768}')
    A(f'v_cndmask_b32 v{vG2}, v{vG2}, v{vT1}, s[34:35]')
    A.stamp(1)
    mu=[14,16]; rr=[18,20]; ac=[22,24]; mean=[26,27]; vWf=28
    for row in range(2):
        A(f's_waitcnt vmcnt({6*(1-row)})')
        if row==0: A.stamp(2)
        for i in range(3):
            R=Tr(row,0,i)
            for q in range(4):
                src=R+4+q
                A(f'v_lshlrev_b32 v{R+2*q}, 16, v{src}')
                A(f'v_and_b32 v{R+2*q+1}, 0xffff0000, v{src}')
            R=Tr(row,1,i)
            A(f'v_lshlrev_b32 v{R+0}, 16, v{R+5}'); A(f'v_and_b32 v{R+3}, 0xffff0000, v{R+5}')
            A(f'v_lshlrev_b32 v{R+2}, 16, v{R+6}'); A(f'v_and_b32 v{R+5}, 0xffff0000, v{R+6}')
            A(f'v_and_b32 v{R+1}, 0xffff0000, v{R+4}'); A(f'v_lshlrev_b32 v{R+6}, 16, v{R+4}')
            A(f'v_lshlrev_b32 v{R+4}, 16, v{R+7}'); A(f'v_and_b32 v{R+7}, 0xffff0000, v{R+7}')
    for row in range(2):
        base=Tr(row,0,0)
        A(f'v_pk_add_f32 {v(ac[row],2)}, {v(base,2)}, {v(base+2,2)}')
    for p in range(2,24):
        for row in range(2):
            base=Tr(row,0,0)
            A(f'v_pk_add_f32 {v(ac[row],2)}, {v(ac[row],2)}, {v(base+2*p,2)}')
    for row in range(2): A(f'v_add_f32 v{mean[row]}, v{ac[row]}, v{ac[row]+1}')
    row_allreduce16(A,mean)
    A(f's_mov_b32 s52, 0x3ae38e39')
    for row in range(2):
        A(f'v_mul_f32 v{mean[row]}, s52, v{mean[row]}')
        bf16_round(A,f'v{mu[row]}',f'v{mean[row]}')
        A(f'v_sub_f32 v{mean[row]}, v{mean[row]}, v{mu[row]}')
        m=(36,40)[row]
        A(f'v_cndmask_b32 v{mu[row]}, 0, v{mu[row]}, s[{m}:{m+1}]')
    for p in range(24):
        for row in range(2):
            r=Tr(row,0,0)+2*p
            A(f'v_pk_add_f32 {v(r,2)}, {v(r,2)}, {v(mu[row],2)} op_sel_hi:[1,0] neg_lo:[0,1] neg_hi:[0,1]')
    for p in range(24):
        for row in range(2):
            r=Tr(row,0,0)+2*p
            if p==0: A(f'v_pk_mul_f32 {v(ac[row],2)}, {v(r,2)}, {v(r,2)}')
            else: A(f'v_pk_fma_f32 {v(ac[row],2)}, {v(r,2)}, {v(r,2)}, {v(ac[row],2)}')
    for row in range(2): A(f'v_add_f32 v{rr[row]}, v{ac[row]}, v{ac[row]+1}')
    def mod_reads(i):
        for hh in range(2):
            A(f'ds_read_b128 {v(G1(i)+4*hh,4)}, v{vG1} offset:{2304+384*i+16*hh}')
            A(f'ds_read_b128 {v(G2(i)+4*hh,4)}, v{vG2} offset:{2304+384*i+16*hh}')
            A(f'ds_read_b128 {v(SA1(i)+4*hh,4)}, v{vG1} offset:{384*i+16*hh}')
            A(f'ds_read_b128 {v(SA2(i)+4*hh,4)}, v{vG2} offset:{384*i+16*hh}')
    row_allreduce16(A,rr)
    A(f's_mov_b32 s53, 0x3727c5ac')
    for row in range(2):
        r=rr[row]
        A(f'v_mul_f32 v{r}, s52, v{r}')
        A(f'v_fma_f32 v{r}, -v{mean[row]}, v{mean[row]}, v{r}')
        A(f'v_max_f32 v{r}, 0, v{r}')
        bf16_round(A,f'v{r}',f'v{r}')
        A(f'v_add_f32 v{r}, s53, v{r}')
        bf16_round(A,f'v{r}',f'v{r}')
        A(f'v_sqrt_f32 v{r}, v{r}')
        A('s_nop 0')
        bf16_round(A,f'v{r}',f'v{r}')
        A(f'v_rcp_f32 v{r}, v{r}')
    A(f'v_cndmask_b32 v{vWf}, 1.0, 2.0, s[38:39]')
    A('s_mov_b32 s54, -2.0'); A('s_mov_b32 s55, -2.0')
    for p in range(24):
        r1=Tr(0,0,0)+2*p; r3=Tr(1,0,0)+2*p
        A(f'v_pk_mul_f32 {v(r3,2)}, {v(r3,2)}, {v(rr[1],2)} op_sel_hi:[1,0]')
        A(f'v_pk_fma_f32 {v(r1,2)}, {v(r1,2)}, {v(rr[0],2)}, {v(r3,2)} op_sel_hi:[1,0,1]')
        A(f'v_pk_fma_f32 {v(r3,2)}, {v(r3,2)}, s[54:55], {v(r1,2)}')
    A('s_barrier')
    mod_reads(0)
    for row in range(2):
        m0=[Tr(row,1,i)+6 for i in range(3)]
        tm=[vA1,vM1,vA3]
        A('s_nop 1')
        A(f'v_mov_b32 v{tm[0]}, 0')
        for i in (1,2): A(f'v_mov_b32_dpp v{tm[i]}, v{m0[i-1]} row_shl:11 row_mask:0xf bank_mask:0xf bound_ctrl:0')
        A('s_nop 1')
        for i in range(3): A(f'v_mov_b32_dpp v{tm[i]}, v{m0[i]} row_shr:1 row_mask:0xf bank_mask:0xf')
        for i in range(3): A(f'v_mov_b32 v{m0[i]}, v{tm[i]}')
    A(f'v_cmp_eq_u32 vcc, 0, v{vL16}')
    A(f'v_mul_u32_u24 v{vT0}, {PITCH}, v{vRP}')
    A(f'v_lshl_add_u32 v{vT0}, v{vL16}, 4, v{vT0}')
    A(f'v_lshlrev_b32 v{vT1}, 2, v{vRP}')
    A('s_waitcnt lgkmcnt(0)')
    mod_reads(1)
    A(f'v_cndmask_b32 v{SA2(0)}, v{SA2(0)}, 0, vcc')
    for i in range(3):
        if i==1:
            A('s_waitcnt lgkmcnt(2)')
            mod_reads(2)
        if i==2:
            A('s_waitcnt lgkmcnt(2)')
            A(f'v_cndmask_b32 v{SA1(2)}, v{SA1(2)}, 0, s[34:35]')
        for p in range(4):
            g1=G1(i)+2*p; g2=G2(i)+2*p; s1=SA1(i)+2*p; s2=SA2(i)+2*p
            ned=Tr(0,0,i)+2*p; neD=Tr(0,1,i)+2*(3-p); nod=Tr(1,0,i)+2*p; noD=Tr(1,1,i)+2*(3-p)
            A(f'v_pk_add_f32 {v(s1,2)}, {v(s1,2)}, {v(s2,2)}')
            A(f'v_pk_mul_f32 {v(s1,2)}, {v(s1,2)}, {v(vWf,2)} op_sel_hi:[1,0]')
            A(f'v_pk_fma_f32 {v(s1,2)}, {v(neD,2)}, {v(g2,2)}, {v(s1,2)}')
            A(f'v_pk_fma_f32 {v(s1,2)}, {v(ned,2)}, {v(g1,2)}, {v(s1,2)}')
            A(f'v_pk_mul_f32 {v(s2,2)}, {v(noD,2)}, {v(g2,2)}')
            A(f'v_pk_fma_f32 {v(s2,2)}, {v(nod,2)}, {v(g1,2)}, {v(s2,2)} neg_lo:[0,0,1] neg_hi:[0,0,1]')
        for p in range(4):
            A(f'v_cvt_pk_bf16_f32 v{G1(i)+p}, v{SA1(i)+2*p}, v{SA1(i)+2*p+1}')
            A(f'v_cvt_pk_bf16_f32 v{G1(i)+4+p}, v{SA2(i)+2*p}, v{SA2(i)+2*p+1}')
        A('s_mov_b64 exec, s[32:33]')
        A(f'ds_write_b128 v{vT0}, {v(G1(i),4)} offset:{192*i}')
        A(f'ds_write_b128 v{vT0}, {v(G1(i)+4,4)} offset:{L_HOO+192*i}')
        if i==2:
            A('s_mov_b64 exec, s[34:35]')
            A(f'ds_write_b32 v{vT1}, v{SA1(2)} offset:{L_NQ}')
        A('s_mov_b64 exec, -1')
    A.stamp(3)
    A('s_waitcnt lgkmcnt(0)')
    A('s_barrier')
    A.endpgm()
    A(f'{Lm}:')
    TB=64
    A(f's_sub_u32 s{sW}, s{sW}, 4')
    vTab=13; VO=16
    A(f's_and_b32 s49, s{sW}, 1')
    A('s_mul_i32 s49, s49, 3')
    A(f's_mul_i32 s50, s{sEG}, 6')
    A('s_add_u32 s49, s49, s50')
    A('s_mul_i32 s50, s49, 18432')
    A(f's_mul_i32 s31, s{sW}, {3*9216}')
    A(f's_add_u32 s31, s31, {L_TB}')
    A('s_movk_i32 s32, 1821')
    A('s_waitcnt lgkmcnt(0)')
    A(f's_cmp_lt_u32 s{sW}, 2')
    A('s_cselect_b32 s44, s12, s20')
    A('s_cselect_b32 s45, s13, s21')
    A(f's_mov_b32 s46, {SZ["Cd"]}')
    A('s_mov_b32 s47, 0x00020000')
    A('s_cselect_b32 s48, -1, 0')
    PM=TB; vH,vH2=26,27
    A(f'v_and_b32 v{vH}, 255, v0')
    A(f'v_lshlrev_b32 v{vH}, 4, v{vH}')
    A(f'v_add_u32 v{vH2}, 4096, v{vH}')
    A(f'v_min_u32 v{vH2}, {4608-16}, v{vH2}')
    A(f's_mov_b32 s33, {WS_PMOD}')
    Lq=A.label('k2_q')
    A('s_barrier')
    A('s_setprio 3')
    A(f's_cmp_lg_u32 s{sW}, 0')
    A(f's_cbranch_scc1 {Lq}')
    for kq in range(8):
        A(f'buffer_load_dwordx4 {v(PM+8*kq+4,4)}, v{vH2}, s[16:19], s33 offen')
        A('s_add_u32 s33, s33, 4608')
    A(f's_mov_b32 s33, {WS_PMOD}')
    A(f'{Lq}:')
    for kq in range(8):
        A(f'buffer_load_dwordx4 {v(PM+8*kq,4)}, v{vH}, s[16:19], s33 offen')
        A('s_add_u32 s33, s33, 4608')
    def tpiece(t,j,sM,sS):
        A(f's_add_u32 m0, s{sM}, {t*9216+1024*j}'); A('s_nop 0')
        A(f'buffer_load_dwordx4 v{VO+j}, s[44:47], s{sS} offen lds')
    for j in range(9):
        A(f'v_add_u32 v{vT0}, {64*j}, v{vLane}')
        A(f'v_mul_u32_u24 v{vT1}, s32, v{vT0}')
        A(f'v_lshrrev_b32 v{vT1}, 16, v{vT1}')
        A(f'v_mul_u32_u24 v{VO+j}, {1152-576}, v{vT1}')
        A(f'v_lshl_add_u32 v{VO+j}, v{vT0}, 4, v{VO+j}')
        tpiece(0,j,31,50)
    A('s_add_u32 s50, s50, 18432')
    for j in range(NB1-9): tpiece(1,j,31,50)
    A(f's_waitcnt vmcnt({NB1})')
    A.stamp(5)
    for st in (4,2,1):
        for kq in range(st):
            for p in range(4):
                A(f'v_pk_add_f32 {v(PM+8*kq+2*p,2)}, {v(PM+8*kq+2*p,2)}, {v(PM+8*(kq+st)+2*p,2)}')
    A(f'v_cmp_le_u32 vcc, 2304, v{vH}')
    for i in range(8): bf16_round(A,f'v{PM+i}',f'v{PM+i}')
    A(f'v_cndmask_b32 v{PM+8}, 0, 1.0, vcc')
    for i in range(8):
        A(f'v_add_f32 v{PM+i}, {"v%d"%(PM+8) if i<4 else "1.0"}, v{PM+i}')
        bf16_round(A,f'v{PM+i}',f'v{PM+i}')
    A(f'ds_write_b128 v{vH}, {v(PM,4)} offset:{L_MOD}')
    Lq2=A.label('k2_q2')
    A(f's_cmp_lg_u32 s{sW}, 0')
    A(f's_cbranch_scc1 {Lq2}')
    A(f'ds_write_b128 v{vH2}, {v(PM+4,4)} offset:{L_MOD}')
    A(f'{Lq2}:')
    A('s_waitcnt lgkmcnt(0)')
    A.stamp(1)
    A('s_barrier')
    for j in range(NB1-9,9): tpiece(1,j,31,50)
    A('s_add_u32 s50, s50, 18432')
    for j in range(9): tpiece(2,j,31,50)
    Lx1=A.label('k2_x1')
    A(f's_lshl_b32 s51, s{sW}, 2')
    A(f's_add_u32 s51, s51, s{sEG}')
    A(f'v_and_b32 v{vT0}, 15, v{vLane}')
    A(f'v_lshrrev_b32 v{vT1}, 4, v{vLane}')
    A(f'v_mul_u32_u24 v{vTab}, 576, v{vT0}')
    A(f'v_lshl_add_u32 v{vTab}, v{vT1}, 4, v{vTab}')
    A(f'v_add_u32 v{vM3}, {L_TB+12*9216}, v{vTab}')
    A(f'v_add_u32 v{vTab}, s31, v{vTab}')
    A('s_cmp_lg_u32 s51, 2')
    A(f's_cbranch_scc1 {Lx1}')
    A(f's_mov_b32 s50, {18*18432}')
    A(f's_mov_b32 s33, {L_TB+12*9216}')
    for j in range(9): tpiece(0,j,33,50)
    A('s_waitcnt vmcnt(0)')
    for kd in range(9):
        A(f'ds_read_b128 {v(TB+108+4*kd,4)}, v{vM3} offset:{64*kd}')
    A('s_waitcnt lgkmcnt(0)')
    A(f'{Lx1}:')
    for t in range(3):
        A(f's_waitcnt vmcnt({18-9*t}) lgkmcnt(4)')
        for kd in range(9):
            A(f'ds_read_b128 {v(TB+36*t+4*kd,4)}, v{vTab} offset:{9216*t+64*kd}')
    A(f'v_mul_u32_u24 v{vA1}, {PITCH}, v{vT0}')
    A(f'v_lshl_add_u32 v{vA1}, v{vT1}, 4, v{vA1}')
    A(f's_andn2_b32 s52, {L_HOO}, s48')
    A(f'v_add_u32 v{vA1}, s52, v{vA1}')
    A(f'v_lshlrev_b32 v{vM1}, 4, v{vT1}')
    A(f'v_lshlrev_b32 v{vM3}, 31, v{vLane}')
    A(f'v_lshrrev_b32 v{vA3}, 1, v{vT1}')
    A(f'v_lshlrev_b32 v{vA3}, 8, v{vA3}')
    A(f'v_lshl_add_u32 v{vA3}, v{vT0}, 4, v{vA3}')
    A(f'v_and_b32 v{vG1}, 1, v{vT1}')
    A(f'v_lshl_add_u32 v{vA3}, v{vG1}, 3, v{vA3}')
    A(f's_lshr_b32 s52, s{sST}, 1')
    A('s_lshl_b32 s52, s52, 10')
    A(f's_and_b32 s53, s{sST}, 1')
    A('s_lshl_b32 s53, s53, 9')
    A('s_add_u32 s52, s52, s53')
    A(f's_cmp_lt_u32 s{sW}, 2')
    A(f's_cselect_b32 s53, 0, {WS_BO-WS_AE}')
    A(f's_add_u32 s53, s53, {WS_AE}')
    A('s_add_u32 s52, s52, s53')
    A('s_lshl_b32 s54, s49, 15')
    A('s_add_u32 s54, s54, s52')
    A('s_waitcnt lgkmcnt(0)')
    A.stamp(2)
    A('s_barrier')
    A.stamp(3)
    AF=16; CI=52; ACC=208
    A(f'ds_read_b128 {v(CI,4)}, v{vM1} offset:{L_NQ}')
    for kd in range(9):
        A(f'ds_read_b128 {v(AF+4*kd,4)}, v{vA1} offset:{64*kd}')
    A('s_waitcnt lgkmcnt(9)')
    for r in range(4):
        A(f'v_xor_b32 v{CI+r}, v{CI+r}, v{vM3}')
        A(f'v_and_b32 v{CI+r}, s48, v{CI+r}')
    A('s_nop 1')
    for kd in range(9):
        A(f's_waitcnt lgkmcnt({8-kd})')
        for t in range(3):
            c = v(CI,4) if kd==0 else v(ACC+4*t,4)
            A(f'v_mfma_f32_16x16x32_bf16 {v(ACC+4*t,4)}, {v(AF+4*kd,4)}, {v(TB+36*t+4*kd,4)}, {c}')
    Lx2=A.label('k2_x2'); Lny=A.label('k2_ny')
    A('s_cmp_lg_u32 s51, 2')
    A(f's_cbranch_scc1 {Lx2}')
    for kd in range(9):
        c = v(CI,4) if kd==0 else v(ACC+12,4)
        A(f'v_mfma_f32_16x16x32_bf16 {v(ACC+12,4)}, {v(AF+4*kd,4)}, {v(TB+108+4*kd,4)}, {c}')
    A(f'{Lx2}:')
    A('s_nop 7')
    A.stamp(4)
    A(f's_cmp_eq_u32 s{sST}, 64')
    A(f's_cbranch_scc1 {Lny}')
    for t in range(3):
        A(f'v_cvt_pk_bf16_f32 v{ACC+4*t}, v{ACC+4*t}, v{ACC+4*t+1}')
        A(f'v_cvt_pk_bf16_f32 v{ACC+4*t+1}, v{ACC+4*t+2}, v{ACC+4*t+3}')
        A(f'buffer_store_dwordx2 {v(ACC+4*t,2)}, v{vA3}, s[16:19], s54 offen')
        A('s_add_u32 s54, s54, 32768')
    A('s_cmp_lg_u32 s51, 2')
    A(f's_cbranch_scc1 {Lend}')
    A(f's_add_u32 s54, s52, {18*32768}')
    A(f'v_cvt_pk_bf16_f32 v{ACC+12}, v{ACC+12}, v{ACC+13}')
    A(f'v_cvt_pk_bf16_f32 v{ACC+13}, v{ACC+14}, v{ACC+15}')
    A(f'buffer_store_dwordx2 {v(ACC+12,2)}, v{vA3}, s[16:19], s54 offen')
    A.endpgm()
    A(f'{Lny}:')
    A(f's_cmp_ge_u32 s{sW}, 2')
    A(f's_cbranch_scc1 {Lend}')
    A(f'v_lshlrev_b32 v{vA3}, 2, v{vLane}')
    A('s_lshl_b32 s54, s49, 6')
    A('s_mov_b64 exec, 0xffff')
    A(f's_add_u32 s54, s54, {WS_AE1024}')
    for t in range(3):
        A(f'buffer_store_dword v{ACC+4*t}, v{vA3}, s[16:19], s54 offen offset:{64*t}')
    A('s_cmp_lg_u32 s51, 2')
    A(f's_cbranch_scc1 {Lend}')
    A(f's_mov_b32 s54, {WS_AE1024+18*64}')
    A(f'buffer_store_dword v{ACC+12}, v{vA3}, s[16:19], s54 offen')
    A.endpgm()
    if prefetch:
        A(f'{Lp}:')
        Lw=A.label('k2_w1')
        A('s_cmp_ge_u32 s2, 231')
        A(f's_cbranch_scc1 {Lw}')
        A(f's_sub_u32 s29, s2, {195-18}')
        A('s_lshl_b32 s64, s29, 7')
        A('s_mov_b32 s30, 0')
        def fin(ph):
            if ph=='pre':
                A('s_mul_i32 s28, s29, 7282'); A('s_lshr_b32 s28, s28, 16')
                A('s_mul_i32 s31, s28, 9'); A('s_sub_u32 s31, s29, s31'); A('s_lshl_b32 s31, s31, 6')
                A('v_add_u32 v3, s31, v0')
                A('s_cmp_eq_u32 s28, 5')
                kappa_pos(A,3,4,'s_cselect_b64 vcc, 0, vcc')
                A('s_mul_i32 s31, s28, 576')
                A('v_add_u32 v3, s31, v3'); A('v_lshlrev_b32 v3, 2, v3')
                A('s_cmp_eq_u32 s28, 4'); A('s_cselect_b32 s31, 1.0, 0')
            else:
                bf16_round(A,'v32','v32')
                A('v_add_f32 v32, s31, v32')
                bf16_round(A,'v32','v32')
                A(f'buffer_store_dword v32, v3, s[16:19], 0 offen offset:{WS_MOD}')
        mod_block(A,64,9,64,30,576,'s[56:59]','s[60:63]',Lend,fin)
        A.endpgm()
        A(f'{Lw}:')
        Lz=A.label('k2_z')
        A('s_cmp_ge_u32 s2, 232')
        A(f's_cbranch_scc1 {Lz}')
        A('v_min_u32 v1, 287, v0'); A('v_lshlrev_b32 v1, 7, v1'); A('v_mov_b32 v2, 0')
        A('s_mov_b32 s31, 0x50000')
        A('s_waitcnt lgkmcnt(0)')
        A('buffer_store_dword v2, v1, s[16:19], s31 offen')
        A(f's_branch {Lend}')
        A(f'{Lz}:')
        A('s_and_b32 s31, s2, 7')
        A('s_sub_u32 s32, s2, 232'); A('s_lshr_b32 s32, s32, 3')
        A('s_lshl_b32 s33, s32, 9')
        A('v_add_u32 v1, s33, v0')
        A('s_mul_i32 s35, s31, 1152')
        A(f's_mov_b32 s36, {(2**32+8)//9}')
        A('v_mul_hi_u32 v2, v1, s36')
        A('v_mul_u32_u24 v3, 9, v2'); A('v_sub_u32 v3, v1, v3')
        A('v_mul_u32_u24 v4, 9216, v2'); A('v_lshl_add_u32 v4, v3, 7, v4')
        A('s_waitcnt lgkmcnt(0)')
        A(f'buffer_load_dword v12, v4, s[24:27], s35 offen')
        A('s_waitcnt vmcnt(0)')
    A(f'{Lend}:')
    A.endpgm()
    A.end(name, 224, 72)
```

```python
from asmlib import *
from gen1 import *
from gen4 import Cnt
OOB=0x40000000

def sparse_prefetch(A, srd, vOff, sOff, vDst):
    A(f'buffer_load_dword v{vDst}, v{vOff}, {srd}, {sOff} offen')

def gen_k3b(A, name='k3_seq_kernel', prefetch=True, NPRE=8):
    NW=192; NT=256
    L_CS=0; L_SS=32768; L_C5=65536; L_S5=L_C5+2048; L_XS=L_C5+4096; L_V=L_XS+16384
    L_X=L_V+1024
    L_ST=L_X+21*1024
    A.launch(name, NT if prefetch else NW, 512, L_ST+3072)
    A.begin(name)
    Lend=A.label('k3_end'); Lpf=A.label('k3_pf'); Lepi=A.label('k3_epi')
    load_srds(A,[('x',8),('Cs',12),('ws',16),('Ss',20),('w2',24)])
    A(f's_cmp_ge_u32 s2, {NT if prefetch else NW}')
    A(f's_cbranch_scc1 {Lend}')
    if prefetch:
        A(f's_cmp_ge_u32 s2, {NW}')
        A(f's_cbranch_scc1 {Lpf}')
    sET,sTT,sW=28,29,30
    A('s_lshr_b32 s31, s2, 3')
    A('s_mul_i32 s32, s31, 21846'); A('s_lshr_b32 s32, s32, 16')
    A('s_mul_i32 s33, s32, 3'); A('s_sub_u32 s33, s31, s33')
    A('s_and_b32 s34, s2, 1'); A('s_mul_i32 s34, s34, 3')
    A(f's_add_u32 s{sET}, s33, s34')
    A('s_bfe_u32 s34, s2, 0x20001'); A('s_lshl_b32 s34, s34, 3')
    A(f's_add_u32 s{sTT}, s32, s34')
    vLane,vT0,vT1,vL16,vL16b,vD0,vD1=1,2,3,4,5,6,7
    vBa=8
    vSl,vEc,vRs,vR1,vE0,vTs=12,13,14,15,16,17
    vXo=18
    X=22
    GA=32
    AE4=48
    ACC=60
    BR=72
    AF=104
    A(f'v_and_b32 v{vLane}, 63, v0')
    A(f'v_lshrrev_b32 v{vT0}, 6, v0')
    A(f'v_lshlrev_b32 v{vL16}, 4, v{vLane}')
    A(f'v_readfirstlane_b32 s{sW}, v{vT0}')
    A(f's_lshl_b32 s35, s{sW}, 1')
    A(f'v_xor_b32 v{vD0}, s35, v{vLane}')
    A(f'v_lshlrev_b32 v{vD0}, 4, v{vD0}')
    A(f'v_xor_b32 v{vD1}, 16, v{vD0}')
    A(f'v_add_u32 v{vD1}, 2048, v{vD1}')
    A(f's_lshl_b32 s36, s{sTT}, 4'); A('s_add_u32 s36, s36, s35'); A('s_lshl_b32 s36, s36, 12')
    A(f's_lshl_b32 s37, s{sW}, 12')
    A('s_mov_b32 m0, s37')
    A('s_waitcnt lgkmcnt(0)')
    def tdma(srd, sOff):
        A(f'buffer_load_dwordx4 v{vD0}, {srd}, {sOff} offen lds')
        A(f'buffer_load_dwordx4 v{vD0}, {srd}, {sOff} offen offset:1024 lds')
        A(f'buffer_load_dwordx4 v{vD1}, {srd}, {sOff} offen offset:2048 lds')
        A(f'buffer_load_dwordx4 v{vD1}, {srd}, {sOff} offen offset:3072 lds')
    tdma('s[12:15]','s36')
    A(f's_add_u32 m0, s37, {L_SS}'); A('s_nop 0')
    tdma('s[20:23]','s36')
    A('s_barrier')
    A(f's_cmp_lt_u32 s{sW}, 3')
    A(f's_cselect_b32 s39, 0, {WS_BO-WS_AE-3*32768}')
    A('s_mov_b32 s41, 0x00008000')
    A('s_cselect_b32 s41, 0x80000000, s41')
    A(f's_cselect_b32 s42, 0, {L_SS}')
    A(f's_mul_i32 s43, s{sET}, 3'); A(f's_add_u32 s43, s43, s{sW}'); A('s_lshl_b32 s43, s43, 15')
    A('s_add_u32 s39, s39, s43')
    A(f's_add_u32 s39, s39, {WS_AE}')
    A(f's_cmp_eq_u32 s{sW}, 6')
    A(f's_cselect_b32 s39, {WS_AE+18*32768}, s39')
    A('s_cselect_b32 s41, 0x80000000, s41')
    A('s_cselect_b32 s42, 0, s42')
    A(f's_cmp_eq_u32 s{sET}, 0')
    A('s_cselect_b32 s40, 7, 6')
    Lna=A.label('k3_na')
    def aload(ks):
        A(f'buffer_load_dwordx4 {v(AF+4*ks,4)}, v{vL16}, s[16:19], s39 offen offset:{(ks&3)*1024}')
        if ks&3==3: A('s_add_u32 s39, s39, 4096')
    A(f's_cmp_ge_u32 s{sW}, s40')
    A(f's_cbranch_scc1 {Lna}')
    for ks in range(NPRE): aload(ks)
    A(f'{Lna}:')
    Lnt=A.label('k3_nt'); Ln5=A.label('k3_n5'); Lj=A.label('k3_j')
    A(f's_cmp_lg_u32 s{sW}, 7')
    A(f's_cbranch_scc1 {Lnt}')
    A(f's_cmp_lg_u32 s{sTT}, 0')
    A(f's_cbranch_scc1 {Ln5}')
    A(f's_mov_b32 s38, {512*4096}')
    A(f's_mov_b32 m0, {L_C5}'); A('s_nop 0')
    A(f'buffer_load_dwordx4 v{vL16}, s[12:15], s38 offen lds')
    A(f'buffer_load_dwordx4 v{vL16}, s[12:15], s38 offen offset:1024 lds')
    A(f's_mov_b32 m0, {L_S5}'); A('s_nop 0')
    A(f'buffer_load_dwordx4 v{vL16}, s[20:23], s38 offen lds')
    A(f'buffer_load_dwordx4 v{vL16}, s[20:23], s38 offen offset:1024 lds')
    A(f'{Ln5}:')
    A('s_waitcnt vmcnt(0)')
    A('s_barrier')
    vQ,vI,vJ=BR,BR+1,BR+2
    A(f's_mul_i32 s45, s{sET}, 192')
    A(f'v_lshrrev_b32 v{vT0}, 4, v{vLane}')
    A(f'v_and_b32 v{vT1}, 15, v{vLane}')
    A(f'v_lshlrev_b32 v{vT1}, 4, v{vT1}')
    A(f'v_add_u32 v{vT1}, s45, v{vT1}')
    A(f'v_add_u32 v{vQ}, {WS_MOD+2*2304}, v{vT1}')
    A(f'v_add_u32 v{vI}, {WS_MOD+2*2304+1152}, v{vT1}')
    A(f'v_cmp_eq_u32 vcc, 1, v{vT0}'); A('s_nop 1'); A(f'v_cndmask_b32 v{vQ}, v{vQ}, v{vI}, vcc')
    A(f'v_add_u32 v{vI}, {WS_AE1024}, v{vT1}')
    A(f'v_cmp_eq_u32 vcc, 2, v{vT0}'); A('s_nop 1'); A(f'v_cndmask_b32 v{vQ}, v{vQ}, v{vI}, vcc')
    A(f'v_mov_b32 v{vI}, {WS_AE1024+1152}')
    A(f'v_cmp_eq_u32 vcc, 3, v{vT0}'); A('s_nop 1'); A(f'v_cndmask_b32 v{vQ}, v{vQ}, v{vI}, vcc')
    A(f's_mov_b32 m0, {L_V}'); A('s_nop 0')
    A(f'buffer_load_dwordx4 v{vQ}, s[16:19], 0 offen lds')
    A(f's_lshr_b32 s45, s45, 1')
    A(f's_sub_u32 s46, {1152-96}, s45')
    A(f'v_and_b32 v{vI}, 7, v{vLane}')
    A(f'v_lshlrev_b32 v{vI}, 4, v{vI}')
    A(f'v_add_u32 v{vJ}, s45, v{vI}')
    A(f'v_add_u32 v{vT1}, s46, v{vI}')
    A(f'v_and_b32 v{vQ}, 15, v{vLane}')
    A(f'v_cmp_gt_u32 vcc, 8, v{vQ}')
    A(f'v_mov_b32 v{vI}, 576')
    A('s_nop 0')
    A(f'v_cndmask_b32 v{vJ}, v{vT1}, v{vJ}, vcc')
    A(f'v_cmp_eq_u32 vcc, 15, v{vQ}')
    A('s_nop 1')
    A(f'v_cndmask_b32 v{vI}, v{vJ}, v{vI}, vcc')
    A(f's_lshl_b32 s47, s{sTT}, 4')
    A(f'v_add_u32 v{vT0}, s47, v{vT0}')
    A(f'v_cmp_eq_u32 s[48:49], 0, v{vT0}')
    A(f'v_mul_u32_u24 v{vT0}, 1152, v{vT0}')
    A(f'v_add_u32 v{vQ}, v{vI}, v{vT0}')
    A(f'v_sub_u32 v{vJ}, v{vI}, v{vT0}')
    A(f'v_add_u32 v{vJ}, {1012*1152}, v{vJ}')
    for grp,(base,pos) in enumerate(((0,True),(1024,False),(2048,False),(1024,True))):
        for j in range(4):
            A(f's_mov_b32 m0, {L_XS+4096*grp+1024*j}')
            if pos: so=(base+4*j)*1152; vr=vQ
            else: so=(base-1024+12-4*j)*1152; vr=vJ
            if grp>=2 and j==0:
                A(f'v_add_u32 v{vT1}, {so}, v{vr}')
                A(f'v_add_u32 v{vT0}, {(512 if grp==2 else 1536)*1152}, v{vI}')
                A(f'v_cndmask_b32 v{vT1}, v{vT1}, v{vT0}, s[48:49]')
                A(f'buffer_load_dwordx4 v{vT1}, s[8:11], 0 offen lds')
            else:
                A(f's_mov_b32 s46, {so}')
                A(f'buffer_load_dwordx4 v{vr}, s[8:11], s46 offen lds')
    A(f's_branch {Lepi}')
    A(f'{Lnt}:')
    A(f'v_and_b32 v{vT0}, 15, v{vLane}')
    A(f'v_lshrrev_b32 v{vT1}, 4, v{vLane}')
    A(f'v_xor_b32 v{vT1}, v{vT1}, v{vT0}')
    A(f'v_lshlrev_b32 v{vT0}, 11, v{vT0}')
    A(f'v_add_u32 v{vT0}, s42, v{vT0}')
    for kl in range(4):
        A(f'v_xor_b32 v{vBa+kl}, {4*kl}, v{vT1}')
        A(f'v_lshl_add_u32 v{vBa+kl}, v{vBa+kl}, 4, v{vT0}')
    A(f's_waitcnt vmcnt({NPRE})')
    A(f's_cmp_lt_u32 s{sW}, s40')
    A(f's_cbranch_scc1 {Lj}')
    A('s_waitcnt vmcnt(0)')
    A(f'{Lj}:')
    A.stamp(1)
    A('s_barrier')
    A.stamp(2)
    A(f's_cmp_ge_u32 s{sW}, s40')
    A(f's_cbranch_scc1 {Lepi}')
    Lne=A.label('k3_ne'); Led=A.label('k3_ed')
    vB5=vD0; B5=GA
    def bread(ks):
        A(f'ds_read_b128 {v(BR+8*(ks&3),4)}, v{vBa+(ks&3)} offset:{(ks>>2)*256}')
    def bread5(ks): A(f'ds_read_b128 {v(B5+4*(ks&3),4)}, v{vB5} offset:{ks*64}')
    def loop(edge):
        n=2 if edge else 1
        for ks in range(3):
            bread(ks)
            if edge: bread5(ks)
        issued=NPRE
        for ks in range(32):
            if ks+3<32:
                bread(ks+3)
                if edge: bread5(ks+3)
            for _ in range(2):
                if issued<32: aload(issued); issued+=1
            A(f's_waitcnt lgkmcnt({n*min(3,31-ks)})')
            b=BR+8*(ks&3)
            for p in range(4): A(f'v_xor_b32 v{b+4+p}, s41, v{b+p}')
            A(f's_waitcnt vmcnt({issued-1-ks})')
            c0='0' if ks==0 else v(ACC,4); c1='0' if ks==0 else v(ACC+4,4); c2='0' if ks==0 else v(ACC+8,4)
            A(f'v_mfma_f32_16x16x32_bf16 {v(ACC,4)}, {v(AF+4*ks,4)}, {v(b,4)}, {c0}')
            A(f'v_mfma_f32_16x16x32_bf16 {v(ACC+4,4)}, {v(AF+4*ks,4)}, {v(b+4,4)}, {c1}')
            if edge: A(f'v_mfma_f32_16x16x32_bf16 {v(ACC+8,4)}, {v(AF+4*ks,4)}, {v(B5+4*(ks&3),4)}, {c2}')
    A(f's_cmp_eq_u32 s{sTT}, 0')
    A(f's_cbranch_scc1 {Led}')
    loop(False)
    A(f's_branch {Lne}')
    A(f'{Led}:')
    A(f'v_lshrrev_b32 v{vB5}, 4, v{vLane}')
    A(f'v_lshlrev_b32 v{vB5}, 4, v{vB5}')
    A(f's_lshr_b32 s42, s42, 4')
    A(f's_add_u32 s42, s42, {L_C5}')
    A(f'v_add_u32 v{vB5}, s42, v{vB5}')
    loop(True)
    A(f'{Lne}:')
    A.stamp(3)
    A(f's_mul_i32 s46, s{sW}, 3072')
    A(f's_add_u32 s46, s46, {L_X}')
    A(f'v_add_u32 v{vT0}, s46, v{vL16}')
    A('s_nop 7')
    for t in range(3):
        A(f'ds_write_b128 v{vT0}, {v(ACC+4*t,4)} offset:{1024*t}')
    A(f'{Lepi}:')
    A(f'v_and_b32 v{vSl}, 31, v0')
    A(f'v_lshrrev_b32 v{vEc}, 5, v0')
    A(f'v_cmp_lt_u32 vcc, 5, v{vEc}')
    A(f'v_subrev_u32 v{vT0}, 6, v{vEc}')
    A('s_mov_b64 s[50:51], vcc')
    A(f'v_cndmask_b32 v{vEc}, v{vEc}, v{vT0}, vcc')
    A(f'v_and_b32 v{vT0}, 15, v{vSl}')
    A(f's_lshl_b32 s38, s{sTT}, 4')
    A(f'v_add_u32 v{vT0}, s38, v{vT0}')
    A(f'v_cmp_eq_u32 s[52:53], 0, v{vT0}')
    A(f'v_sub_u32 v{vT1}, 1024, v{vT0}')
    A(f'v_cmp_lt_u32 s[54:55], 15, v{vSl}')
    A('s_and_b64 s[52:53], s[52:53], s[50:51]')
    A(f'v_cndmask_b32 v{vTs}, v{vT0}, v{vT1}, s[54:55]')
    A(f'v_sub_u32 v{vT1}, 2048, v{vTs}')
    A(f'v_cndmask_b32 v{vR1}, v{vTs}, v{vT1}, s[50:51]')
    A(f'v_add_u32 v{vT1}, 512, v{vTs}')
    A(f'v_cndmask_b32 v{vR1}, v{vR1}, v{vT1}, s[52:53]')
    A(f's_mul_i32 s38, s{sET}, 48')
    A(f'v_lshl_add_u32 v{vE0}, v{vEc}, 3, s38')
    A(f'v_cmp_eq_u32 s[56:57], 0, v{vE0}')
    A(f'v_add_u32 v{vT0}, 32, v{vSl}')
    A(f'v_cndmask_b32 v{vT0}, v{vSl}, v{vT0}, s[50:51]')
    A(f'v_lshlrev_b32 v{vT0}, 8, v{vT0}')
    A(f'v_add_u32 v{vT0}, {L_XS}, v{vT0}')
    A(f'v_lshl_add_u32 v{vXo}, v{vEc}, 4, v{vT0}')
    A(f'v_lshlrev_b32 v{vT1}, 4, v{vEc}')
    A(f'v_sub_u32 v{vXo+1}, v{vT0}, v{vT1}')
    A(f'v_add_u32 v{vXo+1}, {13*16}, v{vXo+1}')
    A(f'v_add_u32 v{vXo+2}, 16, v{vXo+1}')
    A(f'v_add_u32 v{vT0}, {15*16}, v{vT0}')
    A(f'v_cndmask_b32 v{vXo+2}, v{vXo+2}, v{vT0}, s[56:57]')
    A(f'v_lshlrev_b32 v{vRs}, 5, v{vEc}')
    A(f'v_add_u32 v{vRs}, {L_V}, v{vRs}')
    vLa,vLe=BR,BR+1
    A(f'v_lshrrev_b32 v{vT0}, 4, v{vSl}')
    A(f'v_cndmask_b32 v{vT0}, v{vT0}, 2, s[52:53]')
    A(f'v_lshlrev_b32 v{vT0}, 10, v{vT0}')
    A(f'v_and_b32 v{vT1}, 15, v{vSl}')
    A(f'v_lshl_add_u32 v{vT0}, v{vT1}, 4, v{vT0}')
    A(f'v_add_u32 v{vLe}, {L_X+6*3072}, v{vT0}')
    A(f'v_lshrrev_b32 v{vT1}, 1, v{vEc}')
    A(f'v_mul_u32_u24 v{vT1}, 3072, v{vT1}')
    A(f'v_add_u32 v{vLa}, v{vT0}, v{vT1}')
    A(f'v_and_b32 v{vT1}, 1, v{vEc}')
    A(f'v_lshl_add_u32 v{vLa}, v{vT1}, 9, v{vLa}')
    A(f'v_add_u32 v{vLa}, {L_X}, v{vLa}')
    A('s_waitcnt vmcnt(0) lgkmcnt(0)')
    A('s_barrier')
    A.stamp(4)
    A(f's_cmp_ge_u32 s{sW}, 6')
    A(f's_cbranch_scc1 {Lend}')
    P=AF; Q=AF+8; O1=AF+16; O2=AF+24; U=AF+32; D=AF+48; vSg=BR+2; vQs=BR+3; PE=BR+4
    for hh in range(2): A(f'ds_read_b128 {v(P+4*hh,4)}, v{vLa} offset:{256*hh}')
    for hh in range(2): A(f'ds_read_b128 {v(Q+4*hh,4)}, v{vLa} offset:{9216+256*hh}')
    A(f'ds_read_b32 v{PE}, v{vLe}')
    for hh in range(2): A(f'ds_read_b128 {v(AE4+4*hh,4)}, v{vRs} offset:{512+16*hh}')
    A(f'v_mov_b32 v{vT1}, {L_V+768}')
    A(f'ds_read_b32 v{AE4+8}, v{vT1}')
    for hh in range(2):
        A(f'ds_read_b128 {v(GA+4*hh,4)}, v{vRs} offset:{16*hh}')
        A(f'ds_read_b128 {v(GA+8+4*hh,4)}, v{vRs} offset:{256+16*hh}')
    A(f'ds_read_b128 {v(X,4)}, v{vXo}')
    A(f'ds_read_b128 {v(X+4,4)}, v{vXo+1}')
    A(f'ds_read_u16 v{X+8}, v{vXo+2}')
    A(f'v_lshlrev_b32 v{vSg}, 31, v{vTs}')
    A('s_andn2_b64 s[58:59], s[52:53], s[54:55]')
    A('s_andn2_b64 s[58:59], s[50:51], s[58:59]')
    A(f'v_bfrev_b32 v{vT0}, 1')
    A(f'v_cndmask_b32 v{vQs}, 0, v{vT0}, s[58:59]')
    A('s_waitcnt lgkmcnt(7)')
    for i in range(9): A(f'v_xor_b32 v{AE4+i}, v{vSg}, v{AE4+i}')
    for i in range(8):
        A(f'v_add_f32 v{P+i}, v{P+i}, v{AE4+i}')
        A(f'v_xor_b32 v{Q+i}, v{vQs}, v{Q+i}')
    A(f'v_add_f32 v{PE}, v{PE}, v{AE4+8}')
    for i in range(8):
        A(f'v_sub_f32 v{O1+i}, v{P+i}, v{Q+i}')
        A(f'v_add_f32 v{O2+i}, v{P+i}, v{Q+i}')
    A(f'v_cndmask_b32 v{O2}, v{O2}, v{PE}, s[56:57]')
    def finish(O, ga, xs, dst):
        for i,(r,h) in enumerate(xs):
            if h=='lo': A(f'v_lshlrev_b32 v{U+8+i}, 16, v{r}')
            else: A(f'v_and_b32 v{U+8+i}, 0xffff0000, v{r}')
        for i in range(8): A(f'v_fmac_f32 v{U+8+i}, v{O+i}, v{ga+i}')
        for p in range(4): A(f'v_cvt_pk_bf16_f32 v{dst+p}, v{U+8+2*p}, v{U+8+2*p+1}')
    xdir=[(X+(i>>1),'lo' if i%2==0 else 'hi') for i in range(8)]
    xmir=[(X+8,'lo')]+[(X+4+((8-q)>>1),'lo' if (8-q)%2==0 else 'hi') for q in range(1,8)]
    vDd=vXo
    A('s_waitcnt lgkmcnt(0)')
    A(f'v_lshlrev_b32 v{vT0}, 5, v{vE0}')
    A(f'v_lshrrev_b32 v{vT1}, 4, v{vR1}')
    A(f'v_mul_u32_u24 v{vDd}, {18*1024}, v{vT1}')
    A(f'v_and_b32 v{vT1}, 15, v{vR1}')
    A(f'v_lshl_add_u32 v{vDd}, v{vT1}, 4, v{vDd}')
    A(f'v_add_u32 v{vDd}, v{vDd}, v{vT0}')
    A(f's_mov_b32 s38, {WS_X2}')
    A(f's_mov_b32 s39, {WS_X2+9*1024}')
    finish(O1,GA,xdir,D);     A(f'buffer_store_dwordx4 {v(D,4)}, v{vDd}, s[16:19], s38 offen')
    finish(O2,GA+8,xmir,D+4); A(f'buffer_store_dwordx4 {v(D+4,4)}, v{vDd}, s[16:19], s39 offen')
    A.stamp(5)
    ST=U
    A('s_mov_b32 s38, 0x3f803f80')
    for i in range(4): A(f'v_mov_b32 v{ST+i}, 0')
    for i in range(8):
        A(f'v_dot2_f32_bf16 v{ST+2*(i&1)}, v{D+i}, s38, v{ST+2*(i&1)}')
        A(f'v_dot2_f32_bf16 v{ST+2*(i&1)+1}, v{D+i}, v{D+i}, v{ST+2*(i&1)+1}')
    A(f'v_lshlrev_b32 v{vT0}, 3, v0')
    A(f'v_add_u32 v{vT0}, {L_ST}, v{vT0}')
    A('s_nop 1')
    A(f'v_pk_add_f32 {v(ST,2)}, {v(ST,2)}, {v(ST+2,2)}')
    A(f'ds_write_b64 v{vT0}, {v(ST,2)}')
    A('s_waitcnt lgkmcnt(0)')
    A('s_barrier')
    A(f's_cmp_eq_u32 s{sW}, 3'); A('s_cselect_b32 s38, 0, s30'); A('s_cmp_lg_u32 s38, 0')
    A(f's_cbranch_scc1 {Lend}')
    A('s_mov_b32 exec_hi, 0')
    for ec in range(6):
        A(f'ds_read_b64 {v(U+2*ec,2)}, v{vT0} offset:{256*ec}')
    A(f's_lshl_b32 s38, s{sET}, 3')
    A(f's_add_u32 s38, s38, {WS_STAT}')
    A(f'v_lshlrev_b32 v{vT1}, 6, v{vR1}')
    A('s_waitcnt lgkmcnt(0)')
    for ec in range(1,6):
        A(f'v_pk_add_f32 {v(U,2)}, {v(U,2)}, {v(U+2*ec,2)}')
    A(f'buffer_store_dwordx2 {v(U,2)}, v{vT1}, s[16:19], s38 offen')
    A.endpgm()
    if prefetch:
        A(f'{Lpf}:')
        A(f's_sub_u32 s32, s2, {NW}'); A('s_lshr_b32 s32, s32, 3')
        A('v_lshlrev_b32 v1, 7, v0')
        A(f'v_mov_b32 v3, 0x{OOB:x}')
        A('s_and_b32 s33, s2, 1'); A(f's_mul_i32 s33, s33, {9*32768}')
        A('v_lshl_add_u32 v6, v0, 3, s32')
        A('v_lshlrev_b32 v7, 7, v6')
        A(f'v_add_u32 v8, {WS_BO-WS_AE-2304*128}, v7')
        A('v_cmp_gt_u32 vcc, 2304, v6'); A('s_nop 1'); A('v_cndmask_b32 v8, v8, v7, vcc')
        A(f's_add_u32 s34, s33, {WS_AE}')
        A(f'v_add_u32 v9, {WS_BO+1792*128}, v7'); A('v_add_u32 v9, s33, v9')
        A(f'v_add_u32 v10, {WS_AE+18*32768-512*128}, v7')
        A('v_cmp_gt_u32 vcc, 512, v6'); A('s_nop 1'); A('v_cndmask_b32 v9, v10, v9, vcc')
        A('v_cmp_gt_u32 vcc, 768, v6'); A('s_nop 1'); A('v_cndmask_b32 v9, v3, v9, vcc')
        A('s_waitcnt lgkmcnt(0)')
        A('buffer_load_dword v11, v8, s[16:19], s34 offen')
        A('buffer_load_dword v12, v9, s[16:19], 0 offen')
        A('s_and_b32 s31, s2, 7'); A(f's_mul_i32 s31, s31, {576*1152}')
        A(f's_mul_i32 s32, s32, {648*128}')
        A('s_add_u32 s31, s31, s32')
        A('v_cmp_gt_u32 vcc, 136, v0')
        A(f'v_add_u32 v2, {512*128}, v1')
        A('s_nop 0')
        A('v_cndmask_b32 v2, v3, v2, vcc')
        A('buffer_load_dword v4, v1, s[24:27], s31 offen')
        A('buffer_load_dword v5, v2, s[24:27], s31 offen')
        A('s_waitcnt vmcnt(0)')
    A(f'{Lend}:')
    A.endpgm()
    A.end(name, 232, 72)
```

```python
from asmlib import *
from gen1 import *
from gen2 import OOB

class Cnt:
    def __init__(s,name,maxv): s.name=name; s.n=0; s.done=0; s.maxv=maxv
    def issue(s): s.n+=1; return s.n
    def need(s,idn):
        if idn<=s.done: return None
        w=s.n-idn
        assert w<=s.maxv,(s.name,w)
        s.done=idn
        return w

def gen_k4(A, store_flags='', P=5, DEPTH=10, dma=True, name='k4_mlp_kernel', barrier=True, side_on=True, xmap=0, dup=1, halfstore=False):
    NW=256; SLOT=12288; NS=12; L0=NS*SLOT
    A.launch(name, NW, 256, L0+2304)
    A.begin(name)
    Lend=A.label('k4_end')
    load_srds(A,[('ws',16)])
    A(f's_cmp_ge_u32 s2, {NW}')
    A(f's_cbranch_scc1 {Lend}')
    sFC,sMT,sW,sSrc,sM0,sDst=28,29,30,31,32,33
    vLane16,vT0,vT1,vCB,vR,vNmr,vL16b=1,2,3,4,5,6,7
    vLB=8
    NB=P+1
    FR=12
    ACC=FR+4*NB; ACC+= ACC%2
    TMP=ACC+16; CB=TMP+16; H1=CB+32; OUT=H1+72; NV=OUT+8
    ST=CB
    if xmap==0:
        A(f's_and_b32 s{sFC}, s2, 7')
        A(f's_lshl_b32 s{sFC}, s{sFC}, 1')
        A(f's_bfe_u32 s34, s2, 0x10003')
        A(f's_add_u32 s{sFC}, s{sFC}, s34')
        A(f's_lshr_b32 s{sMT}, s2, 4')
    elif xmap==1:
        A(f's_bfe_u32 s{sFC}, s2, 0x30003')
        A(f's_and_b32 s34, s2, 1')
        A(f's_lshl_b32 s34, s34, 3')
        A(f's_add_u32 s{sFC}, s{sFC}, s34')
        A(f's_bfe_u32 s{sMT}, s2, 0x20001')
        A(f's_lshl_b32 s{sMT}, s{sMT}, 2')
        A(f's_lshr_b32 s34, s2, 6')
        A(f's_add_u32 s{sMT}, s{sMT}, s34')
    elif xmap==2:
        A(f's_bfe_u32 s{sFC}, s2, 0x20003')
        A(f's_and_b32 s34, s2, 3')
        A(f's_lshl_b32 s34, s34, 2')
        A(f's_add_u32 s{sFC}, s{sFC}, s34')
        A(f's_bfe_u32 s{sMT}, s2, 0x10002')
        A(f's_lshl_b32 s{sMT}, s{sMT}, 3')
        A(f's_lshr_b32 s34, s2, 5')
        A(f's_add_u32 s{sMT}, s{sMT}, s34')
    A(f'v_lshrrev_b32 v{vT0}, 6, v0')
    A(f'v_and_b32 v{vT1}, 63, v0')
    A(f'v_readfirstlane_b32 s{sW}, v{vT0}')
    A(f'v_lshlrev_b32 v{vLane16}, 4, v{vT1}')
    A(f'v_add_u32 v{vL16b}, 4096, v{vLane16}')
    for k in range(3): A(f'v_add_u32 v{vLB+k}, {k*49152}, v{vLane16}')
    A(f'v_lshrrev_b32 v{vCB}, 5, v{vT1}')
    A(f'v_lshlrev_b32 v{vCB}, 5, v{vCB}')
    A(f'v_add_u32 v{vCB}, {L0}, v{vCB}')
    A(f's_mul_i32 s{sM0}, s{sW}, 3072')
    A(f's_mul_i32 s{sSrc}, s{sFC}, 331776')
    A(f's_add_u32 s{sSrc}, s{sSrc}, s{sM0}')
    A(f's_add_u32 s{sSrc}, s{sSrc}, {WS_W1P}')
    A(f's_lshl_b32 s34, s{sMT}, 2')
    A(f's_add_u32 s34, s34, s{sW}')
    A(f's_mul_i32 s35, s34, {36*1024}')
    A(f's_add_u32 s35, s35, {WS_X2}')
    A(f's_lshl_b32 s36, s{sFC}, 6')
    A('s_add_u32 s36, s36, s34')
    A(f's_mul_i32 s{sDst}, s36, {18*2048}')
    A(f's_add_u32 s{sDst}, s{sDst}, {WS_PART}')
    vm=Cnt('vm',63); lg=Cnt('lgkm',15)
    slot_id={}
    def dma_slot(i):
        if i>=54: return
        if i==27:
            A(f's_add_u32 s{sSrc}, s{sSrc}, {WS_W2P-WS_W1P-27*SLOT}')
        A(f's_add_u32 m0, s{sM0}, {(i%NS)*SLOT}')
        A('s_nop 0')
        for j in range(3):
          for dd in range(dup if i>=DEPTH else 1):
            if dd==1: A(f's_add_u32 s40, s{sSrc}, {WS_W2P-WS_W1P if i<27 else -(WS_W2P-WS_W1P)}')
            if dma: A(f'buffer_load_dwordx4 v{vLane16}, s[16:19], s{sSrc if dd==dup-1 else 40} offen offset:{1024*j} lds' if dup==1 or dd==1 and False else f'buffer_load_dwordx4 v{vLane16}, s[16:19], s{40 if dd==1 else sSrc} offen offset:{1024*j} lds')
            else: A('s_nop 0')
            if dma: slot_id[i]=vm.issue()
            else: slot_id[i]=0
        A(f's_add_u32 s{sSrc}, s{sSrc}, {SLOT}')
    A('s_waitcnt lgkmcnt(0)')
    dma_slot(0)
    xid=[]
    for ks in range(36):
        A(f'buffer_load_dwordx4 {a(4*ks,4)}, v{vLane16}, s[16:19], s35 offen offset:{(ks&3)*1024}'); xid.append(vm.issue())
        if ks&3==3: A('s_add_u32 s35, s35, 4096')
    dma_slot(1)
    A(f'v_and_b32 v{vT0}, 31, v0')
    A(f's_lshl_b32 s36, s34, 5')
    A(f'v_add_u32 v{vT0}, s36, v{vT0}')
    A(f'v_lshlrev_b32 v{vT0}, 6, v{vT0}')
    A(f's_mov_b32 s36, {WS_STAT}')
    for i in range(3):
        A(f'buffer_load_dwordx4 {v(ST+4*i,4)}, v{vT0}, s[16:19], s36 offen offset:{16*i}'); sid=vm.issue()
    A(f'v_lshlrev_b32 v{vT1}, 4, v0')
    A(f'v_add_u32 v{vR}, {0x8000-1152}, v{vT1}')
    A('v_cmp_gt_u32 vcc, 72, v0')
    A(f's_mul_i32 s36, s{sFC}, 1152')
    A(f's_add_u32 s36, s36, {WS_CS}')
    A(f'v_cndmask_b32 v{vR}, v{vR}, v{vT1}, vcc')
    A(f'buffer_load_dwordx4 {v(ST+16,4)}, v{vR}, s[16:19], s36 offen'); cid=vm.issue()
    for i in range(2,7): dma_slot(i)
    A.stamp(1)
    w=vm.need(cid); A(f's_waitcnt vmcnt({w})')
    A.stamp(2)
    for i in range(7,DEPTH): dma_slot(i)
    A(f'v_add_u32 v{vT1}, {L0}, v{vT1}')
    A('v_cmp_gt_u32 vcc, 144, v0')
    A('s_and_saveexec_b64 s[36:37], vcc')
    A(f'ds_write_b128 v{vT1}, {v(ST+16,4)}')
    A('s_mov_b64 exec, s[36:37]')
    for i in range(1,6):
        A(f'v_pk_add_f32 {v(ST,2)}, {v(ST,2)}, {v(ST+2*i,2)}')
    A(f's_mov_b32 s36, 0x3ae38e39')
    A(f's_mov_b32 s37, 0x3727c5ac')
    A(f'v_mul_f32 v{ST}, s36, v{ST}')
    A(f'v_mul_f32 v{ST+1}, s36, v{ST+1}')
    A(f'v_fma_f32 v{ST+1}, -v{ST}, v{ST}, v{ST+1}')
    A(f'v_max_f32 v{ST+1}, 0, v{ST+1}')
    bf16_round(A,f'v{ST+1}',f'v{ST+1}')
    A(f'v_add_f32 v{ST+1}, s37, v{ST+1}')
    bf16_round(A,f'v{ST+1}',f'v{ST+1}')
    A(f'v_sqrt_f32 v{ST+1}, v{ST+1}')
    A('s_nop 0')
    bf16_round(A,f'v{ST+1}',f'v{ST+1}')
    A(f'v_rcp_f32 v{vR}, v{ST+1}')
    bf16_round(A,f'v{ST}',f'v{ST}')
    A(f'v_mul_f32 v{vNmr}, -v{ST}, v{vR}')
    A('s_waitcnt lgkmcnt(0)')
    NSTEP=648
    side={}
    def add(n,f): side.setdefault(n,[]).append(f)
    rd_id={}
    cb_id={}
    def read_frag(n):
        if n>=NSTEP: return
        if n%12==0:
            i=n//12
            w=vm.need(slot_id[i])
            if w is not None: A(f's_waitcnt vmcnt({w})')
            if barrier: A('s_barrier')
            dma_slot(i+DEPTH)
        addr=((n//12)%NS)*SLOT+(n%12)*1024
        A(f'ds_read_b128 {v(FR+4*(n%NB),4)}, v{vLB+addr//49152} offset:{addr%49152}')
        rd_id[n]=lg.issue()
    def lgwait(idn):
        w=lg.need(idn)
        if w is not None: A(f's_waitcnt lgkmcnt({w})')
    def cb_read(ft,k):
        def f():
            arr=k>>2; qp=(k>>1)&1; i=k&1
            A(f'ds_read_b128 {v(CB+16*arr+8*qp+4*i,4)}, v{vCB} offset:{1152*arr+128*ft+64*qp+16*i}')
            cb_id[ft]=lg.issue()
        return f
    def epi1_ops(ft):
        ops=[]
        ops.append(lambda: lgwait(cb_id[ft]))
        for r in range(16):
            ops.append(lambda r=r: A(f'v_fma_f32 v{TMP+r}, v{TMP+r}, v{vR}, v{CB+16+r}'))
            ops.append(lambda r=r: A(f'v_fmac_f32 v{TMP+r}, v{CB+r}, v{vNmr}'))
            if r&1:
                d=H1+8*ft+(r>>1)
                ops.append(lambda r=r,d=d: A(f'v_cvt_pk_bf16_f32 v{d}, v{TMP+r-1}, v{TMP+r}'))
                ops.append(lambda d=d: A(f'v_pk_max_i16 v{d}, v{d}, 0'))
        return ops
    def epi2_ops(nt):
        ops=[]
        for qp in range(2):
            for p in range(4):
                ops.append(lambda qp=qp,p=p: A(f'v_cvt_pk_bf16_f32 v{OUT+4*qp+p}, v{TMP+8*qp+2*p}, v{TMP+8*qp+2*p+1}'))
            def st(qp=qp):
                if halfstore and qp==0: return
                A(f'buffer_store_dwordx4 {v(OUT+4*qp,4)}, v{vLane16}, s[16:19], s{sDst} offen offset:{1024*qp} {store_flags}')
                vm.issue()
                if qp==1: A(f's_add_u32 s{sDst}, s{sDst}, 2048')
            ops.append(st)
        return ops
    def spread(ops, start, per):
        for i,o in enumerate(ops): add(start+i//per, o)
    for ft in range(9):
        for k in range(8): add(36*ft+26+k, cb_read(ft,k))
        spread(epi1_ops(ft), 36*(ft+1)+5, 3 if ft<8 else 5)
    for nt in range(18):
        spread(epi2_ops(nt), 324+18*(nt+1)+5, 2)
    for n in range(P): read_frag(n)
    for n in range(NSTEP):
        if n in (0,36,324): A.stamp({0:3,36:4,324:5}[n])
        lgwait(rd_id[n])
        if n<324:
            ks=n%36; first=ks==0; last=ks==35
            if n<36:
                w=vm.need(xid[ks])
                if w is not None: A(f's_waitcnt vmcnt({w})')
            B=a(4*ks,4)
        else:
            ks=(n-324)%18; first=ks==0; last=ks==17
            B=v(H1+4*ks,4)
        d=v(TMP,16) if last else v(ACC,16)
        c='0' if first else v(ACC,16)
        A(f'v_mfma_f32_32x32x16_bf16 {d}, {v(FR+4*(n%NB),4)}, {B}, {c}')
        read_frag(n+P)
        if side_on:
            for f in side.get(n,[]): f()
    A.stamp(6)
    A('s_nop 7'); A('s_nop 3')
    for n in sorted(k for k in side if k>=NSTEP):
        for f in side[n]: f()
    A(f'{Lend}:')
    A.endpgm()
    A.end(name, NV, 64, agpr=144)

def gen_k5(A, name='k5_red_kernel', NP=16):
    NW=576
    A.launch(name, NW, 256, 0)
    A.begin(name)
    Lend=A.label('k5_end'); Lm=A.label('k5_m'); Lj=A.label('k5_j')
    load_srds(A,[('ws',16),('out',20)])
    A(f's_cmp_ge_u32 s2, {NW}')
    A(f's_cbranch_scc1 {Lend}')
    vT0,vT1,vG,vLane,vH,vM,vXm,vXe,vN0,vO=1,2,3,4,5,6,7,8,9,10
    PD=12
    XR=76; XE=80; GB=84; AC=92; U=100
    A(f'v_lshrrev_b32 v{vT0}, 6, v0')
    A(f's_lshl_b32 s24, s2, 12')
    A(f'v_readfirstlane_b32 s25, v{vT0}')
    A(f'v_lshlrev_b32 v{vG}, 4, v0')
    A(f's_add_u32 s24, s24, {WS_PART}')
    A('s_waitcnt lgkmcnt(0)')
    for fc in range(NP):
        A(f'buffer_load_dwordx4 {v(PD+4*fc,4)}, v{vG}, s[16:19], s24 offen')
        if fc<15: A(f's_add_u32 s24, s24, {64*18*2048}')
    A('s_lshl_b32 s26, s2, 2')
    A('s_add_u32 s26, s26, s25')
    A('s_mul_i32 s27, s26, 1821')
    A('s_lshr_b32 s27, s27, 16')
    A('s_mul_i32 s28, s27, 36')
    A('s_sub_u32 s28, s26, s28')
    A(f'v_and_b32 v{vLane}, 63, v0')
    A(f'v_lshrrev_b32 v{vH}, 5, v{vLane}')
    A(f'v_and_b32 v{vM}, 31, v{vLane}')
    A('s_lshl_b32 s29, s28, 1')
    A(f'v_add_u32 v{vN0}, s29, v{vH}')
    def chunk(dst,c):
        A(f'v_lshrrev_b32 v{vT1}, 1, v{c}')
        A(f'v_lshlrev_b32 v{dst}, 10, v{vT1}')
        A(f'v_and_b32 v{vT1}, 1, v{c}')
        A(f'v_lshl_add_u32 v{dst}, v{vT1}, 9, v{dst}')
        A(f'v_lshl_add_u32 v{dst}, v{vM}, 4, v{dst}')
    A(f's_mul_i32 s30, s27, {36*1024}')
    A(f's_add_u32 s30, s30, {WS_X2}')
    A(f'v_lshlrev_b32 v{vT0}, 5, v{vN0}')
    A(f's_mov_b32 s31, {WS_MOD+5*576*4}')
    A(f'buffer_load_dwordx4 {v(GB,4)}, v{vT0}, s[16:19], s31 offen')
    A(f'buffer_load_dwordx4 {v(GB+4,4)}, v{vT0}, s[16:19], s31 offen offset:16')
    A('s_lshl_b32 s31, s27, 5')
    A(f'v_add_u32 v{vO}, s31, v{vM}')
    A(f'v_mul_u32_u24 v{vO}, 1152, v{vO}')
    A(f'v_lshl_add_u32 v{vO}, v{vN0}, 4, v{vO}')
    A.stamp(1)
    A('s_cmp_ge_u32 s28, 18')
    A(f's_cbranch_scc1 {Lm}')
    chunk(vXm,vN0)
    A(f'buffer_load_dwordx4 {v(XR,4)}, v{vXm}, s[16:19], s30 offen')
    A('s_waitcnt vmcnt(0)')
    for p in range(4):
        A(f'v_lshlrev_b32 v{U+2*p}, 16, v{XR+p}')
        A(f'v_and_b32 v{U+2*p+1}, 0xffff0000, v{XR+p}')
    A(f's_branch {Lj}')
    A(f'{Lm}:')
    A(f'v_sub_u32 v{vT0}, 107, v{vN0}')
    chunk(vXm,vT0)
    A(f'v_add_u32 v{vT0}, 1, v{vT0}')
    A(f'v_cmp_eq_u32 vcc, 72, v{vT0}')
    A('s_nop 1')
    A(f'v_cndmask_b32 v{vT0}, v{vT0}, 36, vcc')
    chunk(vXe,vT0)
    A(f'buffer_load_dwordx4 {v(XR,4)}, v{vXm}, s[16:19], s30 offen')
    A(f'buffer_load_ushort v{XE}, v{vXe}, s[16:19], s30 offen')
    A('s_waitcnt vmcnt(0)')
    A(f'v_lshlrev_b32 v{U}, 16, v{XE}')
    for q in range(1,8):
        e=8-q
        if e%2==0: A(f'v_lshlrev_b32 v{U+q}, 16, v{XR+(e>>1)}')
        else: A(f'v_and_b32 v{U+q}, 0xffff0000, v{XR+(e>>1)}')
    A(f'{Lj}:')
    A.stamp(2)
    T=U+8
    for fc in range(NP):
        for p in range(4):
            if fc==0:
                A(f'v_lshlrev_b32 v{AC+2*p}, 16, v{PD+p}')
                A(f'v_and_b32 v{AC+2*p+1}, 0xffff0000, v{PD+p}')
            else:
                A(f'v_lshlrev_b32 v{T+2*p}, 16, v{PD+4*fc+p}')
                A(f'v_and_b32 v{T+2*p+1}, 0xffff0000, v{PD+4*fc+p}')
                A(f'v_pk_add_f32 {v(AC+2*p,2)}, {v(AC+2*p,2)}, {v(T+2*p,2)}')
    def rnd():
        for p in range(4): A(f'v_cvt_pk_bf16_f32 v{T+p}, v{AC+2*p}, v{AC+2*p+1}')
        for p in range(4):
            A(f'v_lshlrev_b32 v{AC+2*p}, 16, v{T+p}')
            A(f'v_and_b32 v{AC+2*p+1}, 0xffff0000, v{T+p}')
    rnd()
    for p in range(4): A(f'v_pk_mul_f32 {v(AC+2*p,2)}, {v(AC+2*p,2)}, {v(GB+2*p,2)}')
    rnd()
    for p in range(4): A(f'v_pk_add_f32 {v(AC+2*p,2)}, {v(AC+2*p,2)}, {v(U+2*p,2)}')
    for p in range(4): A(f'v_cvt_pk_bf16_f32 v{T+p}, v{AC+2*p}, v{AC+2*p+1}')
    A(f'buffer_store_dwordx4 {v(T,4)}, v{vO}, s[20:23], 0 offen')
    A(f'{Lend}:')
    A.endpgm()
    A.end(name, 120, 40)
```

```python
from asmlib import *
from gen1 import *
from gen4 import Cnt

def gen_k4b(A, name='k4_mlp_kernel', store_flags='', prewarm=True, codewarm=True, dma=True, samesrc=False):
    NW=256; TILE=36864; L_HB=4*TILE; L_GS=L_HB+8192
    A.launch(name, NW, 256, L_GS+5120)
    A.begin(name)
    Lend=A.label('k4_end'); Lcode=A.label('k4_code')
    load_srds(A,[('ws',16),('w1',20),('w2',24)])
    A(f's_cmp_ge_u32 s2, {NW}')
    A(f's_cbranch_scc1 {Lend}')
    sFC,sMT,sW,sSrc,sM0,sDst=28,29,30,31,32,33
    vL16,vT0,vT1,vT2=1,2,3,4
    vRd=5
    vHBw,vGS,vR,vNmr,vHW=9,10,11,12,13
    VA,VB,VC=14,23,32
    FR=44
    TP=60
    ACC=92
    NV=236
    acc=lambda q,b: ACC+16*q+4*b
    A(f's_and_b32 s{sFC}, s2, 7')
    A(f's_lshr_b32 s{sMT}, s2, 3')
    A(f'v_lshrrev_b32 v{vT0}, 6, v0')
    A(f'v_and_b32 v{vT1}, 63, v0')
    A(f'v_readfirstlane_b32 s{sW}, v{vT0}')
    A(f'v_lshlrev_b32 v{vL16}, 4, v{vT1}')
    vm=Cnt('vm',63); lg=Cnt('lgkm',15)
    def vmwait(i):
        w=vm.need(i)
        if w is not None: A(f's_waitcnt vmcnt({w})')
    def lgwait(i):
        w=lg.need(i)
        if w is not None: A(f's_waitcnt lgkmcnt({w})')
    A(f's_lshl_b32 s34, s{sMT}, 2')
    A(f's_add_u32 s34, s34, s{sW}')
    A(f's_mul_i32 s35, s34, {18*1024}')
    A(f's_add_u32 s35, s35, {WS_X2}')
    A(f'v_and_b32 v{vT0}, 15, v0')
    A(f's_lshl_b32 s36, s34, 4')
    A(f'v_add_u32 v{vT0}, s36, v{vT0}')
    A(f'v_lshlrev_b32 v{vT0}, 6, v{vT0}')
    A(f's_mov_b32 s36, {WS_STAT}')
    A(f's_lshl_b32 s37, s{sW}, 10')
    A(f's_add_u32 m0, s37, {L_GS}')
    A(f's_add_u32 s37, s37, {WS_MOD+3*2304}')
    A('s_waitcnt lgkmcnt(0)')
    ST=TP
    for i in range(3):
        A(f'buffer_load_dwordx4 {v(ST+4*i,4)}, v{vT0}, s[16:19], s36 offen offset:{16*i}'); sid=vm.issue()
    A(f'buffer_load_dwordx4 v{vL16}, s[16:19], s37 offen lds'); vm.issue()
    A(f's_mov_b32 m0, {L_GS+4096}')
    A(f's_mov_b32 s37, {WS_MOD+3*2304+4096}')
    A(f'buffer_load_dwordx4 v{vL16}, s[16:19], s37 offen lds'); gid=vm.issue()
    xid=[]
    def xload(ks):
        A(f'buffer_load_dwordx4 {a(4*ks,4)}, v{vL16}, s[16:19], s35 offen offset:{(ks&3)*1024}'); xid.append(vm.issue())
        if ks&3==3: A('s_add_u32 s35, s35, 4096')
    for ks in range(4): xload(ks)
    A(f's_lshl_b32 s36, s{sW}, 3')
    A('s_movk_i32 s37, 911')
    for j in range(9):
        A(f'v_add_u32 v{vT0}, {64*j}, v{vT1}')
        A(f'v_mul_u32_u24 v{vT2}, s37, v{vT0}')
        A(f'v_lshrrev_b32 v{vT2}, 16, v{vT2}')
        A(f'v_mul_u32_u24 v{VC+j}, 72, v{vT2}')
        A(f'v_sub_u32 v{vT0}, v{vT0}, v{VC+j}')
        A(f'v_add_u32 v{vT2}, s36, v{vT2}')
        A(f'v_and_b32 v{VC+j}, 6, v{vT2}')
        A(f'v_xor_b32 v{vT0}, v{vT0}, v{VC+j}')
        A(f'v_lshlrev_b32 v{vT0}, 4, v{vT0}')
        A(f'v_mul_u32_u24 v{VC+j}, 1152, v{vT2}')
        A(f'v_add_u32 v{VC+j}, v{VC+j}, v{vT0}')
        A(f'v_and_b32 v{VA+j}, 3, v{vT2}')
        A(f'v_bfe_u32 v{VB+j}, v{vT2}, 2, 2')
        A(f'v_lshl_or_b32 v{VA+j}, v{VB+j}, 3, v{VA+j}')
        A(f'v_bfe_u32 v{VB+j}, v{vT2}, 4, 1')
        A(f'v_lshl_or_b32 v{VA+j}, v{VB+j}, 2, v{VA+j}')
        A(f'v_sub_u32 v{VB+j}, 31, v{VA+j}')
        A(f'v_mul_u32_u24 v{VA+j}, 9216, v{VA+j}')
        A(f'v_mul_u32_u24 v{VB+j}, 9216, v{VB+j}')
        A(f'v_add_u32 v{VA+j}, v{VA+j}, v{vT0}')
        A(f'v_add_u32 v{VB+j}, v{VB+j}, v{vT0}')
    A(f's_mul_i32 s{sM0}, s{sW}, 9216')
    A(f's_mul_i32 s38, s{sFC}, 1152')
    A(f's_mul_i32 s39, s{sFC}, {576*1152}')
    tile_id={}
    def dma_ops(i):
        ops=[]
        if i>=36: return ops
        sSrc=44+(i&3)
        def piece(j):
            def f():
                if j==0:
                    if i<9: A(f's_add_u32 s{sSrc}, s38, {i*32*9216}')
                    elif i==9: A(f's_mov_b32 s{sSrc}, s38')
                    elif i<18: A(f's_add_u32 s{sSrc}, s38, {(833-32*i)*9216}')
                    else: A(f's_add_u32 s{sSrc}, s39, {(i-18)*TILE}')
                A(f's_add_u32 m0, s{sM0}, {(i&3)*TILE+1024*j}')
                if i==9:
                    A(f'v_cmp_le_u32 vcc, {31*9216}, v{VB+j}')
                    A(f'v_add_u32 v{VA+j}, {545*9216}, v{VB+j}')
                    A(f'v_add_u32 v{vT2}, {257*9216}, v{VB+j}')
                    A(f'v_cndmask_b32 v{VA+j}, v{VA+j}, v{vT2}, vcc')
                else:
                    A('s_nop 0')
                vo = VA+j if i<=9 else (VB+j if i<18 else VC+j)
                srd='s[20:23]' if i<18 else 's[24:27]'
                if samesrc: vo=VC+j; srd='s[24:27]'
                if dma:
                    A(f'buffer_load_dwordx4 v{vo}, {srd}, s{39 if samesrc else sSrc} offen lds')
                    tile_id[i]=vm.issue()
                else: tile_id[i]=0
            return f
        return [piece(j) for j in range(9)]
    for f in dma_ops(0): f()
    for ks in range(4,18): xload(ks)
    for f in dma_ops(1): f()
    PW=41
    if prewarm:
        A('s_movk_i32 s37, 7282')
        A(f'v_mul_u32_u24 v{vT0}, s37, v0')
        A(f'v_lshrrev_b32 v{vT0}, 16, v{vT0}')
        A(f'v_mul_u32_u24 v{vT2}, 9, v{vT0}')
        A(f'v_sub_u32 v{vT2}, v0, v{vT2}')
        A(f'v_mul_u32_u24 v{vT0}, 9216, v{vT0}')
        A(f'v_lshl_add_u32 v{vT0}, v{vT2}, 7, v{vT0}')
        A(f's_mul_i32 s37, s{sMT}, {18*9216}')
        A('s_add_u32 s37, s37, s38')
        A(f'v_lshlrev_b32 v{vT2}, 7, v0')
        A(f's_mul_i32 s40, s{sMT}, {18*1152}')
        A('s_add_u32 s40, s40, s39')
        A('v_cmp_gt_u32 vcc, 162, v0')
        A(f'v_mov_b32 v{PW}, 0x40000000')
        A('s_nop 0')
        A(f'v_cndmask_b32 v{vT0}, v{PW}, v{vT0}, vcc')
        A(f'v_cndmask_b32 v{vT2}, v{PW}, v{vT2}, vcc')
        A(f'buffer_load_dword v{PW}, v{vT0}, s[20:23], s37 offen'); vm.issue()
        A(f'buffer_load_dword v{PW+1}, v{vT2}, s[24:27], s40 offen'); vm.issue()
    if codewarm:
        A('s_getpc_b64 s[40:41]')
        A(f'{Lcode}:')
        A(f'v_lshlrev_b32 v{vT0}, 7, v0')
        A(f'v_min_u32 v{vT0}, {Lend}-{Lcode}, v{vT0}')
        A(f'global_load_dword v{PW+2}, v{vT0}, s[40:41]'); vm.issue()
    for f in dma_ops(2): f()
    A(f'v_lshrrev_b32 v{vT0}, 2, v{vT1}')
    A(f'v_bfe_u32 v{vT2}, v{vT1}, 3, 2')
    A(f'v_mul_u32_u24 v{vT0}, 1152, v{vT0}')
    A(f'v_and_b32 v{vHW}, 3, v{vT1}')
    A(f'v_lshl_add_u32 v{vT0}, v{vHW}, 3, v{vT0}')
    A(f's_mul_i32 s36, s{sW}, 9')
    for qq in range(4):
        A(f's_add_u32 s37, s36, {qq}')
        A(f'v_xor_b32 v{vRd+qq}, s37, v{vT2}')
        A(f'v_lshl_add_u32 v{vRd+qq}, v{vRd+qq}, 5, v{vT0}')
    A(f's_lshl_b32 s37, s{sW}, 10')
    A(f's_add_u32 s37, s37, {L_HB}')
    A(f'v_add_u32 v{vHBw}, s37, v{vL16}')
    A(f'v_lshrrev_b32 v{vGS}, 4, v{vT1}')
    A(f'v_lshlrev_b32 v{vGS}, 5, v{vGS}')
    A(f'v_add_u32 v{vGS}, {L_GS}, v{vGS}')
    vHBr=vT1
    A(f's_lshl_b32 s37, s{sFC}, 5')
    A(f's_add_u32 s37, s37, s{sMT}')
    A(f's_mul_i32 s{sDst}, s37, {72*1024}')
    A(f's_mul_i32 s37, s{sW}, {18*1024}')
    A(f's_add_u32 s{sDst}, s{sDst}, s37')
    A(f's_add_u32 s{sDst}, s{sDst}, {WS_PART}')
    A('s_lshr_b32 s37, s36, 1'); A('s_lshl_b32 s37, s37, 12'); A('s_and_b32 s40, s36, 1'); A('s_lshl_b32 s40, s40, 3'); A('s_add_u32 s42, s37, s40')
    A('s_add_u32 s36, s36, 1')
    A('s_lshr_b32 s37, s36, 1'); A('s_lshl_b32 s37, s37, 12'); A('s_and_b32 s40, s36, 1'); A('s_lshl_b32 s40, s40, 3'); A('s_add_u32 s43, s37, s40')
    A(f'v_add_u32 v{vHBr}, {L_HB}, v{vL16}')
    A.stamp(1)
    vmwait(sid)
    for i in range(1,6):
        A(f'v_pk_add_f32 {v(ST,2)}, {v(ST,2)}, {v(ST+2*i,2)}')
    A(f's_mov_b32 s36, 0x3ae38e39')
    A(f's_mov_b32 s37, 0x3727c5ac')
    A(f'v_mul_f32 v{ST}, s36, v{ST}')
    A(f'v_mul_f32 v{ST+1}, s36, v{ST+1}')
    A(f'v_fma_f32 v{ST+1}, -v{ST}, v{ST}, v{ST+1}')
    A(f'v_max_f32 v{ST+1}, 0, v{ST+1}')
    bf16_round(A,f'v{ST+1}',f'v{ST+1}')
    A(f'v_add_f32 v{ST+1}, s37, v{ST+1}')
    bf16_round(A,f'v{ST+1}',f'v{ST+1}')
    A(f'v_sqrt_f32 v{ST+1}, v{ST+1}')
    A('s_nop 0')
    bf16_round(A,f'v{ST+1}',f'v{ST+1}')
    A(f'v_rcp_f32 v{vR}, v{ST+1}')
    bf16_round(A,f'v{ST}',f'v{ST}')
    A(f'v_mul_f32 v{vNmr}, -v{ST}, v{vR}')
    for f in dma_ops(3): f()
    vmwait(gid)
    A('s_barrier')
    GSr=TP; UX=TP+16; RW=TP+24; HO=TP+28
    hw_id={}
    def norm_ops(ks):
        ops=[]; st={}
        def rd(k):
            def f():
                A(f'ds_read_b128 {v(GSr+4*k,4)}, v{vGS} offset:{(k>>1)*2304+128*ks+16*(k&1)}'); st['g']=lg.issue()
            return f
        for k in range(4): ops.append(rd(k))
        ops.append(lambda: vmwait(xid[ks]))
        for p in range(4): ops.append(lambda p=p: A(f'v_accvgpr_read_b32 v{RW+p}, a{4*ks+p}'))
        for p in range(4):
            ops.append(lambda p=p: A(f'v_lshlrev_b32 v{UX+2*p}, 16, v{RW+p}'))
            ops.append(lambda p=p: A(f'v_and_b32 v{UX+2*p+1}, 0xffff0000, v{RW+p}'))
        for e in range(8): ops.append(lambda e=e: A(f'v_fma_f32 v{UX+e}, v{UX+e}, v{vR}, v{vNmr}'))
        ops.append(lambda: lgwait(st['g']))
        for e in range(8): ops.append(lambda e=e: A(f'v_fma_f32 v{UX+e}, v{UX+e}, v{GSr+8+e}, v{GSr+e}'))
        for p in range(4): ops.append(lambda p=p: A(f'v_cvt_pk_bf16_f32 v{HO+p}, v{UX+2*p}, v{UX+2*p+1}'))
        def wr():
            A(f'ds_write_b128 v{vHBw}, {v(HO,4)} offset:{(ks&1)*4096}'); hw_id[ks]=lg.issue()
        ops.append(wr)
        return ops
    for f in norm_ops(0): f()
    A.stamp(2)
    rd_id={}; b_id={}; h_id={}
    curbuf=[0]
    def a_read(n):
        i,q=divmod(n,9)
        if i>=36: return
        if q==0 and i>0:
            d = TILE if (i&3) else -3*TILE
            for qq in range(4): A(f'v_add_u32 v{vRd+qq}, {d}, v{vRd+qq}')
        r=FR+4*(n&3)
        off=128*(q>>2)
        A(f'ds_read_b64_tr_b16 {v(r,2)}, v{vRd+(q&3)} offset:{off}'); lg.issue()
        A(f'ds_read_b64_tr_b16 {v(r+2,2)}, v{vRd+(q&3)} offset:{off+16*1152}'); rd_id[n]=lg.issue()
    def b_read(ks):
        for b in range(4):
            A(f'ds_read_b128 {a(72+16*(ks&1)+4*b,4)}, v{vHBr} offset:{(ks&1)*4096+1024*b}'); b_id[ks]=lg.issue()
    def H1reg(k,b):
        idx=4*k+b
        return a(4*idx,4) if idx<64 else v(TP+4*(idx-64),4)
    def barrier(i):
        if i<36: vmwait(tile_id[i])
        lgwait(lg.n)
        A('s_barrier')
    slots={}
    def add(m,f): slots.setdefault(m,[]).append(f)
    def spread(ops,m0,m1):
        n=len(ops)
        for x,o in enumerate(ops): add(m0+(x*(m1-m0))//max(n,1), o)
    for i in range(36):
        M=36*i
        for s_ in range(0,6): add(M+4*s_, lambda n=9*i+s_+3: a_read(n))
        if i<35:
            def bar(i=i):
                barrier(i+1)
                a_read(9*(i+1));
                if i+1<18: b_read(i+1)
                a_read(9*(i+1)+1)
            add(M+4*7-1, bar)
            add(M+4*8, lambda n=9*(i+1)+2: a_read(n))
        t=i+4
        if t not in (20,21):
            for j,o in enumerate(dma_ops(t)): add(M+4*7+4*j+2, o)
        if i+1<18:
            spread(norm_ops(i+1), M+1, M+24)
    def cvt_ops(q,b,relu):
        r=acc(q,b); ops=[]
        ops.append(lambda: A(f'v_cvt_pk_bf16_f32 v{r}, v{r}, v{r+1}'))
        ops.append(lambda: A(f'v_cvt_pk_bf16_f32 v{r+1}, v{r+2}, v{r+3}'))
        if relu:
            ops.append(lambda: A(f'v_pk_max_i16 v{r}, v{r}, 0'))
            ops.append(lambda: A(f'v_pk_max_i16 v{r+1}, v{r+1}, 0'))
        return ops
    barrier(0)
    a_read(0); b_read(0); a_read(1); a_read(2)
    A.stamp(3)
    def run(m_from,m_to):
        for m in range(m_from,m_to):
            n,b=divmod(m,4); i,q=divmod(n,9)
            if b==0:
                lgwait(rd_id[n])
                if i<18 and q==0: lgwait(b_id[i])
            if i<18: B=a(72+16*(i&1)+4*b,4)
            else:
                B=H1reg(i-18,b)
                if q==0: lgwait(h_id[(i-18,b)])
            first = i in (0,18)
            c='0' if first else v(acc(q,b),4)
            A(f'v_mfma_f32_16x16x32_bf16 {v(acc(q,b),4)}, {v(FR+4*(n&3),4)}, {B}, {c}')
            for f in slots.get(m,[]): f()
    M17=36*17
    for q in range(6):
        ops=[]
        for b in range(4): ops+=cvt_ops(q,b,True)
        spread(ops, M17+4*q+12, M17+4*q+16)
    run(0,36*18)
    A.stamp(4)
    A(f'v_add_u32 v{vT0}, s42, v{vL16}')
    A(f'v_add_u32 v{vT2}, s43, v{vL16}')
    def h_write(q,b):
        A(f'ds_write_b64 v{vT0 if q%2==0 else vT2}, {v(acc(q,b),2)} offset:{(q>>1)*4096+1024*b}'); lg.issue()
        if lg.n-lg.done>12: lgwait(lg.n-8)
    for q in range(6):
        for b in range(4): h_write(q,b)
    for q in range(6,9):
        for b in range(4):
            for o in cvt_ops(q,b,True): o()
        for b in range(4): h_write(q,b)
    lgwait(lg.n)
    A('s_barrier')
    A(f'v_add_u32 v{vT0}, {TILE}, v{vL16}')
    def h_read(k,b):
        idx=4*k+b
        base = vL16 if idx<36 else vT0
        A(f'ds_read_b128 {H1reg(k,b)}, v{base} offset:{(idx%36)*1024}'); h_id[(k,b)]=lg.issue()
        if lg.n-lg.done>13: lgwait(lg.n-10)
    for b in range(4): h_read(0,b)
    M18=36*18
    rest=[(k,b) for k in range(1,18) for b in range(4)]
    r0=[x for x in rest if x[0]<9]; r1=[x for x in rest if x[0]>=9]
    spread([lambda x=x: h_read(*x) for x in r0], M18, M18+26)
    spread([lambda x=x: h_read(*x) for x in r1], M18+28, M18+36+26)
    for j,o in enumerate(dma_ops(20)): add(M18+4*7+j, o)
    for j,o in enumerate(dma_ops(21)): add(M18+36+4*7+j, o)
    A.stamp(5)
    M35=36*35
    def st_ops(q,be):
        r0_=acc(q,2*be); r1_=acc(q,2*be+1); ops=[]
        ops.append(lambda: A(f'v_cvt_pk_bf16_f32 v{r0_}, v{r0_}, v{r0_+1}'))
        ops.append(lambda: A(f'v_cvt_pk_bf16_f32 v{r0_+1}, v{r0_+2}, v{r0_+3}'))
        ops.append(lambda: A(f'v_cvt_pk_bf16_f32 v{r0_+2}, v{r1_}, v{r1_+1}'))
        ops.append(lambda: A(f'v_cvt_pk_bf16_f32 v{r0_+3}, v{r1_+2}, v{r1_+3}'))
        def st():
            blk=2*q+be
            A(f'buffer_store_dwordx4 {v(r0_,4)}, v{vL16}, s[16:19], s{sDst} offen offset:{(blk&3)*1024} {store_flags}'); vm.issue()
            if blk&3==3: A(f's_add_u32 s{sDst}, s{sDst}, 4096')
        ops.append(st)
        return ops
    for q in range(6):
        spread(st_ops(q,0)+st_ops(q,1), M35+4*q+12, M35+4*q+16)
    run(36*18,36*36)
    A.stamp(6)
    for q in range(6,9):
        if q==8: A('s_nop 7')
        for o in st_ops(q,0)+st_ops(q,1): o()
    A(f'{Lend}:')
    A.endpgm()
    A.end(name, NV, 64, agpr=256)

def gen_k5b(A, name='k5_red_kernel'):
    NW=576
    A.launch(name, NW, 256, 0)
    A.begin(name)
    Lend=A.label('k5_end'); Lm=A.label('k5_m'); Lj=A.label('k5_j')
    load_srds(A,[('ws',16),('out',20)])
    A(f's_cmp_ge_u32 s2, {NW}')
    A(f's_cbranch_scc1 {Lend}')
    vT0,vT1,vG,vLane,vGq,vC,vXm,vXe,vN4,vO=1,2,3,4,5,6,7,8,9,10
    PD=12
    XR=44; XE=48; GB=52; AC=56; U=64; T=72
    A(f'v_lshrrev_b32 v{vT0}, 6, v0')
    A(f's_lshl_b32 s24, s2, 12')
    A(f'v_readfirstlane_b32 s25, v{vT0}')
    A(f'v_lshlrev_b32 v{vG}, 4, v0')
    A(f's_add_u32 s24, s24, {WS_PART}')
    A('s_waitcnt lgkmcnt(0)')
    for fc in range(8):
        A(f'buffer_load_dwordx4 {v(PD+4*fc,4)}, v{vG}, s[16:19], s24 offen')
        if fc<7: A(f's_add_u32 s24, s24, {32*72*1024}')
    A('s_lshl_b32 s26, s2, 2')
    A('s_add_u32 s26, s26, s25')
    A(f's_mul_hi_u32 s27, s26, {(2**32+71)//72}')
    A('s_mul_i32 s28, s27, 72')
    A('s_sub_u32 s28, s26, s28')
    A('s_and_b32 s29, s28, 1')
    A('s_lshr_b32 s28, s28, 1')
    A('s_lshl_b32 s27, s27, 1')
    A('s_add_u32 s27, s27, s29')
    A(f'v_and_b32 v{vLane}, 63, v0')
    A(f'v_lshrrev_b32 v{vGq}, 4, v{vLane}')
    A(f'v_and_b32 v{vC}, 15, v{vLane}')
    A('s_lshl_b32 s29, s28, 2')
    A(f'v_add_u32 v{vN4}, s29, v{vGq}')
    def quad(dst,k4):
        A(f'v_lshrrev_b32 v{vT1}, 1, v{k4}')
        A(f'v_lshlrev_b32 v{dst}, 8, v{vT1}')
        A(f'v_and_b32 v{vT1}, 1, v{k4}')
        A(f'v_lshl_add_u32 v{dst}, v{vT1}, 3, v{dst}')
        A(f'v_lshl_add_u32 v{dst}, v{vC}, 4, v{dst}')
    A(f's_mul_i32 s30, s27, {36*1024}')
    A(f's_add_u32 s30, s30, {WS_X2}')
    A(f's_add_u32 s32, s30, {18*1024}')
    A(f'v_lshlrev_b32 v{vT0}, 4, v{vN4}')
    A(f's_mov_b32 s31, {WS_MOD+5*576*4}')
    A(f'buffer_load_dwordx4 {v(GB,4)}, v{vT0}, s[16:19], s31 offen')
    A('s_lshl_b32 s31, s27, 5')
    A(f'v_add_u32 v{vO}, s31, v{vC}')
    A(f'v_mul_u32_u24 v{vO}, 1152, v{vO}')
    A(f'v_lshl_add_u32 v{vO}, v{vN4}, 3, v{vO}')
    A.stamp(1)
    A('s_cmp_ge_u32 s28, 18')
    A(f's_cbranch_scc1 {Lm}')
    quad(vXm,vN4)
    A(f'buffer_load_dwordx2 {v(XR,2)}, v{vXm}, s[16:19], s30 offen')
    A(f'buffer_load_dwordx2 {v(XR+2,2)}, v{vXm}, s[16:19], s32 offen')
    A('s_waitcnt vmcnt(0)')
    for p in range(4):
        A(f'v_lshlrev_b32 v{U+2*p}, 16, v{XR+p}')
        A(f'v_and_b32 v{U+2*p+1}, 0xffff0000, v{XR+p}')
    A(f's_branch {Lj}')
    A(f'{Lm}:')
    A(f'v_sub_u32 v{vT0}, 215, v{vN4}')
    quad(vXm,vT0)
    A(f'v_add_u32 v{vT0}, 1, v{vT0}')
    A(f'v_cmp_eq_u32 vcc, 144, v{vT0}')
    A(f'v_mov_b32 v{vXe}, 72')
    A('s_nop 0')
    A(f'v_cndmask_b32 v{vT0}, v{vT0}, v{vXe}, vcc')
    quad(vXe,vT0)
    A(f'buffer_load_dwordx2 {v(XR,2)}, v{vXm}, s[16:19], s30 offen')
    A(f'buffer_load_dwordx2 {v(XR+2,2)}, v{vXm}, s[16:19], s32 offen')
    A(f'buffer_load_ushort v{XE}, v{vXe}, s[16:19], s30 offen')
    A(f'buffer_load_ushort v{XE+1}, v{vXe}, s[16:19], s32 offen')
    A('s_waitcnt vmcnt(0)')
    for h in range(2):
        A(f'v_lshlrev_b32 v{U+4*h}, 16, v{XE+h}')
        A(f'v_and_b32 v{U+4*h+1}, 0xffff0000, v{XR+2*h+1}')
        A(f'v_lshlrev_b32 v{U+4*h+2}, 16, v{XR+2*h+1}')
        A(f'v_and_b32 v{U+4*h+3}, 0xffff0000, v{XR+2*h}')
    A(f'{Lj}:')
    A.stamp(2)
    for fc in range(8):
        for p in range(4):
            if fc==0:
                A(f'v_lshlrev_b32 v{AC+2*p}, 16, v{PD+p}')
                A(f'v_and_b32 v{AC+2*p+1}, 0xffff0000, v{PD+p}')
            else:
                A(f'v_lshlrev_b32 v{T+2*p}, 16, v{PD+4*fc+p}')
                A(f'v_and_b32 v{T+2*p+1}, 0xffff0000, v{PD+4*fc+p}')
                A(f'v_pk_add_f32 {v(AC+2*p,2)}, {v(AC+2*p,2)}, {v(T+2*p,2)}')
    def rnd():
        for p in range(4): A(f'v_cvt_pk_bf16_f32 v{T+p}, v{AC+2*p}, v{AC+2*p+1}')
        for p in range(4):
            A(f'v_lshlrev_b32 v{AC+2*p}, 16, v{T+p}')
            A(f'v_and_b32 v{AC+2*p+1}, 0xffff0000, v{T+p}')
    rnd()
    for p in range(4): A(f'v_pk_mul_f32 {v(AC+2*p,2)}, {v(AC+2*p,2)}, {v(GB+2*(p&1),2)}')
    rnd()
    for p in range(4): A(f'v_pk_add_f32 {v(AC+2*p,2)}, {v(AC+2*p,2)}, {v(U+2*p,2)}')
    for p in range(4): A(f'v_cvt_pk_bf16_f32 v{T+p}, v{AC+2*p}, v{AC+2*p+1}')
    A(f's_movk_i32 s31, {16*1152}')
    A(f'buffer_store_dwordx2 {v(T,2)}, v{vO}, s[20:23], 0 offen')
    A(f'buffer_store_dwordx2 {v(T+2,2)}, v{vO}, s[20:23], s31 offen')
    A('code_end:')
    A(f'{Lend}:')
    A.endpgm()
    A.end(name, 80, 40)
```

```python
from asmlib import *
from gen1 import *
from gen4 import Cnt

WS_CNT=0x0050000
OOB=0x40000000

def out_block_pre(A, R, sU, sBeta, sMT, vLane, tag):
    vO,vA,vB,vN=R,R+1,R+2,R+3
    Lm=A.label('ob_m'); Lj=A.label('ob_j')
    A(f'v_lshrrev_b32 v{vN}, 4, v{vLane}')
    A(f's_lshl_b32 s54, s{sU}, 2')
    A(f'v_add_u32 v{vN}, s54, v{vN}')
    A(f's_lshl_b32 s55, s{sMT}, 1'); A(f's_add_u32 s55, s55, s{sBeta}')
    A(f's_mul_i32 s56, s55, {36*1024}'); A(f's_add_u32 s56, s56, {WS_X2}'); A(f's_add_u32 s57, s56, {18*1024}')
    A(f'v_lshlrev_b32 v{vA}, 4, v{vN}')
    A(f's_mov_b32 s54, {WS_MOD+5*576*4}')
    A(f'buffer_load_dwordx4 {v(R+4,4)}, v{vA}, s[16:19], s54 offen')
    A('s_lshl_b32 s55, s55, 5')
    A(f'v_and_b32 v{vB}, 15, v{vLane}')
    A(f'v_add_u32 v{vO}, s55, v{vB}')
    A(f'v_mul_u32_u24 v{vO}, 1152, v{vO}')
    A(f'v_lshl_add_u32 v{vO}, v{vN}, 3, v{vO}')
    A(f'v_lshlrev_b32 v{vB}, 4, v{vB}')
    def quad(dst,k4,t):
        A(f'v_lshrrev_b32 v{t}, 1, v{k4}'); A(f'v_lshl_add_u32 v{dst}, v{t}, 8, v{vB}')
        A(f'v_and_b32 v{t}, 1, v{k4}'); A(f'v_lshl_add_u32 v{dst}, v{t}, 3, v{dst}')
    A(f's_cmp_lt_u32 s{sU}, 18')
    A(f's_cbranch_scc1 {Lj}')
    A(f'v_sub_u32 v{vN}, 216, v{vN}')
    A(f'v_cmp_eq_u32 vcc, 144, v{vN}'); A(f'v_mov_b32 v{R+12}, 72'); A('s_nop 0')
    A(f'v_cndmask_b32 v{R+12}, v{vN}, v{R+12}, vcc')
    quad(vA,R+12,R+13)
    A(f'buffer_load_ushort v{R+12}, v{vA}, s[16:19], s56 offen')
    A(f'buffer_load_ushort v{R+13}, v{vA}, s[16:19], s57 offen')
    A(f'v_add_u32 v{vN}, -1, v{vN}')
    A(f'{Lj}:')
    quad(vA,vN,R+14)
    A(f'buffer_load_dwordx2 {v(R+8,2)}, v{vA}, s[16:19], s56 offen')
    A(f'buffer_load_dwordx2 {v(R+10,2)}, v{vA}, s[16:19], s57 offen')

def out_block_post(A, R, sU, AC, T):
    Lm=A.label('op_m'); Lj=A.label('op_j')
    XR=R+8; XE=R+12
    A(f's_cmp_ge_u32 s{sU}, 18')
    A(f's_cbranch_scc1 {Lm}')
    for p in range(4):
        A(f'v_lshlrev_b32 v{T+2*p}, 16, v{XR+p}'); A(f'v_and_b32 v{T+2*p+1}, 0xffff0000, v{XR+p}')
    A(f's_branch {Lj}')
    A(f'{Lm}:')
    for h in range(2):
        A(f'v_lshlrev_b32 v{T+4*h}, 16, v{XE+h}')
        A(f'v_and_b32 v{T+4*h+1}, 0xffff0000, v{XR+2*h+1}')
        A(f'v_lshlrev_b32 v{T+4*h+2}, 16, v{XR+2*h+1}')
        A(f'v_and_b32 v{T+4*h+3}, 0xffff0000, v{XR+2*h}')
    A(f'{Lj}:')
    for i in range(8): A(f'v_fmac_f32 v{T+i}, v{AC+i}, v{R+4+(i&3)}')
    for p in range(4): A(f'v_cvt_pk_bf16_f32 v{AC+p}, v{T+2*p}, v{T+2*p+1}')
    A(f's_movk_i32 s54, {16*1152}')
    A(f'buffer_store_dwordx2 {v(AC,2)}, v{R}, s[64:67], 0 offen')
    A(f'buffer_store_dwordx2 {v(AC+2,2)}, v{R}, s[64:67], s54 offen')

def add_partial(A, AC, P, T, first=False):
    for p in range(4):
        if first:
            A(f'v_lshlrev_b32 v{AC+2*p}, 16, v{P+p}'); A(f'v_and_b32 v{AC+2*p+1}, 0xffff0000, v{P+p}')
        else:
            A(f'v_lshlrev_b32 v{T}, 16, v{P+p}'); A(f'v_and_b32 v{T+1}, 0xffff0000, v{P+p}')
            A(f'v_add_f32 v{AC+2*p}, v{AC+2*p}, v{T}'); A(f'v_add_f32 v{AC+2*p+1}, v{AC+2*p+1}, v{T+1}')

def gen_k4e(A, name='k4_mlp_kernel', store_flags='sc1', prewarm=False, prio=2, XB=(6,6,6), XI=(1,3), recon=True, dma_on=True, st_on=True, SIG=18):
    NW=256; TILE=36864; L_HB=4*TILE; L_GS=L_HB+8192
    A.launch(name, NW, 512, L_GS+5120)
    A.begin(name)
    Lend=A.label('k4_end'); Lhelp=A.label('k4_help'); Lnorm=A.label('k4_norm')
    load_srds(A,[('ws',16),('w1',20),('w2',24),('out',64)])
    A(f's_cmp_ge_u32 s2, {NW}')
    A(f's_cbranch_scc1 {Lend}')
    sFC,sMT,sW,sM0,sDst=28,29,30,32,33
    vL16,vT0,vT1,vT2=1,2,3,4
    A(f's_and_b32 s{sFC}, s2, 7')
    A(f's_lshr_b32 s{sMT}, s2, 3')
    A(f'v_lshrrev_b32 v{vT0}, 6, v0')
    A(f'v_and_b32 v{vT1}, 63, v0')
    A(f'v_readfirstlane_b32 s{sW}, v{vT0}')
    A(f'v_lshlrev_b32 v{vL16}, 4, v{vT1}')
    A('s_nop 1')
    A(f's_cmp_ge_u32 s{sW}, 6')
    A(f's_cbranch_scc1 {Lnorm}')
    A(f's_cmp_ge_u32 s{sW}, 4')
    A(f's_cbranch_scc1 {Lhelp}')
    lg=Cnt('lgkm',15)
    def lgwait(i):
        w=lg.need(i)
        if w is not None: A(f's_waitcnt lgkmcnt({w})')
    def lgpre(k):
        if lg.n-lg.done+k>15: lgwait(lg.n-(15-k))
    vRd=5; vR2=9; vHBr=11
    NA=9
    FR=12
    BF=48
    OUT=80
    ACC=88
    acc=lambda q,b: ACC+16*q+4*b
    sCnt,sDel=46,47
    if prio==1: A('s_setprio 1')
    A(f'v_lshrrev_b32 v{vT0}, 2, v{vT1}')
    A(f'v_bfe_u32 v{vT2}, v{vT1}, 3, 2')
    A(f'v_and_b32 v{vHBr}, 3, v{vT1}')
    A(f'v_lshlrev_b32 v{vHBr}, 3, v{vHBr}')
    A(f'v_lshl_add_u32 v{vR2+1}, v{vT0}, 7, v{vHBr}')
    A(f'v_mul_u32_u24 v{vT0}, 1152, v{vT0}')
    A(f'v_add_u32 v{vT0}, v{vT0}, v{vHBr}')
    A(f's_mul_i32 s36, s{sW}, 9')
    for qq in range(4):
        A(f's_add_u32 s37, s36, {qq}')
        A(f'v_xor_b32 v{vRd+qq}, s37, v{vT2}')
        A(f'v_lshl_add_u32 v{vRd+qq}, v{vRd+qq}, 5, v{vT0}')
    A(f's_and_b32 s37, s{sW}, 2')
    A(f'v_add_u32 v{vR2+1}, {2*TILE}, v{vR2+1}')
    A(f'v_xor_b32 v{vT0}, s37, v{vT2}')
    A(f'v_lshl_add_u32 v{vR2}, v{vT0}, 5, v{vR2+1}')
    A(f'v_xor_b32 v{vT0}, 1, v{vT0}')
    A(f'v_lshl_add_u32 v{vR2+1}, v{vT0}, 5, v{vR2+1}')
    A(f'v_add_u32 v{vHBr}, {L_HB}, v{vL16}')
    A(f's_lshl_b32 s37, s{sFC}, 5')
    A(f's_add_u32 s37, s37, s{sMT}')
    A(f's_mul_i32 s{sDst}, s37, {72*1024}')
    A(f's_and_b32 s37, s{sW}, 2')
    A('s_lshl_b32 s37, s37, 11')
    A(f's_add_u32 s{sDst}, s{sDst}, s37')
    A(f's_and_b32 s37, s{sW}, 1')
    A('s_lshl_b32 s37, s37, 10')
    A(f's_add_u32 s{sDst}, s{sDst}, s37')
    A(f's_add_u32 s48, s{sDst}, {WS_PART}')
    A(f's_add_u32 s{sDst}, s48, {8*8192}')
    A(f's_mul_i32 s49, s{sMT}, {9*128}')
    A(f's_add_u32 s49, s49, {WS_CNT}')
    A(f's_add_u32 s61, s49, {8*128}')
    A(f's_mov_b32 s50, {WS_CNT+288*128}')
    A(f's_mov_b32 s51, s{sFC}')
    vAt,vOne=232,233
    A(f'v_cmp_eq_u32 vcc, 0, v{vT1}')
    A(f'v_mov_b32 v{vAt}, 0x{OOB:x}')
    A(f'v_mov_b32 v{vOne}, 1')
    A(f'v_cndmask_b32 v{vAt}, v{vAt}, 0, vcc')
    A('s_lshl_b32 s44, s37, 1')
    A('s_lshr_b32 s37, s36, 1'); A('s_lshl_b32 s37, s37, 12'); A('s_and_b32 s40, s36, 1'); A('s_lshl_b32 s40, s40, 3'); A('s_add_u32 s42, s37, s40')
    A('s_add_u32 s36, s36, 1')
    A('s_lshr_b32 s37, s36, 1'); A('s_lshl_b32 s37, s37, 12'); A('s_and_b32 s40, s36, 1'); A('s_lshl_b32 s40, s40, 3'); A('s_add_u32 s43, s37, s40')
    for r in range(144): A(f'v_mov_b32 v{ACC+r}, 0')
    A(f's_mov_b32 s{sCnt}, 0')
    A(f's_mov_b32 s{sDel}, {2*TILE}')
    A('s_waitcnt lgkmcnt(0)')
    if prewarm:
        A(f's_mul_i32 s39, s{sFC}, {576*1152}')
        A(f'v_min_u32 v{vT2}, 161, v0')
        A(f'v_lshlrev_b32 v{vT2}, 7, v{vT2}')
        A(f's_mul_i32 s40, s{sMT}, {18*1152}')
        A('s_add_u32 s40, s40, s39')
    rd_id={}; b_id={}; h_id={}
    def a_half(ph,t,q,h):
        r=FR+4*(q%NA)+2*h
        lgpre(1)
        toff = TILE if t==1 else 0
        if ph==1: A(f'ds_read_b64_tr_b16 {v(r,2)}, v{vRd+(q&3)} offset:{toff+128*(q>>2)+16*1152*h}')
        else:
            k,z=divmod(q,2)
            if t==1: A(f'ds_read_b64_tr_b16 {v(r,2)}, v{vRd+z} offset:{4096*k+2048*h}')
            else: A(f'ds_read_b64_tr_b16 {v(r,2)}, v{vR2+z} offset:{4096*k+2048*h}')
        rd_id[(t&1,q)]=lg.issue()
    def b_one(par,b):
        lgpre(1)
        A(f'ds_read_b128 {v(BF+16*par+4*b,4)}, v{vHBr} offset:{par*4096+1024*b}'); b_id[par]=lg.issue()
    H1=lambda k2,b: ACC+8*k2+4*b
    def barrier():
        lgwait(lg.n); A('s_barrier')
    AC2=BF; TM2=BF+16
    def cvt_ops(q,b):
        r=acc(q,b)
        return [lambda: A(f'v_cvt_pk_bf16_f32 v{r}, v{r}, v{r+1}'), lambda: A(f'v_cvt_pk_bf16_f32 v{r+1}, v{r+2}, v{r+3}'),
                lambda: A(f'v_pk_max_i16 v{r}, v{r}, 0'), lambda: A(f'v_pk_max_i16 v{r+1}, v{r+1}, 0')]
    class Sl:
        def __init__(s): s.d={}
        def add(s,m,f): s.d.setdefault(m,[]).append(f)
        def spread(s,ops,m0,m1):
            n=len(ops)
            for x,o in enumerate(ops): s.add(m0+(x*(m1-m0))//max(n,1), o)
        def rd2(s,m,ph,t,q):
            s.add(m,lambda: a_half(ph,t,q,0)); s.add(m+1,lambda: a_half(ph,t,q,1))
    TAIL1=[(20,'a',0,0),(21,'a',0,1),(22,'b',0,0),(23,'b',1,0),(24,'a',1,0),(25,'a',1,1),(26,'b',2,0),(27,'b',3,0),
           (28,'a',2,0),(29,'a',2,1),(30,'a',3,0),(31,'a',3,1),(32,'a',4,0),(33,'a',4,1)]
    G2=[26,26,27,27,28,28,29,30,30,31,32,33,34,35]
    def h_write(q,b):
        if lg.n-lg.done>=15: lgwait(lg.n-8)
        A(f'ds_write_b64 v{vT0 if q%2==0 else vT2}, {v(acc(q,b),2)} offset:{(q>>1)*4096+1024*b}'); lg.issue()
    def body1(last):
        S=Sl()
        for t in range(2):
            M=36*t
            for s_ in range(4): S.rd2(M+4*s_,1,t,s_+5)
            if t==1 and not last:
                for x in range(4): S.add(M+15+x, lambda x=x: A(f'v_add_u32 v{vRd+x}, s{sDel}, v{vRd+x}'))
            S.add(M+19, barrier)
            if t==1 and last:
                for f,m in enumerate((20,22,24,26,28,30,33)): S.rd2(M+m,2,0,f)
                for q in range(6):
                    ops=[]
                    for b in range(4): ops+=cvt_ops(q,b)
                    S.spread(ops, M+4*q+12, M+4*q+16)
            else:
                for (m,kind,x,h) in TAIL1:
                    if kind=='a': S.add(M+m, lambda t=t,x=x,h=h: a_half(1,t+1,x,h))
                    else: S.add(M+m, lambda t=t,x=x: b_one((t+1)&1,x))
        if not last:
            S.add(70, lambda: A(f's_sub_u32 s{sDel}, 0, s{sDel}'))
            S.add(70, lambda: A(f's_add_u32 s{sCnt}, s{sCnt}, 1'))
            S.add(71, lambda: A(f's_cmp_lt_u32 s{sCnt}, 8'))
        for m in range(72):
            t,mm=divmod(m,36); q,b=divmod(mm,4)
            if b==0:
                lgwait(rd_id[(t,q)])
                if q==0: lgwait(b_id[t])
            A(f'v_mfma_f32_16x16x32_bf16 {v(acc(q,b),4)}, {v(FR+4*q,4)}, {v(BF+16*t+4*b,4)}, {v(acc(q,b),4)}')
            for f in S.d.get(m,[]): f()
    def st_ops():
        ops=[]
        for z in range(2):
            o=OUT+4*z
            for b in range(2):
                r=TM2+8*z+4*b
                ops.append(lambda r=r,o=o,b=b: A(f'v_cvt_pk_bf16_f32 v{o+2*b}, v{r}, v{r+1}'))
                ops.append(lambda r=r,o=o,b=b: A(f'v_cvt_pk_bf16_f32 v{o+2*b+1}, v{r+2}, v{r+3}'))
            ops.append(lambda z=z,o=o: A(f'buffer_store_dwordx4 {v(o,4)}, v{vL16}, s[16:19], s{sDst} offen offset:{2048*z} {store_flags}'))
        return ops
    def signal_ops():
        return [lambda: A('s_waitcnt vmcnt(0)'), lambda: A(f'buffer_atomic_add v{vOne}, v{vAt}, s[16:19], s50 offen'), lambda: A('s_mov_b32 s50, s61')]
    def next_ops():
        def nxt():
            A('s_add_u32 s51, s51, 1'); A('s_and_b32 s51, s51, 7')
        def nxt2():
            A(f's_lshl_b32 s{sDst}, s51, 13'); A(f's_add_u32 s{sDst}, s{sDst}, s48')
        def nxt3():
            A('s_lshl_b32 s61, s51, 7'); A('s_add_u32 s61, s61, s49')
        return [nxt,nxt2,nxt3]
    def h_read(k2,b):
        lgpre(1)
        A(f'ds_read_b128 {v(H1(k2,b),4)}, v{vT0 if k2<9 else vT2} offset:{(k2%9)*4096+1024*b}'); h_id[(k2,b)]=lg.issue()
    def body2(first):
        S=Sl()
        for t in range(2):
            M=36*t
            for s_ in range(11): S.rd2(M+2*s_,2,t,s_+7)
            regs = vR2 if t==0 else vRd
            for x in range(2): S.add(M+22+x, lambda x=x,regs=regs: A(f'v_add_u32 v{regs+x}, s{sDel}, v{regs+x}'))
            S.add(M+25, barrier)
            seq=[(f,h) for f in range(7) for h in range(2)]
            for (f,h),g in zip(seq,G2): S.add(M+g, lambda t=t,f=f,h=h: a_half(2,t+1,f,h))
        if first:
            S.spread([lambda k2=k2,b=b: h_read(k2,b) for k2 in range(5,9) for b in range(2)], 0, 6)
            S.add(9, barrier)
            S.spread([lambda k2=k2,b=b: h_read(k2,b) for k2 in range(9,18) for b in range(2)], 10, 23)
        else:
            so=st_ops()
            S.spread(signal_ops(), 2, 5)
            S.spread(so, 5, 24)
            S.spread(next_ops(), 36+18, 36+24)
        S.add(70, lambda: A(f's_sub_u32 s{sDel}, 0, s{sDel}'))
        if not first:
            S.add(70, lambda: A(f's_add_u32 s{sCnt}, s{sCnt}, 1'))
            S.add(71, lambda: A(f's_cmp_lt_u32 s{sCnt}, 8'))
        for m in range(72):
            t,mm=divmod(m,36); s_,b=divmod(mm,2); k,z=divmod(s_,2); k2=9*t+k
            if b==0 and z==0: lgwait(rd_id[(t,s_+1)])
            if first: lgwait(h_id[(k2,b)])
            c='0' if k2==0 else v(AC2+8*z+4*b,4)
            d=v(TM2+8*z+4*b,4) if k2==17 else v(AC2+8*z+4*b,4)
            A(f'v_mfma_f32_16x16x32_bf16 {d}, {v(FR+4*(s_%NA),4)}, {v(H1(k2,b),4)}, {c}')
            for f in S.d.get(m,[]): f()
    A('s_barrier')
    A.stamp(1)
    for (m,kind,x,h) in TAIL1:
        if kind=='a': a_half(1,0,x,h)
        else: b_one(0,x)
    if prewarm: A(f'buffer_load_dword v{OUT}, v{vT2}, s[24:27], s40 offen')
    L1=A.label('k4_l1')
    A('.p2align 6')
    A(f'{L1}:')
    st0=(lg.n-lg.done)
    body1(False)
    assert lg.n-lg.done==st0,(lg.n-lg.done,st0)
    A(f's_cbranch_scc1 {L1}')
    body1(True)
    A.stamp(2)
    A(f'v_add_u32 v{vT0}, s42, v{vL16}')
    A(f'v_add_u32 v{vT2}, s43, v{vL16}')
    for q in range(6):
        for b in range(4): h_write(q,b)
    for q in range(6,9):
        for b in range(4):
            for o in cvt_ops(q,b): o()
        for b in range(4): h_write(q,b)
    A(f'v_add_u32 v{vT0}, s44, v{vL16}')
    A(f'v_add_u32 v{vT2}, {TILE}, v{vT0}')
    for z in range(2): A(f'v_add_u32 v{vRd+z}, {TILE}, v{vR2+z}')
    A(f's_mov_b32 s{sDel}, {-2*TILE}')
    A(f's_mov_b32 s{sCnt}, 0')
    A('s_waitcnt vmcnt(0)')
    barrier()
    for k2 in range(5):
        for b in range(2): h_read(k2,b)
    A.stamp(3)
    body2(True)
    L2=A.label('k4_l2')
    A('.p2align 6')
    A(f'{L2}:')
    st0=(lg.n-lg.done)
    body2(False)
    assert lg.n-lg.done==st0,(lg.n-lg.done,st0)
    A(f's_cbranch_scc1 {L2}')
    for o in signal_ops(): o()
    A.stamp(4)
    RB=[FR,FR+16]; PD=ACC; TT=ACC+64
    A(f's_lshl_b32 s52, s{sFC}, 2'); A(f's_and_b32 s53, s{sW}, 2'); A('s_add_u32 s52, s52, s53')
    A('s_add_u32 s58, s52, 1')
    A(f's_and_b32 s53, s{sW}, 1')
    A('s_waitcnt lgkmcnt(0)')
    out_block_pre(A,RB[0],52,53,sMT,vT1,'a')
    out_block_pre(A,RB[1],58,53,sMT,vT1,'b')
    A(f's_mul_i32 s59, s{sFC}, {32*72*1024}')
    A(f's_sub_u32 s59, s{sDst}, s59')
    A('s_barrier')
    A.stamp(5)
    for j in range(1,8):
        A(f's_add_u32 s60, s{sFC}, {j}'); A('s_and_b32 s60, s60, 7'); A(f's_mul_i32 s60, s60, {32*72*1024}'); A('s_add_u32 s60, s60, s59')
        for z in range(2):
            A(f'buffer_load_dwordx4 {v(PD+8*(j-1)+4*z,4)}, v{vL16}, s[16:19], s60 offen offset:{2048*z} sc1')
    for j in range(1,8):
        A(f's_waitcnt vmcnt({2*(7-j)})')
        for z in range(2): add_partial(A,TM2+8*z,PD+8*(j-1)+4*z,TT)
    A.stamp(6)
    out_block_post(A,RB[0],52,TM2,TT)
    out_block_post(A,RB[1],58,TM2+8,TT+8)
    A.endpgm()
    A(f'{Lhelp}:')
    if prio==2: A('s_setprio 2')
    VA,VB,VC=14,23,32
    sBuf,sS,sN,sSkip,sPh=44,45,46,47,48
    A(f's_mul_i32 s38, s{sFC}, 1152')
    A(f's_mul_i32 s39, s{sFC}, {576*1152}')
    A(f's_sub_u32 s{sW}, s{sW}, 4')
    A(f's_mul_i32 s{sM0}, s{sW}, 18432')
    A(f's_mov_b32 s{sBuf}, s{sM0}')
    A(f's_add_u32 s49, s{sM0}, {4*TILE}')
    A(f's_mul_i32 s37, s{sW}, {144*1152}')
    A('s_add_u32 s39, s39, s37')
    A(f's_mul_i32 s37, s{sW}, {4*9216}')
    A(f's_add_u32 s{sS}, s38, s37')
    A('s_sub_u32 s35, s38, s37')
    A(f's_sub_u32 s40, {565*9216}, s37')
    A(f's_cmp_eq_u32 s{sW}, 0')
    A(f's_cselect_b32 s41, {277*9216}, s40')
    A('s_movk_i32 s37, 911')
    for j in range(9):
        A(f'v_add_u32 v{vT0}, {64*j}, v{vT1}')
        A(f'v_mul_u32_u24 v{vT2}, s37, v{vT0}')
        A(f'v_lshrrev_b32 v{vT2}, 16, v{vT2}')
        A(f'v_mul_u32_u24 v{VB+j}, 72, v{vT2}')
        A(f'v_sub_u32 v{vT0}, v{vT0}, v{VB+j}')
        A(f'v_and_b32 v{VB+j}, 6, v{vT2}')
        A(f'v_xor_b32 v{vT0}, v{vT0}, v{VB+j}')
        A(f'v_lshlrev_b32 v{vT0}, 4, v{vT0}')
        A(f'v_and_b32 v{VA+j}, 4, v{vT2}')
        A(f'v_add_u32 v{VA+j}, v{VA+j}, v{vT2}')
        A(f'v_sub_u32 v{VB+j}, 11, v{VA+j}')
        A(f'v_mul_u32_u24 v{VA+j}, 9216, v{VA+j}')
        A(f'v_mul_u32_u24 v{VB+j}, 9216, v{VB+j}')
        A(f'v_add_u32 v{VA+j}, v{VA+j}, v{vT0}')
        A(f'v_add_u32 v{VB+j}, v{VB+j}, v{vT0}')
    A(f'v_lshrrev_b32 v{vT0}, 3, v{vT1}')
    A(f'v_and_b32 v{vT2}, 6, v{vT0}')
    A(f'v_and_b32 v{VC}, 7, v{vT1}')
    A(f'v_xor_b32 v{VC}, v{VC}, v{vT2}')
    A(f'v_lshlrev_b32 v{VC}, 4, v{VC}')
    A(f'v_mul_u32_u24 v{vT0}, 1152, v{vT0}')
    A(f'v_add_u32 v{VC}, v{VC}, v{vT0}')
    if A.prof: A('s_mov_b32 s72, 0')
    def rec():
        if A.prof and recon:
            A('s_memtime s[70:71]'); A('s_waitcnt lgkmcnt(0)')
            A(f'v_cmp_eq_u32 vcc, s72, v{vT1}'); A('v_mov_b32 v61, s70'); A('s_add_u32 s72, s72, 1'); A('v_cndmask_b32 v60, v60, v61, vcc')
    def bar(n):
        A(f's_waitcnt vmcnt({n})'); A('s_barrier'); rec()
    sNB=51
    def nb_ops():
        return [lambda: A(f's_add_u32 s{sNB}, s{sBuf}, {TILE}'), lambda: A(f's_cmp_ge_u32 s{sNB}, s49'), lambda: A(f's_cselect_b32 s{sNB}, s{sM0}, s{sNB}')]
    def issue1(V, step, jr, tail=None):
        for j in jr:
            A(f's_add_u32 m0, s{sBuf}, {1024*j}')
            if j==9: A(f's_add_u32 s{sS}, s{sS}, {step}')
            elif j==12:
                for o in nb_ops(): o()
            elif j==13: A(f's_add_u32 s{sN}, s{sN}, 1')
            elif j==17:
                A(f's_mov_b32 s{sBuf}, s{sNB}'); A(f's_mov_b32 s50, s{sS}'); A(f's_add_u32 s{sS}, s{sS}, {step}'); tail()
            else: A('s_nop 0')
            if dma_on: A(f'buffer_load_dwordx4 v{V+j%9}, s[20:23], s{50 if j==17 else sS} offen lds')
    A('s_waitcnt lgkmcnt(0)')
    Ld=A.label('k4_dd'); Lds=A.label('k4_dds')
    A(f's_mov_b32 s{sN}, 0')
    A(f's_branch {Lds}')
    A('.p2align 6')
    A(f'{Ld}:')
    bar(36)
    A(f'{Lds}:')
    issue1(VA,16*9216,range(18),lambda: (A(f's_sub_u32 s52, s{sN}, 3'), A('s_cmp_lt_u32 s52, 6')))
    A(f's_cbranch_scc1 {Ld}')
    A(f's_cmp_lt_u32 s{sN}, 3')
    A(f's_cbranch_scc1 {Lds}')
    for j in range(9):
        A(f'v_cmp_le_u32 vcc, {11*9216}, v{VB+j}')
        A(f'v_add_u32 v{VA+j}, s40, v{VB+j}')
        A(f'v_add_u32 v{vT2}, s41, v{VB+j}')
        A(f'v_cndmask_b32 v{VA+j}, v{VA+j}, v{vT2}, vcc')
    A(f's_mov_b32 s{sS}, s38')
    bar(36)
    issue1(VA,0,range(9))
    A(f's_add_u32 s{sS}, s35, {(853-32*9)*9216}')
    Lm=A.label('k4_dm'); Lms=A.label('k4_dms')
    A(f's_branch {Lms}')
    A('.p2align 6')
    A(f'{Lm}:')
    bar(36)
    issue1(VB,0,range(9))
    A(f'{Lms}:')
    issue1(VB,-16*9216,range(9,18),lambda: A(f's_cmp_lt_u32 s{sN}, 18'))
    A(f's_cbranch_scc1 {Lm}')
    Lw=A.label('k4_dw'); Lws=A.label('k4_dws'); Lx20=A.label('k4_x20'); Lx21=A.label('k4_x21'); Lfin=A.label('k4_dfin')
    A(f's_add_u32 s{sS}, s39, {8*128}')
    A('.p2align 6')
    A(f'{Lw}:')
    bar(36)
    A(f'{Lws}:')
    for j in range(18):
        A(f's_add_u32 m0, s{sBuf}, {1024*j}')
        if j: A(f's_add_u32 s50, s50, {8*1152}')
        else: A(f's_mov_b32 s50, s{sS}')
        if j==10:
            A(f's_sub_u32 s53, s{sN}, 17'); A('s_lshr_b32 s54, s53, 1')
            A(f's_add_u32 s55, s54, s{sFC}'); A('s_and_b32 s55, s55, 7')
            A('s_cmp_eq_u32 s54, 0'); A('s_cselect_b32 s55, 8, s55'); A('s_lshl_b32 s55, s55, 7')
            A('s_and_b32 s53, s53, 1'); A(f's_mul_i32 s53, s53, {288*1152}')
            A('s_add_u32 s55, s55, s53'); A(f's_add_u32 s{sS}, s39, s55')
        if j==12:
            for o in nb_ops(): o()
        if j==13: A(f's_add_u32 s{sN}, s{sN}, 1')
        if j==17:
            A(f's_mov_b32 s{sBuf}, s{sNB}'); A(f's_sub_u32 s52, s{sN}, 23'); A('s_cmp_lt_u32 s52, 13')
        if dma_on: A(f'buffer_load_dwordx4 v{VC}, s[24:27], s50 offen lds')
    A(f's_cbranch_scc1 {Lw}')
    A(f's_cmp_eq_u32 s{sN}, 19'); A(f's_cbranch_scc1 {Lw}')
    A(f's_cmp_eq_u32 s{sN}, 20'); A(f's_cbranch_scc1 {Lx20}')
    A(f's_cmp_eq_u32 s{sN}, 21'); A(f's_cbranch_scc1 {Lx21}')
    A(f's_cmp_eq_u32 s{sN}, 22'); A(f's_cbranch_scc1 {Lws}')
    A(f's_branch {Lfin}')
    A(f'{Lx20}:')
    bar(36); bar(18)
    A('s_barrier'); rec(); A('s_barrier'); rec()
    A(f's_branch {Lws}')
    A(f'{Lx21}:')
    bar(18)
    A(f's_branch {Lws}')
    A(f'{Lfin}:')
    bar(36); bar(18); bar(0)
    RB=64; PD=80; AC=112; TT=120
    A(f's_lshr_b32 s52, s{sFC}, 1'); A('s_add_u32 s52, s52, 32'); A(f's_and_b32 s53, s{sFC}, 1')
    out_block_pre(A,RB,52,53,sMT,vT1,'c')
    A(f's_cmp_eq_u32 s{sW}, 0')
    A(f's_cselect_b32 s58, s{sFC}, 8'); A('s_cselect_b32 s59, 28, 32')
    A(f's_mul_i32 s60, s{sMT}, 9'); A('s_add_u32 s58, s58, s60'); A('s_lshl_b32 s58, s58, 7'); A(f's_add_u32 s58, s58, {WS_CNT}')
    A(f'v_cmp_eq_u32 vcc, 0, v{vT1}')
    A(f'v_mov_b32 v{vT0}, 0x{OOB:x}')
    A('s_nop 0')
    A(f'v_cndmask_b32 v{vT0}, v{vT0}, 0, vcc')
    A('s_barrier'); rec()
    Lp=A.label('k4_poll'); Lpd=A.label('k4_polld')
    A('s_mov_b32 s61, 0')
    A(f'{Lp}:')
    A(f'v_mov_b32 v{vT2}, 0')
    A(f'buffer_atomic_add v{vT2}, v{vT0}, s[16:19], s58 offen sc0')
    A('s_waitcnt vmcnt(0)')
    A(f'v_readfirstlane_b32 s60, v{vT2}')
    A('s_add_u32 s61, s61, 1')
    A('s_cmp_ge_u32 s60, s59'); A(f's_cbranch_scc1 {Lpd}')
    A('s_cmp_lt_u32 s61, 0x40000'); A(f's_cbranch_scc1 {Lp}')
    A(f'{Lpd}:')
    A('s_barrier'); rec()
    Lnd=A.label('k4_nd')
    A(f's_cmp_eq_u32 s{sW}, 0'); A(f's_cbranch_scc1 {Lnd}')
    A(f's_mul_i32 s60, s{sMT}, {72*1024}'); A(f's_lshl_b32 s61, s{sFC}, 10'); A('s_add_u32 s60, s60, s61'); A(f's_add_u32 s60, s60, {WS_PART+64*1024}')
    for j in range(8):
        A(f'buffer_load_dwordx4 {v(PD+4*j,4)}, v{vL16}, s[16:19], s60 offen sc1')
        A(f's_add_u32 s60, s60, {32*72*1024}')
    for j in range(8):
        A(f's_waitcnt vmcnt({7-j})')
        add_partial(A,AC,PD+4*j,TT,first=(j==0))
    out_block_post(A,RB,52,AC,TT)
    A(f'{Lnd}:')
    if A.prof:
        A(f'v_lshrrev_b32 v61, 2, v{vL16}')
        A('s_lshl_b32 s60, s2, 8')
        A(f's_add_u32 s60, s60, {0x8000000+A.kidx*0x100000+0x80000}')
        A('buffer_store_dword v60, v61, s[16:19], s60 offen')
    A.endpgm()
    A(f'{Lnorm}:')
    if prio==2: A('s_setprio 2')
    vHBw,vGS=9,10
    vR,vNmr=11,13
    TP=20; XR=76
    A(f's_sub_u32 s{sW}, s{sW}, 6')
    A(f's_lshl_b32 s34, s{sMT}, 1')
    A(f's_add_u32 s34, s34, s{sW}')
    A(f's_mul_i32 s35, s34, {36*1024}')
    A(f's_add_u32 s35, s35, {WS_X2}')
    A(f's_add_u32 s31, s35, {18*1024}')
    A(f'v_and_b32 v{vT0}, 15, v0')
    A(f's_lshl_b32 s36, s34, 5')
    A(f'v_add_u32 v{vT0}, s36, v{vT0}')
    A(f'v_lshlrev_b32 v{vT0}, 6, v{vT0}')
    A(f's_mov_b32 s36, {WS_STAT}')
    A(f's_mov_b32 m0, {L_GS}')
    A(f's_mov_b32 s37, {WS_MOD+3*2304}')
    A('s_waitcnt lgkmcnt(0)')
    ST=TP+16
    for b in range(2):
        for i in range(3):
            A(f'buffer_load_dwordx4 {v(ST+12*b+4*i,4)}, v{vT0}, s[16:19], s36 offen offset:{1024*b+16*i}')
    for k in range(4):
        A(f'buffer_load_dwordx4 v{vL16}, s[16:19], s37 offen offset:{1024*k} lds')
    A(f's_mov_b32 m0, {L_GS+4096}')
    A(f's_mov_b32 s37, {WS_MOD+3*2304+4096}')
    A(f'buffer_load_dwordx4 v{vL16}, s[16:19], s37 offen lds')
    nx=[0]
    def xbatch(n):
        for _ in range(n):
            ks=nx[0]; nx[0]+=1
            for b in range(2):
                A(f'buffer_load_dwordx4 {v(XR+8*ks+4*b,4)}, v{vL16}, s[16:19], s{35 if b==0 else 31} offen offset:{(ks&3)*1024}')
            if ks&3==3: A('s_add_u32 s35, s35, 4096'); A('s_add_u32 s31, s31, 4096')
    xbatch(XB[0])
    A(f's_lshl_b32 s37, s{sW}, 11')
    A(f's_add_u32 s37, s37, {L_HB}')
    A(f'v_add_u32 v{vHBw}, s37, v{vL16}')
    A(f'v_lshrrev_b32 v{vGS}, 4, v{vT1}')
    A(f'v_lshlrev_b32 v{vGS}, 5, v{vGS}')
    A(f'v_add_u32 v{vGS}, {L_GS}, v{vGS}')
    A(f's_mov_b32 s36, 0x3ae38e39')
    A(f's_mov_b32 s37, 0x3727c5ac')
    A.stamp(1)
    A(f's_waitcnt vmcnt({2*XB[0]})')
    GSr=TP; UX=TP+16; HO=TP+40
    def gs_read():
        for k in range(4):
            A(f'ds_read_b128 {v(GSr+4*k,4)}, v{vGS} offset:{(k>>1)*2304+16*(k&1)}')
        A(f'v_add_u32 v{vGS}, 128, v{vGS}')
    gs_read()
    for b in range(2):
        S_=ST+12*b
        for i in range(1,6):
            A(f'v_pk_add_f32 {v(S_,2)}, {v(S_,2)}, {v(S_+2*i,2)}')
        A(f'v_mul_f32 v{S_}, s36, v{S_}')
        A(f'v_mul_f32 v{S_+1}, s36, v{S_+1}')
        A(f'v_fma_f32 v{S_+1}, -v{S_}, v{S_}, v{S_+1}')
        A(f'v_max_f32 v{S_+1}, 0, v{S_+1}')
        bf16_round(A,f'v{S_+1}',f'v{S_+1}')
        A(f'v_add_f32 v{S_+1}, s37, v{S_+1}')
        bf16_round(A,f'v{S_+1}',f'v{S_+1}')
        A(f'v_sqrt_f32 v{S_+1}, v{S_+1}')
        A('s_nop 0')
        bf16_round(A,f'v{S_+1}',f'v{S_+1}')
        A(f'v_rcp_f32 v{vR+b}, v{S_+1}')
        bf16_round(A,f'v{S_}',f'v{S_}')
        A(f'v_mul_f32 v{vNmr+b}, -v{S_}, v{vR+b}')
    sK,sIdx,sEv=44,45,46
    def part1():
        A(f's_set_gpr_idx_on s{sIdx}, gpr_idx(SRC1)')
        A(f's_add_u32 s{sK}, s{sK}, 1')
        for b in range(2):
            for p in range(4):
                A(f'v_lshlrev_b32 v{UX+8*b+2*p}, 16, v{XR+4*b+p}')
                A(f'v_and_b32 v{UX+8*b+2*p+1}, 0xffff0000, v{XR+4*b+p}')
        A('s_set_gpr_idx_off')
        A(f's_add_u32 s{sIdx}, s{sIdx}, 8')
        for b in range(2):
            for e in range(8): A(f'v_fma_f32 v{UX+8*b+e}, v{UX+8*b+e}, v{vR+b}, v{vNmr+b}')
    def hwrite():
        for b in range(2): A(f'ds_write_b128 v{vHBw}, {v(HO+4*b,4)} offset:{1024*b}')
        A(f'v_xor_b32 v{vHBw}, 4096, v{vHBw}')
    def part2(first=False):
        A('s_waitcnt lgkmcnt(0)' if first else 's_waitcnt lgkmcnt(2)')
        for b in range(2):
            for e in range(8): A(f'v_fma_f32 v{UX+8*b+e}, v{UX+8*b+e}, v{GSr+8+e}, v{GSr+e}')
        if not first: A('s_waitcnt lgkmcnt(0)')
        gs_read()
        for b in range(2):
            for p in range(4): A(f'v_cvt_pk_bf16_f32 v{HO+4*b+p}, v{UX+8*b+2*p}, v{UX+8*b+2*p+1}')
    ev={}
    ev.setdefault(2,[]).append(('w0',))
    ev.setdefault(XI[0]+1,[]).append(('i',1)); ev.setdefault(XI[1]+1,[]).append(('i',2))
    ev.setdefault(XB[0],[]).append(('w',1)); ev.setdefault(XB[0]+XB[1],[]).append(('w',2))
    ev.setdefault(18,[]).append(('end',))
    evk=sorted(ev)
    A(f's_mov_b32 s{sK}, 0')
    A(f's_mov_b32 s{sIdx}, 0')
    A(f's_mov_b32 s{sEv}, {evk[0]}')
    A(f's_waitcnt vmcnt({2*XB[0]-4})')
    part1(); part2(True)
    Ln=A.label('k4_nl'); Lin=A.label('k4_nin'); Lev=A.label('k4_nev')
    A(f's_branch {Lin}')
    A('.p2align 6')
    A(f'{Ln}:')
    A('s_barrier')
    A(f'{Lin}:')
    part1(); hwrite(); part2()
    A(f's_cmp_lg_u32 s{sK}, s{sEv}')
    A(f's_cbranch_scc1 {Ln}')
    issued=1
    labs={k:A.label('k4_ev') for k in evk}
    for x,k in enumerate(evk):
        A(f'{labs[k]}:')
        if x+1<len(evk):
            A(f's_cmp_lg_u32 s{sK}, {k}'); A(f's_cbranch_scc1 {labs[evk[x+1]]}')
        for e in ev[k]:
            if e[0]=='w0': A(f's_waitcnt vmcnt({sum(2*x_ for x_ in XB[1:issued])})')
            elif e[0]=='i': xbatch(XB[e[1]]); issued+=1
            elif e[0]=='w': A(f's_waitcnt vmcnt({sum(2*x_ for x_ in XB[e[1]+1:issued])})')
            else:
                A('s_barrier')
                hwrite()
                A('s_waitcnt lgkmcnt(0)')
                A('s_barrier')
        if x+1<len(evk):
            A(f's_mov_b32 s{sEv}, {evk[x+1]}')
            A(f's_branch {Ln}')
    A('code_end:')
    A(f'{Lend}:')
    A.endpgm()
    A.end(name, 234, 72)
```

```python
import sys
from asmlib import *
from gen1 import *
from gen1b import *
from gen2b import *
from gen3b import *
from gen4b import gen_k5b
from gen4e import gen_k4e
from gen4g import *
A=Asm()
A.prof = len(sys.argv)>2 and sys.argv[2]=='prof'
kw=eval(sys.argv[3]) if len(sys.argv)>3 else {}
k4=dict(); k4.update(kw.get('k4',{}))
gen_k1b(A,**kw.get('k1',{})); gen_k2b(A,**kw.get('k2',{})); gen_k3b(A,**kw.get('k3',{})); (gen_k4e if kw.get('e') else gen_k4g)(A,**k4)
out=sys.argv[1] if len(sys.argv)>1 else 'adaLN_cond__spectral_fnet__dense_activation_relu__prompt.s'
open(out,'w').write(A.text())
```

```python
from asmlib import *
from gen1 import *
from gen2 import row_allreduce16
from gen1b import *
OOB=0x40000000

def gen_k2b(A, name='k2_hid_kernel', prefetch=True, NB1=14):
    ND=195; NT=256
    PITCH=592; L_HOO=16*PITCH; L_NQ=32*PITCH; L_MOD=19456; L_TB=L_MOD+5120
    A.launch(name, NT if prefetch else ND, 512, L_TB+13*9216)
    A.begin(name)
    Lp=A.label('k2_pf'); Lend=A.label('k2_end'); Lm=A.label('k2_mf')
    load_srds(A,[('x',8),('Cd',12),('ws',16),('Sd',20),('w1',24),('wmod',56),('c',60)])
    A(f's_cmp_ge_u32 s2, {NT if prefetch else ND}')
    A(f's_cbranch_scc1 {Lend}')
    if prefetch:
        A(f's_cmp_ge_u32 s2, {ND}')
        A(f's_cbranch_scc1 {Lp}')
    sST,sEG,sW=28,29,30
    A('s_lshr_b32 s31, s2, 3')
    A('s_mul_i32 s32, s31, 21846'); A('s_lshr_b32 s32, s32, 16')
    A('s_mul_i32 s33, s32, 3'); A(f's_sub_u32 s{sEG}, s31, s33')
    A('s_lshl_b32 s32, s32, 3'); A('s_and_b32 s33, s2, 7'); A(f's_add_u32 s{sST}, s32, s33')
    A('s_cmp_ge_u32 s2, 192')
    A(f's_cselect_b32 s{sST}, 64, s{sST}')
    A(f's_cselect_b32 s{sEG}, s33, s{sEG}')
    vRP,vL16,vS,vA1,vM1,vA3,vM3,vG1,vG2,vT0,vT1,vLane=1,2,3,4,5,6,7,8,9,10,11,12
    A(f'v_lshrrev_b32 v{vT0}, 6, v0')
    A(f'v_and_b32 v{vLane}, 63, v0')
    A(f'v_readfirstlane_b32 s{sW}, v{vT0}')
    A('s_nop 3')
    A(f's_cmp_ge_u32 s{sW}, 4')
    A(f's_cbranch_scc1 {Lm}')
    T=32; M=128
    def Tr(row,reg,i): return T+((row*2+reg)*3+i)*8
    G1=lambda i:M+8*i; G2=lambda i:M+24+8*i; SA1=lambda i:M+48+8*i; SA2=lambda i:M+72+8*i
    A(f'v_lshrrev_b32 v{vRP}, 4, v0')
    A(f'v_and_b32 v{vL16}, 15, v0')
    A(f's_lshl_b32 s31, s{sST}, 4')
    A(f'v_add_u32 v{vS}, s31, v{vRP}')
    A(f'v_cmp_gt_u32 s[32:33], 12, v{vL16}')
    A(f'v_cmp_eq_u32 s[34:35], 12, v{vL16}')
    A(f'v_cmp_ge_u32 vcc, 1024, v{vS}')
    A('s_and_b64 s[36:37], vcc, s[32:33]')
    A(f'v_add_u32 v{vT0}, -1, v{vS}')
    A(f'v_cmp_gt_u32 vcc, 1023, v{vT0}')
    A('s_mov_b64 s[38:39], vcc')
    A('s_and_b64 s[40:41], s[38:39], s[32:33]')
    A(f'v_lshlrev_b32 v{vT0}, 4, v{vL16}')
    A(f'v_mul_u32_u24 v{vA1}, 1152, v{vS}')
    A(f'v_sub_u32 v{vT1}, 2048, v{vS}')
    A(f'v_mul_u32_u24 v{vA3}, 1152, v{vT1}')
    A(f'v_sub_u32 v{vM1}, v{vA1}, v{vT0}')
    A(f'v_add_u32 v{vM1}, {1136-384}, v{vM1}')
    A(f'v_sub_u32 v{vM3}, v{vA3}, v{vT0}')
    A(f'v_add_u32 v{vM3}, {1136-384}, v{vM3}')
    A(f'v_add_u32 v{vA1}, v{vA1}, v{vT0}')
    A(f'v_add_u32 v{vA3}, v{vA3}, v{vT0}')
    A(f'v_mov_b32 v{vT1}, 0x{OOB:x}')
    for r,m in ((vA1,36),(vM1,36),(vA3,40),(vM3,40)):
        A(f'v_cndmask_b32 v{r}, v{vT1}, v{r}, s[{m}:{m+1}]')
    A('s_waitcnt lgkmcnt(0)')
    for row,(va,vm) in enumerate(((vA1,vM1),(vA3,vM3))):
        for i in range(3):
            A(f'buffer_load_dwordx4 {v(Tr(row,0,i)+4,4)}, v{va}, s[8:11], 0 offen offset:{192*i}')
        for i in range(3):
            A(f'buffer_load_dwordx4 {v(Tr(row,1,i)+4,4)}, v{vm}, s[8:11], 0 offen offset:{384-192*i}')
    A('s_barrier')
    A(f'v_min_u32 v{vG1}, 11, v{vL16}')
    A(f'v_lshlrev_b32 v{vG1}, 5, v{vG1}')
    A(f'v_add_u32 v{vG1}, {L_MOD}, v{vG1}')
    A(f'v_add_u32 v{vG2}, {288*4}, v{vG1}')
    A(f'v_mov_b32 v{vT1}, {L_MOD+288*4-768}')
    A(f'v_cndmask_b32 v{vG2}, v{vG2}, v{vT1}, s[34:35]')
    A.stamp(1)
    mu=[14,16]; rr=[18,20]; ac=[22,24]; mean=[26,27]; vWf=28
    for row in range(2):
        A(f's_waitcnt vmcnt({6*(1-row)})')
        if row==0: A.stamp(2)
        for i in range(3):
            R=Tr(row,0,i)
            for q in range(4):
                src=R+4+q
                A(f'v_lshlrev_b32 v{R+2*q}, 16, v{src}')
                A(f'v_and_b32 v{R+2*q+1}, 0xffff0000, v{src}')
            R=Tr(row,1,i)
            A(f'v_lshlrev_b32 v{R+0}, 16, v{R+5}'); A(f'v_and_b32 v{R+3}, 0xffff0000, v{R+5}')
            A(f'v_lshlrev_b32 v{R+2}, 16, v{R+6}'); A(f'v_and_b32 v{R+5}, 0xffff0000, v{R+6}')
            A(f'v_and_b32 v{R+1}, 0xffff0000, v{R+4}'); A(f'v_lshlrev_b32 v{R+6}, 16, v{R+4}')
            A(f'v_lshlrev_b32 v{R+4}, 16, v{R+7}'); A(f'v_and_b32 v{R+7}, 0xffff0000, v{R+7}')
    for row in range(2):
        base=Tr(row,0,0)
        A(f'v_pk_add_f32 {v(ac[row],2)}, {v(base,2)}, {v(base+2,2)}')
    for p in range(2,24):
        for row in range(2):
            base=Tr(row,0,0)
            A(f'v_pk_add_f32 {v(ac[row],2)}, {v(ac[row],2)}, {v(base+2*p,2)}')
    for row in range(2): A(f'v_add_f32 v{mean[row]}, v{ac[row]}, v{ac[row]+1}')
    row_allreduce16(A,mean)
    A(f's_mov_b32 s52, 0x3ae38e39')
    for row in range(2):
        A(f'v_mul_f32 v{mean[row]}, s52, v{mean[row]}')
        bf16_round(A,f'v{mu[row]}',f'v{mean[row]}')
        A(f'v_sub_f32 v{mean[row]}, v{mean[row]}, v{mu[row]}')
        m=(36,40)[row]
        A(f'v_cndmask_b32 v{mu[row]}, 0, v{mu[row]}, s[{m}:{m+1}]')
    for p in range(24):
        for row in range(2):
            r=Tr(row,0,0)+2*p
            A(f'v_pk_add_f32 {v(r,2)}, {v(r,2)}, {v(mu[row],2)} op_sel_hi:[1,0] neg_lo:[0,1] neg_hi:[0,1]')
    for p in range(24):
        for row in range(2):
            r=Tr(row,0,0)+2*p
            if p==0: A(f'v_pk_mul_f32 {v(ac[row],2)}, {v(r,2)}, {v(r,2)}')
            else: A(f'v_pk_fma_f32 {v(ac[row],2)}, {v(r,2)}, {v(r,2)}, {v(ac[row],2)}')
    for row in range(2): A(f'v_add_f32 v{rr[row]}, v{ac[row]}, v{ac[row]+1}')
    def mod_reads(i):
        for hh in range(2):
            A(f'ds_read_b128 {v(G1(i)+4*hh,4)}, v{vG1} offset:{2304+384*i+16*hh}')
            A(f'ds_read_b128 {v(G2(i)+4*hh,4)}, v{vG2} offset:{2304+384*i+16*hh}')
            A(f'ds_read_b128 {v(SA1(i)+4*hh,4)}, v{vG1} offset:{384*i+16*hh}')
            A(f'ds_read_b128 {v(SA2(i)+4*hh,4)}, v{vG2} offset:{384*i+16*hh}')
    row_allreduce16(A,rr)
    A(f's_mov_b32 s53, 0x3727c5ac')
    for row in range(2):
        r=rr[row]
        A(f'v_mul_f32 v{r}, s52, v{r}')
        A(f'v_fma_f32 v{r}, -v{mean[row]}, v{mean[row]}, v{r}')
        A(f'v_max_f32 v{r}, 0, v{r}')
        bf16_round(A,f'v{r}',f'v{r}')
        A(f'v_add_f32 v{r}, s53, v{r}')
        bf16_round(A,f'v{r}',f'v{r}')
        A(f'v_sqrt_f32 v{r}, v{r}')
        A('s_nop 0')
        bf16_round(A,f'v{r}',f'v{r}')
        A(f'v_rcp_f32 v{r}, v{r}')
    A(f'v_cndmask_b32 v{vWf}, 1.0, 2.0, s[38:39]')
    A('s_mov_b32 s54, -2.0'); A('s_mov_b32 s55, -2.0')
    for p in range(24):
        r1=Tr(0,0,0)+2*p; r3=Tr(1,0,0)+2*p
        A(f'v_pk_mul_f32 {v(r3,2)}, {v(r3,2)}, {v(rr[1],2)} op_sel_hi:[1,0]')
        A(f'v_pk_fma_f32 {v(r1,2)}, {v(r1,2)}, {v(rr[0],2)}, {v(r3,2)} op_sel_hi:[1,0,1]')
        A(f'v_pk_fma_f32 {v(r3,2)}, {v(r3,2)}, s[54:55], {v(r1,2)}')
    A('s_barrier')
    mod_reads(0)
    for row in range(2):
        m0=[Tr(row,1,i)+6 for i in range(3)]
        tm=[vA1,vM1,vA3]
        A('s_nop 1')
        A(f'v_mov_b32 v{tm[0]}, 0')
        for i in (1,2): A(f'v_mov_b32_dpp v{tm[i]}, v{m0[i-1]} row_shl:11 row_mask:0xf bank_mask:0xf bound_ctrl:0')
        A('s_nop 1')
        for i in range(3): A(f'v_mov_b32_dpp v{tm[i]}, v{m0[i]} row_shr:1 row_mask:0xf bank_mask:0xf')
        for i in range(3): A(f'v_mov_b32 v{m0[i]}, v{tm[i]}')
    A(f'v_cmp_eq_u32 vcc, 0, v{vL16}')
    A(f'v_mul_u32_u24 v{vT0}, {PITCH}, v{vRP}')
    A(f'v_lshl_add_u32 v{vT0}, v{vL16}, 4, v{vT0}')
    A(f'v_lshlrev_b32 v{vT1}, 2, v{vRP}')
    A('s_waitcnt lgkmcnt(0)')
    mod_reads(1)
    A(f'v_cndmask_b32 v{SA2(0)}, v{SA2(0)}, 0, vcc')
    for i in range(3):
        if i==1:
            A('s_waitcnt lgkmcnt(2)')
            mod_reads(2)
        if i==2:
            A('s_waitcnt lgkmcnt(2)')
            A(f'v_cndmask_b32 v{SA1(2)}, v{SA1(2)}, 0, s[34:35]')
        for p in range(4):
            g1=G1(i)+2*p; g2=G2(i)+2*p; s1=SA1(i)+2*p; s2=SA2(i)+2*p
            ned=Tr(0,0,i)+2*p; neD=Tr(0,1,i)+2*(3-p); nod=Tr(1,0,i)+2*p; noD=Tr(1,1,i)+2*(3-p)
            A(f'v_pk_add_f32 {v(s1,2)}, {v(s1,2)}, {v(s2,2)}')
            A(f'v_pk_mul_f32 {v(s1,2)}, {v(s1,2)}, {v(vWf,2)} op_sel_hi:[1,0]')
            A(f'v_pk_fma_f32 {v(s1,2)}, {v(neD,2)}, {v(g2,2)}, {v(s1,2)}')
            A(f'v_pk_fma_f32 {v(s1,2)}, {v(ned,2)}, {v(g1,2)}, {v(s1,2)}')
            A(f'v_pk_mul_f32 {v(s2,2)}, {v(noD,2)}, {v(g2,2)}')
            A(f'v_pk_fma_f32 {v(s2,2)}, {v(nod,2)}, {v(g1,2)}, {v(s2,2)} neg_lo:[0,0,1] neg_hi:[0,0,1]')
        for p in range(4):
            A(f'v_cvt_pk_bf16_f32 v{G1(i)+p}, v{SA1(i)+2*p}, v{SA1(i)+2*p+1}')
            A(f'v_cvt_pk_bf16_f32 v{G1(i)+4+p}, v{SA2(i)+2*p}, v{SA2(i)+2*p+1}')
        A('s_mov_b64 exec, s[32:33]')
        A(f'ds_write_b128 v{vT0}, {v(G1(i),4)} offset:{192*i}')
        A(f'ds_write_b128 v{vT0}, {v(G1(i)+4,4)} offset:{L_HOO+192*i}')
        if i==2:
            A('s_mov_b64 exec, s[34:35]')
            A(f'ds_write_b32 v{vT1}, v{SA1(2)} offset:{L_NQ}')
        A('s_mov_b64 exec, -1')
    A.stamp(3)
    A('s_waitcnt lgkmcnt(0)')
    A('s_barrier')
    A.endpgm()
    A(f'{Lm}:')
    TB=64
    A(f's_sub_u32 s{sW}, s{sW}, 4')
    vTab=13; VO=16
    A(f's_and_b32 s49, s{sW}, 1')
    A('s_mul_i32 s49, s49, 3')
    A(f's_mul_i32 s50, s{sEG}, 6')
    A('s_add_u32 s49, s49, s50')
    A('s_mul_i32 s50, s49, 18432')
    A(f's_mul_i32 s31, s{sW}, {3*9216}')
    A(f's_add_u32 s31, s31, {L_TB}')
    A('s_movk_i32 s32, 1821')
    A('s_waitcnt lgkmcnt(0)')
    A(f's_cmp_lt_u32 s{sW}, 2')
    A('s_cselect_b32 s44, s12, s20')
    A('s_cselect_b32 s45, s13, s21')
    A(f's_mov_b32 s46, {SZ["Cd"]}')
    A('s_mov_b32 s47, 0x00020000')
    A('s_cselect_b32 s48, -1, 0')
    PM=TB; vH,vH2=26,27
    A(f'v_and_b32 v{vH}, 255, v0')
    A(f'v_lshlrev_b32 v{vH}, 4, v{vH}')
    A(f'v_add_u32 v{vH2}, 4096, v{vH}')
    A(f'v_min_u32 v{vH2}, {4608-16}, v{vH2}')
    A(f's_mov_b32 s33, {WS_PMOD}')
    Lq=A.label('k2_q')
    A('s_barrier')
    A('s_setprio 3')
    A(f's_cmp_lg_u32 s{sW}, 0')
    A(f's_cbranch_scc1 {Lq}')
    for kq in range(8):
        A(f'buffer_load_dwordx4 {v(PM+8*kq+4,4)}, v{vH2}, s[16:19], s33 offen')
        A('s_add_u32 s33, s33, 4608')
    A(f's_mov_b32 s33, {WS_PMOD}')
    A(f'{Lq}:')
    for kq in range(8):
        A(f'buffer_load_dwordx4 {v(PM+8*kq,4)}, v{vH}, s[16:19], s33 offen')
        A('s_add_u32 s33, s33, 4608')
    def tpiece(t,j,sM,sS):
        A(f's_add_u32 m0, s{sM}, {t*9216+1024*j}'); A('s_nop 0')
        A(f'buffer_load_dwordx4 v{VO+j}, s[44:47], s{sS} offen lds')
    for j in range(9):
        A(f'v_add_u32 v{vT0}, {64*j}, v{vLane}')
        A(f'v_mul_u32_u24 v{vT1}, s32, v{vT0}')
        A(f'v_lshrrev_b32 v{vT1}, 16, v{vT1}')
        A(f'v_mul_u32_u24 v{VO+j}, {1152-576}, v{vT1}')
        A(f'v_lshl_add_u32 v{VO+j}, v{vT0}, 4, v{VO+j}')
        tpiece(0,j,31,50)
    A('s_add_u32 s50, s50, 18432')
    for j in range(NB1-9): tpiece(1,j,31,50)
    A(f's_waitcnt vmcnt({NB1})')
    A.stamp(5)
    for st in (4,2,1):
        for kq in range(st):
            for p in range(4):
                A(f'v_pk_add_f32 {v(PM+8*kq+2*p,2)}, {v(PM+8*kq+2*p,2)}, {v(PM+8*(kq+st)+2*p,2)}')
    A(f'v_cmp_le_u32 vcc, 2304, v{vH}')
    for i in range(8): bf16_round(A,f'v{PM+i}',f'v{PM+i}')
    A(f'v_cndmask_b32 v{PM+8}, 0, 1.0, vcc')
    for i in range(8):
        A(f'v_add_f32 v{PM+i}, {"v%d"%(PM+8) if i<4 else "1.0"}, v{PM+i}')
        bf16_round(A,f'v{PM+i}',f'v{PM+i}')
    A(f'ds_write_b128 v{vH}, {v(PM,4)} offset:{L_MOD}')
    Lq2=A.label('k2_q2')
    A(f's_cmp_lg_u32 s{sW}, 0')
    A(f's_cbranch_scc1 {Lq2}')
    A(f'ds_write_b128 v{vH2}, {v(PM+4,4)} offset:{L_MOD}')
    A(f'{Lq2}:')
    A('s_waitcnt lgkmcnt(0)')
    A.stamp(1)
    A('s_barrier')
    for j in range(NB1-9,9): tpiece(1,j,31,50)
    A('s_add_u32 s50, s50, 18432')
    for j in range(9): tpiece(2,j,31,50)
    Lx1=A.label('k2_x1')
    A(f's_lshl_b32 s51, s{sW}, 2')
    A(f's_add_u32 s51, s51, s{sEG}')
    A(f'v_and_b32 v{vT0}, 15, v{vLane}')
    A(f'v_lshrrev_b32 v{vT1}, 4, v{vLane}')
    A(f'v_mul_u32_u24 v{vTab}, 576, v{vT0}')
    A(f'v_lshl_add_u32 v{vTab}, v{vT1}, 4, v{vTab}')
    A(f'v_add_u32 v{vM3}, {L_TB+12*9216}, v{vTab}')
    A(f'v_add_u32 v{vTab}, s31, v{vTab}')
    A('s_cmp_lg_u32 s51, 2')
    A(f's_cbranch_scc1 {Lx1}')
    A(f's_mov_b32 s50, {18*18432}')
    A(f's_mov_b32 s33, {L_TB+12*9216}')
    for j in range(9): tpiece(0,j,33,50)
    A('s_waitcnt vmcnt(0)')
    for kd in range(9):
        A(f'ds_read_b128 {v(TB+108+4*kd,4)}, v{vM3} offset:{64*kd}')
    A('s_waitcnt lgkmcnt(0)')
    A(f'{Lx1}:')
    for t in range(3):
        A(f's_waitcnt vmcnt({18-9*t}) lgkmcnt(4)')
        for kd in range(9):
            A(f'ds_read_b128 {v(TB+36*t+4*kd,4)}, v{vTab} offset:{9216*t+64*kd}')
    A(f'v_mul_u32_u24 v{vA1}, {PITCH}, v{vT0}')
    A(f'v_lshl_add_u32 v{vA1}, v{vT1}, 4, v{vA1}')
    A(f's_andn2_b32 s52, {L_HOO}, s48')
    A(f'v_add_u32 v{vA1}, s52, v{vA1}')
    A(f'v_lshlrev_b32 v{vM1}, 4, v{vT1}')
    A(f'v_lshlrev_b32 v{vM3}, 31, v{vLane}')
    A(f'v_lshrrev_b32 v{vA3}, 1, v{vT1}')
    A(f'v_lshlrev_b32 v{vA3}, 8, v{vA3}')
    A(f'v_lshl_add_u32 v{vA3}, v{vT0}, 4, v{vA3}')
    A(f'v_and_b32 v{vG1}, 1, v{vT1}')
    A(f'v_lshl_add_u32 v{vA3}, v{vG1}, 3, v{vA3}')
    A(f's_lshr_b32 s52, s{sST}, 1')
    A('s_lshl_b32 s52, s52, 10')
    A(f's_and_b32 s53, s{sST}, 1')
    A('s_lshl_b32 s53, s53, 9')
    A('s_add_u32 s52, s52, s53')
    A(f's_cmp_lt_u32 s{sW}, 2')
    A(f's_cselect_b32 s53, 0, {WS_BO-WS_AE}')
    A(f's_add_u32 s53, s53, {WS_AE}')
    A('s_add_u32 s52, s52, s53')
    A('s_lshl_b32 s54, s49, 15')
    A('s_add_u32 s54, s54, s52')
    A('s_waitcnt lgkmcnt(0)')
    A.stamp(2)
    A('s_barrier')
    A.stamp(3)
    AF=16; CI=52; ACC=208
    A(f'ds_read_b128 {v(CI,4)}, v{vM1} offset:{L_NQ}')
    for kd in range(9):
        A(f'ds_read_b128 {v(AF+4*kd,4)}, v{vA1} offset:{64*kd}')
    A('s_waitcnt lgkmcnt(9)')
    for r in range(4):
        A(f'v_xor_b32 v{CI+r}, v{CI+r}, v{vM3}')
        A(f'v_and_b32 v{CI+r}, s48, v{CI+r}')
    A('s_nop 1')
    for kd in range(9):
        A(f's_waitcnt lgkmcnt({8-kd})')
        for t in range(3):
            c = v(CI,4) if kd==0 else v(ACC+4*t,4)
            A(f'v_mfma_f32_16x16x32_bf16 {v(ACC+4*t,4)}, {v(AF+4*kd,4)}, {v(TB+36*t+4*kd,4)}, {c}')
    Lx2=A.label('k2_x2'); Lny=A.label('k2_ny')
    A('s_cmp_lg_u32 s51, 2')
    A(f's_cbranch_scc1 {Lx2}')
    for kd in range(9):
        c = v(CI,4) if kd==0 else v(ACC+12,4)
        A(f'v_mfma_f32_16x16x32_bf16 {v(ACC+12,4)}, {v(AF+4*kd,4)}, {v(TB+108+4*kd,4)}, {c}')
    A(f'{Lx2}:')
    A('s_nop 7')
    A.stamp(4)
    A(f's_cmp_eq_u32 s{sST}, 64')
    A(f's_cbranch_scc1 {Lny}')
    for t in range(3):
        A(f'v_cvt_pk_bf16_f32 v{ACC+4*t}, v{ACC+4*t}, v{ACC+4*t+1}')
        A(f'v_cvt_pk_bf16_f32 v{ACC+4*t+1}, v{ACC+4*t+2}, v{ACC+4*t+3}')
        A(f'buffer_store_dwordx2 {v(ACC+4*t,2)}, v{vA3}, s[16:19], s54 offen')
        A('s_add_u32 s54, s54, 32768')
    A('s_cmp_lg_u32 s51, 2')
    A(f's_cbranch_scc1 {Lend}')
    A(f's_add_u32 s54, s52, {18*32768}')
    A(f'v_cvt_pk_bf16_f32 v{ACC+12}, v{ACC+12}, v{ACC+13}')
    A(f'v_cvt_pk_bf16_f32 v{ACC+13}, v{ACC+14}, v{ACC+15}')
    A(f'buffer_store_dwordx2 {v(ACC+12,2)}, v{vA3}, s[16:19], s54 offen')
    A.endpgm()
    A(f'{Lny}:')
    A(f's_cmp_ge_u32 s{sW}, 2')
    A(f's_cbranch_scc1 {Lend}')
    A(f'v_lshlrev_b32 v{vA3}, 2, v{vLane}')
    A('s_lshl_b32 s54, s49, 6')
    A('s_mov_b64 exec, 0xffff')
    A(f's_add_u32 s54, s54, {WS_AE1024}')
    for t in range(3):
        A(f'buffer_store_dword v{ACC+4*t}, v{vA3}, s[16:19], s54 offen offset:{64*t}')
    A('s_cmp_lg_u32 s51, 2')
    A(f's_cbranch_scc1 {Lend}')
    A(f's_mov_b32 s54, {WS_AE1024+18*64}')
    A(f'buffer_store_dword v{ACC+12}, v{vA3}, s[16:19], s54 offen')
    A.endpgm()
    if prefetch:
        A(f'{Lp}:')
        Lw=A.label('k2_w1')
        A('s_cmp_ge_u32 s2, 231')
        A(f's_cbranch_scc1 {Lw}')
        A(f's_sub_u32 s29, s2, {195-18}')
        A('s_lshl_b32 s64, s29, 7')
        A('s_mov_b32 s30, 0')
        def fin(ph):
            if ph=='pre':
                A('s_mul_i32 s28, s29, 7282'); A('s_lshr_b32 s28, s28, 16')
                A('s_mul_i32 s31, s28, 9'); A('s_sub_u32 s31, s29, s31'); A('s_lshl_b32 s31, s31, 6')
                A('v_add_u32 v3, s31, v0')
                A('s_cmp_eq_u32 s28, 5')
                kappa_pos(A,3,4,'s_cselect_b64 vcc, 0, vcc')
                A('s_mul_i32 s31, s28, 576')
                A('v_add_u32 v3, s31, v3'); A('v_lshlrev_b32 v3, 2, v3')
                A('s_cmp_eq_u32 s28, 4'); A('s_cselect_b32 s31, 1.0, 0')
            else:
                bf16_round(A,'v32','v32')
                A('v_add_f32 v32, s31, v32')
                bf16_round(A,'v32','v32')
                A(f'buffer_store_dword v32, v3, s[16:19], 0 offen offset:{WS_MOD}')
        mod_block(A,64,9,64,30,576,'s[56:59]','s[60:63]',Lend,fin)
        A.endpgm()
        A(f'{Lw}:')
        Lz=A.label('k2_z')
        A('s_cmp_ge_u32 s2, 232')
        A(f's_cbranch_scc1 {Lz}')
        A('v_min_u32 v1, 287, v0'); A('v_lshlrev_b32 v1, 7, v1')
        for r in range(4): A(f'v_mov_b32 v{4+r}, 0')
        A('s_mov_b32 s31, 0x50000')
        A('s_waitcnt lgkmcnt(0)')
        A('buffer_store_dwordx4 v[4:7], v1, s[16:19], s31 offen')
        A('buffer_store_dwordx4 v[4:7], v1, s[16:19], s31 offen offset:16')
        A(f's_branch {Lend}')
        A(f'{Lz}:')
        A('s_and_b32 s31, s2, 7')
        A('s_sub_u32 s32, s2, 232'); A('s_lshr_b32 s32, s32, 3')
        A('s_lshl_b32 s33, s32, 9')
        A('v_add_u32 v1, s33, v0')
        A('s_mul_i32 s35, s31, 1152')
        A(f's_mov_b32 s36, {(2**32+8)//9}')
        A('v_mul_hi_u32 v2, v1, s36')
        A('v_mul_u32_u24 v3, 9, v2'); A('v_sub_u32 v3, v1, v3')
        A('v_mul_u32_u24 v4, 9216, v2'); A('v_lshl_add_u32 v4, v3, 7, v4')
        A('s_waitcnt lgkmcnt(0)')
        A(f'buffer_load_dword v12, v4, s[24:27], s35 offen')
        A('s_waitcnt vmcnt(0)')
    A(f'{Lend}:')
    A.endpgm()
    A.end(name, 224, 72)
```

```python
from asmlib import *
from gen1 import *
from gen4 import Cnt

WS_CNT=0x0050000
OOB=0x40000000

def out_block_pre(A, R, sU, sBeta, sMT, vLane, tag):
    vO,vA,vB,vN=R,R+1,R+2,R+3
    Lm=A.label('ob_m'); Lj=A.label('ob_j')
    A(f'v_lshrrev_b32 v{vN}, 4, v{vLane}')
    A(f's_lshl_b32 s54, s{sU}, 2')
    A(f'v_add_u32 v{vN}, s54, v{vN}')
    A(f's_lshl_b32 s55, s{sMT}, 1'); A(f's_add_u32 s55, s55, s{sBeta}')
    A(f's_mul_i32 s56, s55, {36*1024}'); A(f's_add_u32 s56, s56, {WS_X2}'); A(f's_add_u32 s57, s56, {18*1024}')
    A(f'v_lshlrev_b32 v{vA}, 4, v{vN}')
    A(f's_mov_b32 s54, {WS_MOD+5*576*4}')
    A(f'buffer_load_dwordx4 {v(R+4,4)}, v{vA}, s[16:19], s54 offen')
    A('s_lshl_b32 s55, s55, 5')
    A(f'v_and_b32 v{vB}, 15, v{vLane}')
    A(f'v_add_u32 v{vO}, s55, v{vB}')
    A(f'v_mul_u32_u24 v{vO}, 1152, v{vO}')
    A(f'v_lshl_add_u32 v{vO}, v{vN}, 3, v{vO}')
    A(f'v_lshlrev_b32 v{vB}, 4, v{vB}')
    def quad(dst,k4,t):
        A(f'v_lshrrev_b32 v{t}, 1, v{k4}'); A(f'v_lshl_add_u32 v{dst}, v{t}, 8, v{vB}')
        A(f'v_and_b32 v{t}, 1, v{k4}'); A(f'v_lshl_add_u32 v{dst}, v{t}, 3, v{dst}')
    A(f's_cmp_lt_u32 s{sU}, 18')
    A(f's_cbranch_scc1 {Lj}')
    A(f'v_sub_u32 v{vN}, 216, v{vN}')
    A(f'v_cmp_eq_u32 vcc, 144, v{vN}'); A(f'v_mov_b32 v{R+12}, 72'); A('s_nop 0')
    A(f'v_cndmask_b32 v{R+12}, v{vN}, v{R+12}, vcc')
    quad(vA,R+12,R+13)
    A(f'buffer_load_ushort v{R+12}, v{vA}, s[16:19], s56 offen')
    A(f'buffer_load_ushort v{R+13}, v{vA}, s[16:19], s57 offen')
    A(f'v_add_u32 v{vN}, -1, v{vN}')
    A(f'{Lj}:')
    quad(vA,vN,R+14)
    A(f'buffer_load_dwordx2 {v(R+8,2)}, v{vA}, s[16:19], s56 offen')
    A(f'buffer_load_dwordx2 {v(R+10,2)}, v{vA}, s[16:19], s57 offen')

def out_block_post(A, R, sU, AC, T):
    Lm=A.label('op_m'); Lj=A.label('op_j')
    XR=R+8; XE=R+12
    A(f's_cmp_ge_u32 s{sU}, 18')
    A(f's_cbranch_scc1 {Lm}')
    for p in range(4):
        A(f'v_lshlrev_b32 v{T+2*p}, 16, v{XR+p}'); A(f'v_and_b32 v{T+2*p+1}, 0xffff0000, v{XR+p}')
    A(f's_branch {Lj}')
    A(f'{Lm}:')
    for h in range(2):
        A(f'v_lshlrev_b32 v{T+4*h}, 16, v{XE+h}')
        A(f'v_and_b32 v{T+4*h+1}, 0xffff0000, v{XR+2*h+1}')
        A(f'v_lshlrev_b32 v{T+4*h+2}, 16, v{XR+2*h+1}')
        A(f'v_and_b32 v{T+4*h+3}, 0xffff0000, v{XR+2*h}')
    A(f'{Lj}:')
    for i in range(8): A(f'v_fmac_f32 v{T+i}, v{AC+i}, v{R+4+(i&3)}')
    for p in range(4): A(f'v_cvt_pk_bf16_f32 v{AC+p}, v{T+2*p}, v{T+2*p+1}')
    A(f's_movk_i32 s54, {16*1152}')
    A(f'buffer_store_dwordx2 {v(AC,2)}, v{R}, s[64:67], 0 offen')
    A(f'buffer_store_dwordx2 {v(AC+2,2)}, v{R}, s[64:67], s54 offen')

def add_partial(A, AC, P, T, first=False):
    for p in range(4):
        if first:
            A(f'v_lshlrev_b32 v{AC+2*p}, 16, v{P+p}'); A(f'v_and_b32 v{AC+2*p+1}, 0xffff0000, v{P+p}')
        else:
            A(f'v_lshlrev_b32 v{T}, 16, v{P+p}'); A(f'v_and_b32 v{T+1}, 0xffff0000, v{P+p}')
            A(f'v_add_f32 v{AC+2*p}, v{AC+2*p}, v{T}'); A(f'v_add_f32 v{AC+2*p+1}, v{AC+2*p+1}, v{T+1}')

def gen_k4e(A, name='k4_mlp_kernel', store_flags='sc1', prewarm=False, prio=2, XB=(6,6,6), XI=(1,3), recon=True, dma_on=True, st_on=True, SIG=18, NEARLY=6):
    NW=256; TILE=36864; L_HB=4*TILE; L_GS=L_HB+8192
    A.launch(name, NW, 512, L_GS+5120)
    A.begin(name)
    Lend=A.label('k4_end'); Lhelp=A.label('k4_help'); Lnorm=A.label('k4_norm')
    load_srds(A,[('ws',16),('w1',20),('w2',24),('out',64)])
    A(f's_cmp_ge_u32 s2, {NW}')
    A(f's_cbranch_scc1 {Lend}')
    sFC,sMT,sW,sM0,sDst=28,29,30,32,33
    vL16,vT0,vT1,vT2=1,2,3,4
    A(f's_and_b32 s{sFC}, s2, 7')
    A(f's_lshr_b32 s{sMT}, s2, 3')
    A(f'v_lshrrev_b32 v{vT0}, 6, v0')
    A(f'v_and_b32 v{vT1}, 63, v0')
    A(f'v_readfirstlane_b32 s{sW}, v{vT0}')
    A(f'v_lshlrev_b32 v{vL16}, 4, v{vT1}')
    A('s_nop 1')
    A(f's_cmp_ge_u32 s{sW}, 6')
    A(f's_cbranch_scc1 {Lnorm}')
    A(f's_cmp_ge_u32 s{sW}, 4')
    A(f's_cbranch_scc1 {Lhelp}')
    lg=Cnt('lgkm',15)
    def lgwait(i):
        w=lg.need(i)
        if w is not None: A(f's_waitcnt lgkmcnt({w})')
    def lgpre(k):
        if lg.n-lg.done+k>15: lgwait(lg.n-(15-k))
    vRd=5; vR2=9; vHBr=11
    NA=9
    FR=12
    BF=48
    OUT=80
    ACC=88
    acc=lambda q,b: ACC+16*q+4*b
    sCnt,sDel=46,47
    if prio==1: A('s_setprio 1')
    A(f'v_lshrrev_b32 v{vT0}, 2, v{vT1}')
    A(f'v_bfe_u32 v{vT2}, v{vT1}, 3, 2')
    A(f'v_and_b32 v{vHBr}, 3, v{vT1}')
    A(f'v_lshlrev_b32 v{vHBr}, 3, v{vHBr}')
    A(f'v_lshl_add_u32 v{vR2+1}, v{vT0}, 7, v{vHBr}')
    A(f'v_mul_u32_u24 v{vT0}, 1152, v{vT0}')
    A(f'v_add_u32 v{vT0}, v{vT0}, v{vHBr}')
    A(f's_mul_i32 s36, s{sW}, 9')
    for qq in range(4):
        A(f's_add_u32 s37, s36, {qq}')
        A(f'v_xor_b32 v{vRd+qq}, s37, v{vT2}')
        A(f'v_lshl_add_u32 v{vRd+qq}, v{vRd+qq}, 5, v{vT0}')
    A(f's_and_b32 s37, s{sW}, 2')
    A(f'v_add_u32 v{vR2+1}, {2*TILE}, v{vR2+1}')
    A(f'v_xor_b32 v{vT0}, s37, v{vT2}')
    A(f'v_lshl_add_u32 v{vR2}, v{vT0}, 5, v{vR2+1}')
    A(f'v_xor_b32 v{vT0}, 1, v{vT0}')
    A(f'v_lshl_add_u32 v{vR2+1}, v{vT0}, 5, v{vR2+1}')
    A(f'v_add_u32 v{vHBr}, {L_HB}, v{vL16}')
    A(f's_lshl_b32 s37, s{sFC}, 5')
    A(f's_add_u32 s37, s37, s{sMT}')
    A(f's_mul_i32 s{sDst}, s37, {72*1024}')
    A(f's_and_b32 s37, s{sW}, 2')
    A('s_lshl_b32 s37, s37, 11')
    A(f's_add_u32 s{sDst}, s{sDst}, s37')
    A(f's_and_b32 s37, s{sW}, 1')
    A('s_lshl_b32 s37, s37, 10')
    A(f's_add_u32 s{sDst}, s{sDst}, s37')
    A(f's_add_u32 s48, s{sDst}, {WS_PART}')
    A(f's_add_u32 s{sDst}, s48, {8*8192}')
    A(f's_mul_i32 s50, s{sMT}, {9*128}')
    A(f's_add_u32 s50, s50, {WS_CNT}')
    A(f's_mov_b32 s51, s{sFC}')
    vAt,vOne,vAtB=232,233,234
    A(f'v_add_u32 v{vAtB}, s{sFC}, v{vT1}')
    A(f'v_and_b32 v{vAtB}, 7, v{vAtB}')
    A(f'v_cmp_eq_u32 vcc, 0, v{vT1}')
    A(f'v_mov_b32 v{vOne}, 0x{OOB:x}')
    A('s_nop 0')
    A(f'v_cndmask_b32 v{vAtB}, v{vAtB}, 8, vcc')
    A(f'v_lshlrev_b32 v{vAtB}, 7, v{vAtB}')
    A(f'v_cmp_gt_u32 vcc, {NEARLY}, v{vT1}'); A('s_nop 1')
    A(f'v_cndmask_b32 v{vAt}, v{vOne}, v{vAtB}, vcc')
    A(f'v_cndmask_b32 v{vAtB}, v{vAtB}, v{vOne}, vcc')
    A(f'v_cmp_gt_u32 vcc, 8, v{vT1}'); A('s_nop 1')
    A(f'v_cndmask_b32 v{vAtB}, v{vOne}, v{vAtB}, vcc')
    A(f'v_mov_b32 v{vOne}, 1')
    A('s_lshl_b32 s44, s37, 1')
    A('s_lshr_b32 s37, s36, 1'); A('s_lshl_b32 s37, s37, 12'); A('s_and_b32 s40, s36, 1'); A('s_lshl_b32 s40, s40, 3'); A('s_add_u32 s42, s37, s40')
    A('s_add_u32 s36, s36, 1')
    A('s_lshr_b32 s37, s36, 1'); A('s_lshl_b32 s37, s37, 12'); A('s_and_b32 s40, s36, 1'); A('s_lshl_b32 s40, s40, 3'); A('s_add_u32 s43, s37, s40')
    for r in range(144): A(f'v_mov_b32 v{ACC+r}, 0')
    A(f's_mov_b32 s{sCnt}, 0')
    A(f's_mov_b32 s{sDel}, {2*TILE}')
    A('s_waitcnt lgkmcnt(0)')
    if prewarm:
        A(f's_mul_i32 s39, s{sFC}, {576*1152}')
        A(f'v_min_u32 v{vT2}, 161, v0')
        A(f'v_lshlrev_b32 v{vT2}, 7, v{vT2}')
        A(f's_mul_i32 s40, s{sMT}, {18*1152}')
        A('s_add_u32 s40, s40, s39')
    rd_id={}; b_id={}; h_id={}
    def a_half(ph,t,q,h):
        r=FR+4*(q%NA)+2*h
        lgpre(1)
        toff = TILE if t==1 else 0
        if ph==1: A(f'ds_read_b64_tr_b16 {v(r,2)}, v{vRd+(q&3)} offset:{toff+128*(q>>2)+16*1152*h}')
        else:
            k,z=divmod(q,2)
            if t==1: A(f'ds_read_b64_tr_b16 {v(r,2)}, v{vRd+z} offset:{4096*k+2048*h}')
            else: A(f'ds_read_b64_tr_b16 {v(r,2)}, v{vR2+z} offset:{4096*k+2048*h}')
        rd_id[(t&1,q)]=lg.issue()
    def b_one(par,b):
        lgpre(1)
        A(f'ds_read_b128 {v(BF+16*par+4*b,4)}, v{vHBr} offset:{par*4096+1024*b}'); b_id[par]=lg.issue()
    H1=lambda k2,b: ACC+8*k2+4*b
    def barrier():
        lgwait(lg.n); A('s_barrier')
    AC2=BF; TM2=BF+16
    def cvt_ops(q,b):
        r=acc(q,b)
        return [lambda: A(f'v_cvt_pk_bf16_f32 v{r}, v{r}, v{r+1}'), lambda: A(f'v_cvt_pk_bf16_f32 v{r+1}, v{r+2}, v{r+3}'),
                lambda: A(f'v_pk_max_i16 v{r}, v{r}, 0'), lambda: A(f'v_pk_max_i16 v{r+1}, v{r+1}, 0')]
    class Sl:
        def __init__(s): s.d={}
        def add(s,m,f): s.d.setdefault(m,[]).append(f)
        def spread(s,ops,m0,m1):
            n=len(ops)
            for x,o in enumerate(ops): s.add(m0+(x*(m1-m0))//max(n,1), o)
        def rd2(s,m,ph,t,q):
            s.add(m,lambda: a_half(ph,t,q,0)); s.add(m+1,lambda: a_half(ph,t,q,1))
    TAIL1=[(20,'a',0,0),(21,'a',0,1),(22,'b',0,0),(23,'b',1,0),(24,'a',1,0),(25,'a',1,1),(26,'b',2,0),(27,'b',3,0),
           (28,'a',2,0),(29,'a',2,1),(30,'a',3,0),(31,'a',3,1),(32,'a',4,0),(33,'a',4,1)]
    G2=[26,26,27,27,28,28,29,30,30,31,32,33,34,35]
    def h_write(q,b):
        if lg.n-lg.done>=15: lgwait(lg.n-8)
        A(f'ds_write_b64 v{vT0 if q%2==0 else vT2}, {v(acc(q,b),2)} offset:{(q>>1)*4096+1024*b}'); lg.issue()
    def body1(last):
        S=Sl()
        for t in range(2):
            M=36*t
            for s_ in range(4): S.rd2(M+4*s_,1,t,s_+5)
            if t==1 and not last:
                for x in range(4): S.add(M+15+x, lambda x=x: A(f'v_add_u32 v{vRd+x}, s{sDel}, v{vRd+x}'))
            S.add(M+19, barrier)
            if t==1 and last:
                for f,m in enumerate((20,22,24,26,28,30,33)): S.rd2(M+m,2,0,f)
                for q in range(6):
                    ops=[]
                    for b in range(4): ops+=cvt_ops(q,b)
                    S.spread(ops, M+4*q+12, M+4*q+16)
            else:
                for (m,kind,x,h) in TAIL1:
                    if kind=='a': S.add(M+m, lambda t=t,x=x,h=h: a_half(1,t+1,x,h))
                    else: S.add(M+m, lambda t=t,x=x: b_one((t+1)&1,x))
        if not last:
            S.add(70, lambda: A(f's_sub_u32 s{sDel}, 0, s{sDel}'))
            S.add(70, lambda: A(f's_add_u32 s{sCnt}, s{sCnt}, 1'))
            S.add(71, lambda: A(f's_cmp_lt_u32 s{sCnt}, 8'))
        for m in range(72):
            t,mm=divmod(m,36); q,b=divmod(mm,4)
            if b==0:
                lgwait(rd_id[(t,q)])
                if q==0: lgwait(b_id[t])
            A(f'v_mfma_f32_16x16x32_bf16 {v(acc(q,b),4)}, {v(FR+4*q,4)}, {v(BF+16*t+4*b,4)}, {v(acc(q,b),4)}')
            for f in S.d.get(m,[]): f()
    def st_ops():
        ops=[]
        for z in range(2):
            o=OUT+4*z
            for b in range(2):
                r=TM2+8*z+4*b
                ops.append(lambda r=r,o=o,b=b: A(f'v_cvt_pk_bf16_f32 v{o+2*b}, v{r}, v{r+1}'))
                ops.append(lambda r=r,o=o,b=b: A(f'v_cvt_pk_bf16_f32 v{o+2*b+1}, v{r+2}, v{r+3}'))
            ops.append(lambda z=z,o=o: A(f'buffer_store_dwordx4 {v(o,4)}, v{vL16}, s[16:19], s{sDst} offen offset:{2048*z} {store_flags}'))
        return ops
    def signal_ops():
        return [lambda: A('s_waitcnt vmcnt(0)'), lambda: A(f'buffer_atomic_add v{vOne}, v{vAtB}, s[16:19], s50 offen')]
    def early_ops():
        return [lambda: (A(f's_cmp_eq_u32 s{sCnt}, 7'), A(f's_cselect_b32 s61, s50, 0x{OOB:x}')),
                lambda: A(f's_waitcnt vmcnt({2 if NEARLY==6 else 0})'), lambda: A(f'buffer_atomic_add v{vOne}, v{vAt}, s[16:19], s61 offen')]
    def next_ops():
        def nxt():
            A('s_add_u32 s51, s51, 1'); A('s_and_b32 s51, s51, 7')
        def nxt2():
            A(f's_lshl_b32 s{sDst}, s51, 13'); A(f's_add_u32 s{sDst}, s{sDst}, s48')
        return [nxt,nxt2]
    def h_read(k2,b):
        lgpre(1)
        A(f'ds_read_b128 {v(H1(k2,b),4)}, v{vT0 if k2<9 else vT2} offset:{(k2%9)*4096+1024*b}'); h_id[(k2,b)]=lg.issue()
    def body2(first):
        S=Sl()
        for t in range(2):
            M=36*t
            for s_ in range(11): S.rd2(M+2*s_,2,t,s_+7)
            regs = vR2 if t==0 else vRd
            for x in range(2): S.add(M+22+x, lambda x=x,regs=regs: A(f'v_add_u32 v{regs+x}, s{sDel}, v{regs+x}'))
            S.add(M+25, barrier)
            seq=[(f,h) for f in range(7) for h in range(2)]
            for (f,h),g in zip(seq,G2): S.add(M+g, lambda t=t,f=f,h=h: a_half(2,t+1,f,h))
        if first:
            S.spread([lambda k2=k2,b=b: h_read(k2,b) for k2 in range(5,9) for b in range(2)], 0, 6)
            S.add(9, barrier)
            S.spread([lambda k2=k2,b=b: h_read(k2,b) for k2 in range(9,18) for b in range(2)], 10, 23)
        else:
            so=st_ops()
            S.spread(early_ops(), 1, 4)
            S.spread(so, 5, 24)
            S.spread(next_ops(), 36+18, 36+24)
        S.add(70, lambda: A(f's_sub_u32 s{sDel}, 0, s{sDel}'))
        if not first:
            S.add(70, lambda: A(f's_add_u32 s{sCnt}, s{sCnt}, 1'))
            S.add(71, lambda: A(f's_cmp_lt_u32 s{sCnt}, 8'))
        for m in range(72):
            t,mm=divmod(m,36); s_,b=divmod(mm,2); k,z=divmod(s_,2); k2=9*t+k
            if b==0 and z==0: lgwait(rd_id[(t,s_+1)])
            if first: lgwait(h_id[(k2,b)])
            c='0' if k2==0 else v(AC2+8*z+4*b,4)
            d=v(TM2+8*z+4*b,4) if k2==17 else v(AC2+8*z+4*b,4)
            A(f'v_mfma_f32_16x16x32_bf16 {d}, {v(FR+4*(s_%NA),4)}, {v(H1(k2,b),4)}, {c}')
            for f in S.d.get(m,[]): f()
    A('s_barrier')
    A.stamp(1)
    for (m,kind,x,h) in TAIL1:
        if kind=='a': a_half(1,0,x,h)
        else: b_one(0,x)
    if prewarm: A(f'buffer_load_dword v{OUT}, v{vT2}, s[24:27], s40 offen')
    L1=A.label('k4_l1')
    A('.p2align 6')
    A(f'{L1}:')
    st0=(lg.n-lg.done)
    body1(False)
    assert lg.n-lg.done==st0,(lg.n-lg.done,st0)
    A(f's_cbranch_scc1 {L1}')
    body1(True)
    A.stamp(2)
    A(f'v_add_u32 v{vT0}, s42, v{vL16}')
    A(f'v_add_u32 v{vT2}, s43, v{vL16}')
    for q in range(6):
        for b in range(4): h_write(q,b)
    for q in range(6,9):
        for b in range(4):
            for o in cvt_ops(q,b): o()
        for b in range(4): h_write(q,b)
    A(f'v_add_u32 v{vT0}, s44, v{vL16}')
    A(f'v_add_u32 v{vT2}, {TILE}, v{vT0}')
    for z in range(2): A(f'v_add_u32 v{vRd+z}, {TILE}, v{vR2+z}')
    A(f's_mov_b32 s{sDel}, {-2*TILE}')
    A(f's_mov_b32 s{sCnt}, 0')
    A('s_waitcnt vmcnt(0)')
    barrier()
    for k2 in range(5):
        for b in range(2): h_read(k2,b)
    A.stamp(3)
    body2(True)
    L2=A.label('k4_l2')
    A('.p2align 6')
    A(f'{L2}:')
    st0=(lg.n-lg.done)
    body2(False)
    assert lg.n-lg.done==st0,(lg.n-lg.done,st0)
    A(f's_cbranch_scc1 {L2}')
    for o in signal_ops(): o()
    A.stamp(4)
    RB=[FR,FR+16]; PD=ACC; TT=ACC+64
    A(f's_lshl_b32 s52, s{sFC}, 2'); A(f's_and_b32 s53, s{sW}, 2'); A('s_add_u32 s52, s52, s53')
    A('s_add_u32 s58, s52, 1')
    A(f's_and_b32 s53, s{sW}, 1')
    A('s_waitcnt lgkmcnt(0)')
    out_block_pre(A,RB[0],52,53,sMT,vT1,'a')
    out_block_pre(A,RB[1],58,53,sMT,vT1,'b')
    A(f's_mul_i32 s59, s{sFC}, {32*72*1024}')
    A(f's_sub_u32 s59, s{sDst}, s59')
    A('s_barrier')
    A.stamp(5)
    for j in range(1,8):
        A(f's_add_u32 s60, s{sFC}, {j}'); A('s_and_b32 s60, s60, 7'); A(f's_mul_i32 s60, s60, {32*72*1024}'); A('s_add_u32 s60, s60, s59')
        for z in range(2):
            A(f'buffer_load_dwordx4 {v(PD+8*(j-1)+4*z,4)}, v{vL16}, s[16:19], s60 offen offset:{2048*z} sc1')
    for j in range(1,8):
        A(f's_waitcnt vmcnt({2*(7-j)})')
        for z in range(2): add_partial(A,TM2+8*z,PD+8*(j-1)+4*z,TT)
    A.stamp(6)
    out_block_post(A,RB[0],52,TM2,TT)
    out_block_post(A,RB[1],58,TM2+8,TT+8)
    A.endpgm()
    A(f'{Lhelp}:')
    if prio==2: A('s_setprio 2')
    VA,VB,VC=14,23,32
    sBuf,sS,sN,sSkip,sPh=44,45,46,47,48
    A(f's_mul_i32 s38, s{sFC}, 1152')
    A(f's_mul_i32 s39, s{sFC}, {576*1152}')
    A(f's_sub_u32 s{sW}, s{sW}, 4')
    A(f's_mul_i32 s{sM0}, s{sW}, 18432')
    A(f's_mov_b32 s{sBuf}, s{sM0}')
    A(f's_add_u32 s49, s{sM0}, {4*TILE}')
    A(f's_mul_i32 s37, s{sW}, {144*1152}')
    A('s_add_u32 s39, s39, s37')
    A(f's_mul_i32 s37, s{sW}, {4*9216}')
    A(f's_add_u32 s{sS}, s38, s37')
    A('s_sub_u32 s35, s38, s37')
    A(f's_sub_u32 s40, {565*9216}, s37')
    A(f's_cmp_eq_u32 s{sW}, 0')
    A(f's_cselect_b32 s41, {277*9216}, s40')
    A('s_movk_i32 s37, 911')
    for j in range(9):
        A(f'v_add_u32 v{vT0}, {64*j}, v{vT1}')
        A(f'v_mul_u32_u24 v{vT2}, s37, v{vT0}')
        A(f'v_lshrrev_b32 v{vT2}, 16, v{vT2}')
        A(f'v_mul_u32_u24 v{VB+j}, 72, v{vT2}')
        A(f'v_sub_u32 v{vT0}, v{vT0}, v{VB+j}')
        A(f'v_and_b32 v{VB+j}, 6, v{vT2}')
        A(f'v_xor_b32 v{vT0}, v{vT0}, v{VB+j}')
        A(f'v_lshlrev_b32 v{vT0}, 4, v{vT0}')
        A(f'v_and_b32 v{VA+j}, 4, v{vT2}')
        A(f'v_add_u32 v{VA+j}, v{VA+j}, v{vT2}')
        A(f'v_sub_u32 v{VB+j}, 11, v{VA+j}')
        A(f'v_mul_u32_u24 v{VA+j}, 9216, v{VA+j}')
        A(f'v_mul_u32_u24 v{VB+j}, 9216, v{VB+j}')
        A(f'v_add_u32 v{VA+j}, v{VA+j}, v{vT0}')
        A(f'v_add_u32 v{VB+j}, v{VB+j}, v{vT0}')
    A(f'v_lshrrev_b32 v{vT0}, 3, v{vT1}')
    A(f'v_and_b32 v{vT2}, 6, v{vT0}')
    A(f'v_and_b32 v{VC}, 7, v{vT1}')
    A(f'v_xor_b32 v{VC}, v{VC}, v{vT2}')
    A(f'v_lshlrev_b32 v{VC}, 4, v{VC}')
    A(f'v_mul_u32_u24 v{vT0}, 1152, v{vT0}')
    A(f'v_add_u32 v{VC}, v{VC}, v{vT0}')
    if A.prof: A('s_mov_b32 s72, 0')
    def rec():
        if A.prof and recon:
            A('s_memtime s[70:71]'); A('s_waitcnt lgkmcnt(0)')
            A(f'v_cmp_eq_u32 vcc, s72, v{vT1}'); A('v_mov_b32 v61, s70'); A('s_add_u32 s72, s72, 1'); A('v_cndmask_b32 v60, v60, v61, vcc')
    def bar(n):
        A(f's_waitcnt vmcnt({n})'); A('s_barrier'); rec()
    sNB=51
    def nb_ops():
        return [lambda: A(f's_add_u32 s{sNB}, s{sBuf}, {TILE}'), lambda: A(f's_cmp_ge_u32 s{sNB}, s49'), lambda: A(f's_cselect_b32 s{sNB}, s{sM0}, s{sNB}')]
    def issue1(V, step, jr, tail=None):
        for j in jr:
            A(f's_add_u32 m0, s{sBuf}, {1024*j}')
            if j==9: A(f's_add_u32 s{sS}, s{sS}, {step}')
            elif j==12:
                for o in nb_ops(): o()
            elif j==13: A(f's_add_u32 s{sN}, s{sN}, 1')
            elif j==17:
                A(f's_mov_b32 s{sBuf}, s{sNB}'); A(f's_mov_b32 s50, s{sS}'); A(f's_add_u32 s{sS}, s{sS}, {step}'); tail()
            else: A('s_nop 0')
            if dma_on: A(f'buffer_load_dwordx4 v{V+j%9}, s[20:23], s{50 if j==17 else sS} offen lds')
    A('s_waitcnt lgkmcnt(0)')
    Ld=A.label('k4_dd'); Lds=A.label('k4_dds')
    A(f's_mov_b32 s{sN}, 0')
    A(f's_branch {Lds}')
    A('.p2align 6')
    A(f'{Ld}:')
    bar(36)
    A(f'{Lds}:')
    issue1(VA,16*9216,range(18),lambda: (A(f's_sub_u32 s52, s{sN}, 3'), A('s_cmp_lt_u32 s52, 6')))
    A(f's_cbranch_scc1 {Ld}')
    A(f's_cmp_lt_u32 s{sN}, 3')
    A(f's_cbranch_scc1 {Lds}')
    for j in range(9):
        A(f'v_cmp_le_u32 vcc, {11*9216}, v{VB+j}')
        A(f'v_add_u32 v{VA+j}, s40, v{VB+j}')
        A(f'v_add_u32 v{vT2}, s41, v{VB+j}')
        A(f'v_cndmask_b32 v{VA+j}, v{VA+j}, v{vT2}, vcc')
    A(f's_mov_b32 s{sS}, s38')
    bar(36)
    issue1(VA,0,range(9))
    A(f's_add_u32 s{sS}, s35, {(853-32*9)*9216}')
    Lm=A.label('k4_dm'); Lms=A.label('k4_dms')
    A(f's_branch {Lms}')
    A('.p2align 6')
    A(f'{Lm}:')
    bar(36)
    issue1(VB,0,range(9))
    A(f'{Lms}:')
    issue1(VB,-16*9216,range(9,18),lambda: A(f's_cmp_lt_u32 s{sN}, 18'))
    A(f's_cbranch_scc1 {Lm}')
    Lw=A.label('k4_dw'); Lws=A.label('k4_dws'); Lx20=A.label('k4_x20'); Lx21=A.label('k4_x21'); Lfin=A.label('k4_dfin')
    A(f's_add_u32 s{sS}, s39, {8*128}')
    A('.p2align 6')
    A(f'{Lw}:')
    bar(36)
    A(f'{Lws}:')
    for j in range(18):
        A(f's_add_u32 m0, s{sBuf}, {1024*j}')
        if j: A(f's_add_u32 s50, s50, {8*1152}')
        else: A(f's_mov_b32 s50, s{sS}')
        if j==10:
            A(f's_sub_u32 s53, s{sN}, 17'); A('s_lshr_b32 s54, s53, 1')
            A(f's_add_u32 s55, s54, s{sFC}'); A('s_and_b32 s55, s55, 7')
            A('s_cmp_eq_u32 s54, 0'); A('s_cselect_b32 s55, 8, s55'); A('s_lshl_b32 s55, s55, 7')
            A('s_and_b32 s53, s53, 1'); A(f's_mul_i32 s53, s53, {288*1152}')
            A('s_add_u32 s55, s55, s53'); A(f's_add_u32 s{sS}, s39, s55')
        if j==12:
            for o in nb_ops(): o()
        if j==13: A(f's_add_u32 s{sN}, s{sN}, 1')
        if j==17:
            A(f's_mov_b32 s{sBuf}, s{sNB}'); A(f's_sub_u32 s52, s{sN}, 23'); A('s_cmp_lt_u32 s52, 13')
        if dma_on: A(f'buffer_load_dwordx4 v{VC}, s[24:27], s50 offen lds')
    A(f's_cbranch_scc1 {Lw}')
    A(f's_cmp_eq_u32 s{sN}, 19'); A(f's_cbranch_scc1 {Lw}')
    A(f's_cmp_eq_u32 s{sN}, 20'); A(f's_cbranch_scc1 {Lx20}')
    A(f's_cmp_eq_u32 s{sN}, 21'); A(f's_cbranch_scc1 {Lx21}')
    A(f's_cmp_eq_u32 s{sN}, 22'); A(f's_cbranch_scc1 {Lws}')
    A(f's_branch {Lfin}')
    A(f'{Lx20}:')
    bar(36); bar(18)
    A('s_barrier'); rec(); A('s_barrier'); rec()
    A(f's_branch {Lws}')
    A(f'{Lx21}:')
    bar(18)
    A(f's_branch {Lws}')
    A(f'{Lfin}:')
    bar(36); bar(18); bar(0)
    RB=64; PD=80; AC=112; TT=120
    A(f's_lshr_b32 s52, s{sFC}, 1'); A('s_add_u32 s52, s52, 32'); A(f's_and_b32 s53, s{sFC}, 1')
    out_block_pre(A,RB,52,53,sMT,vT1,'c')
    A(f's_cmp_eq_u32 s{sW}, 0')
    A(f's_cselect_b32 s58, s{sFC}, 8'); A('s_cselect_b32 s59, 28, 32')
    A(f's_mul_i32 s60, s{sMT}, 9'); A('s_add_u32 s58, s58, s60'); A('s_lshl_b32 s58, s58, 7'); A(f's_add_u32 s58, s58, {WS_CNT}')
    A(f'v_cmp_eq_u32 vcc, 0, v{vT1}')
    A(f'v_mov_b32 v{vT0}, 0x{OOB:x}')
    A('s_nop 0')
    A(f'v_cndmask_b32 v{vT0}, v{vT0}, 0, vcc')
    A('s_barrier'); rec()
    Lp=A.label('k4_poll'); Lpd=A.label('k4_polld')
    A('s_mov_b32 s61, 0')
    A(f'{Lp}:')
    A(f'v_mov_b32 v{vT2}, 0')
    A(f'buffer_atomic_add v{vT2}, v{vT0}, s[16:19], s58 offen sc0')
    A('s_waitcnt vmcnt(0)')
    A(f'v_readfirstlane_b32 s60, v{vT2}')
    A('s_add_u32 s61, s61, 1')
    A('s_cmp_ge_u32 s60, s59'); A(f's_cbranch_scc1 {Lpd}')
    A('s_cmp_lt_u32 s61, 0x40000'); A(f's_cbranch_scc1 {Lp}')
    A(f'{Lpd}:')
    A('s_barrier'); rec()
    Lnd=A.label('k4_nd')
    A(f's_cmp_eq_u32 s{sW}, 0'); A(f's_cbranch_scc1 {Lnd}')
    A(f's_mul_i32 s60, s{sMT}, {72*1024}'); A(f's_lshl_b32 s61, s{sFC}, 10'); A('s_add_u32 s60, s60, s61'); A(f's_add_u32 s60, s60, {WS_PART+64*1024}')
    for j in range(8):
        A(f'buffer_load_dwordx4 {v(PD+4*j,4)}, v{vL16}, s[16:19], s60 offen sc1')
        A(f's_add_u32 s60, s60, {32*72*1024}')
    for j in range(8):
        A(f's_waitcnt vmcnt({7-j})')
        add_partial(A,AC,PD+4*j,TT,first=(j==0))
    out_block_post(A,RB,52,AC,TT)
    A(f'{Lnd}:')
    if A.prof:
        A(f'v_lshrrev_b32 v61, 2, v{vL16}')
        A('s_lshl_b32 s60, s2, 8')
        A(f's_add_u32 s60, s60, {0x8000000+A.kidx*0x100000+0x80000}')
        A('buffer_store_dword v60, v61, s[16:19], s60 offen')
    A.endpgm()
    A(f'{Lnorm}:')
    if prio==2: A('s_setprio 2')
    vHBw,vGS=9,10
    vR,vNmr=11,13
    TP=20; XR=76
    A(f's_sub_u32 s{sW}, s{sW}, 6')
    A(f's_lshl_b32 s34, s{sMT}, 1')
    A(f's_add_u32 s34, s34, s{sW}')
    A(f's_mul_i32 s35, s34, {36*1024}')
    A(f's_add_u32 s35, s35, {WS_X2}')
    A(f's_add_u32 s31, s35, {18*1024}')
    A(f'v_and_b32 v{vT0}, 15, v0')
    A(f's_lshl_b32 s36, s34, 5')
    A(f'v_add_u32 v{vT0}, s36, v{vT0}')
    A(f'v_lshlrev_b32 v{vT0}, 6, v{vT0}')
    A(f's_mov_b32 s36, {WS_STAT}')
    A(f's_mov_b32 m0, {L_GS}')
    A(f's_mov_b32 s37, {WS_MOD+3*2304}')
    A('s_waitcnt lgkmcnt(0)')
    ST=TP+16
    for b in range(2):
        for i in range(3):
            A(f'buffer_load_dwordx4 {v(ST+12*b+4*i,4)}, v{vT0}, s[16:19], s36 offen offset:{1024*b+16*i}')
    for k in range(4):
        A(f'buffer_load_dwordx4 v{vL16}, s[16:19], s37 offen offset:{1024*k} lds')
    A(f's_mov_b32 m0, {L_GS+4096}')
    A(f's_mov_b32 s37, {WS_MOD+3*2304+4096}')
    A(f'buffer_load_dwordx4 v{vL16}, s[16:19], s37 offen lds')
    nx=[0]
    def xbatch(n):
        for _ in range(n):
            ks=nx[0]; nx[0]+=1
            for b in range(2):
                A(f'buffer_load_dwordx4 {v(XR+8*ks+4*b,4)}, v{vL16}, s[16:19], s{35 if b==0 else 31} offen offset:{(ks&3)*1024}')
            if ks&3==3: A('s_add_u32 s35, s35, 4096'); A('s_add_u32 s31, s31, 4096')
    xbatch(XB[0])
    A(f's_lshl_b32 s37, s{sW}, 11')
    A(f's_add_u32 s37, s37, {L_HB}')
    A(f'v_add_u32 v{vHBw}, s37, v{vL16}')
    A(f'v_lshrrev_b32 v{vGS}, 4, v{vT1}')
    A(f'v_lshlrev_b32 v{vGS}, 5, v{vGS}')
    A(f'v_add_u32 v{vGS}, {L_GS}, v{vGS}')
    A(f's_mov_b32 s36, 0x3ae38e39')
    A(f's_mov_b32 s37, 0x3727c5ac')
    A.stamp(1)
    A(f's_waitcnt vmcnt({2*XB[0]})')
    GSr=TP; UX=TP+16; HO=TP+40
    def gs_read():
        for k in range(4):
            A(f'ds_read_b128 {v(GSr+4*k,4)}, v{vGS} offset:{(k>>1)*2304+16*(k&1)}')
        A(f'v_add_u32 v{vGS}, 128, v{vGS}')
    gs_read()
    for b in range(2):
        S_=ST+12*b
        for i in range(1,6):
            A(f'v_pk_add_f32 {v(S_,2)}, {v(S_,2)}, {v(S_+2*i,2)}')
        A(f'v_mul_f32 v{S_}, s36, v{S_}')
        A(f'v_mul_f32 v{S_+1}, s36, v{S_+1}')
        A(f'v_fma_f32 v{S_+1}, -v{S_}, v{S_}, v{S_+1}')
        A(f'v_max_f32 v{S_+1}, 0, v{S_+1}')
        bf16_round(A,f'v{S_+1}',f'v{S_+1}')
        A(f'v_add_f32 v{S_+1}, s37, v{S_+1}')
        bf16_round(A,f'v{S_+1}',f'v{S_+1}')
        A(f'v_sqrt_f32 v{S_+1}, v{S_+1}')
        A('s_nop 0')
        bf16_round(A,f'v{S_+1}',f'v{S_+1}')
        A(f'v_rcp_f32 v{vR+b}, v{S_+1}')
        bf16_round(A,f'v{S_}',f'v{S_}')
        A(f'v_mul_f32 v{vNmr+b}, -v{S_}, v{vR+b}')
    sK,sIdx,sEv=44,45,46
    def part1():
        A(f's_set_gpr_idx_on s{sIdx}, gpr_idx(SRC1)')
        A(f's_add_u32 s{sK}, s{sK}, 1')
        for b in range(2):
            for p in range(4):
                A(f'v_lshlrev_b32 v{UX+8*b+2*p}, 16, v{XR+4*b+p}')
                A(f'v_and_b32 v{UX+8*b+2*p+1}, 0xffff0000, v{XR+4*b+p}')
        A('s_set_gpr_idx_off')
        A(f's_add_u32 s{sIdx}, s{sIdx}, 8')
        for b in range(2):
            for e in range(8): A(f'v_fma_f32 v{UX+8*b+e}, v{UX+8*b+e}, v{vR+b}, v{vNmr+b}')
    def hwrite():
        for b in range(2): A(f'ds_write_b128 v{vHBw}, {v(HO+4*b,4)} offset:{1024*b}')
        A(f'v_xor_b32 v{vHBw}, 4096, v{vHBw}')
    def part2(first=False):
        A('s_waitcnt lgkmcnt(0)' if first else 's_waitcnt lgkmcnt(2)')
        for b in range(2):
            for e in range(8): A(f'v_fma_f32 v{UX+8*b+e}, v{UX+8*b+e}, v{GSr+8+e}, v{GSr+e}')
        if not first: A('s_waitcnt lgkmcnt(0)')
        gs_read()
        for b in range(2):
            for p in range(4): A(f'v_cvt_pk_bf16_f32 v{HO+4*b+p}, v{UX+8*b+2*p}, v{UX+8*b+2*p+1}')
    ev={}
    ev.setdefault(2,[]).append(('w0',))
    ev.setdefault(XI[0]+1,[]).append(('i',1)); ev.setdefault(XI[1]+1,[]).append(('i',2))
    ev.setdefault(XB[0],[]).append(('w',1)); ev.setdefault(XB[0]+XB[1],[]).append(('w',2))
    ev.setdefault(18,[]).append(('end',))
    evk=sorted(ev)
    A(f's_mov_b32 s{sK}, 0')
    A(f's_mov_b32 s{sIdx}, 0')
    A(f's_mov_b32 s{sEv}, {evk[0]}')
    A(f's_waitcnt vmcnt({2*XB[0]-4})')
    part1(); part2(True)
    Ln=A.label('k4_nl'); Lin=A.label('k4_nin'); Lev=A.label('k4_nev')
    A(f's_branch {Lin}')
    A('.p2align 6')
    A(f'{Ln}:')
    A('s_barrier')
    A(f'{Lin}:')
    part1(); hwrite(); part2()
    A(f's_cmp_lg_u32 s{sK}, s{sEv}')
    A(f's_cbranch_scc1 {Ln}')
    issued=1
    labs={k:A.label('k4_ev') for k in evk}
    for x,k in enumerate(evk):
        A(f'{labs[k]}:')
        if x+1<len(evk):
            A(f's_cmp_lg_u32 s{sK}, {k}'); A(f's_cbranch_scc1 {labs[evk[x+1]]}')
        for e in ev[k]:
            if e[0]=='w0': A(f's_waitcnt vmcnt({sum(2*x_ for x_ in XB[1:issued])})')
            elif e[0]=='i': xbatch(XB[e[1]]); issued+=1
            elif e[0]=='w': A(f's_waitcnt vmcnt({sum(2*x_ for x_ in XB[e[1]+1:issued])})')
            else:
                A('s_barrier')
                hwrite()
                A('s_waitcnt lgkmcnt(0)')
                A('s_barrier')
        if x+1<len(evk):
            A(f's_mov_b32 s{sEv}, {evk[x+1]}')
            A(f's_branch {Ln}')
    A('code_end:')
    A(f'{Lend}:')
    A.endpgm()
    A.end(name, 236, 72)
```

```python
from asmlib import *
from gen1 import *
from gen4 import Cnt

WS_CNT=0x0050000
OOB=0x40000000

def out_block_pre(A, R, sU, sBeta, sMT, vLane, tag):
    vO,vA,vB,vN=R,R+1,R+2,R+3
    Lm=A.label('ob_m'); Lj=A.label('ob_j')
    A(f'v_lshrrev_b32 v{vN}, 4, v{vLane}')
    A(f's_lshl_b32 s54, s{sU}, 2')
    A(f'v_add_u32 v{vN}, s54, v{vN}')
    A(f's_lshl_b32 s55, s{sMT}, 1'); A(f's_add_u32 s55, s55, s{sBeta}')
    A(f's_mul_i32 s56, s55, {36*1024}'); A(f's_add_u32 s56, s56, {WS_X2}'); A(f's_add_u32 s57, s56, {18*1024}')
    A(f'v_lshlrev_b32 v{vA}, 4, v{vN}')
    A(f's_mov_b32 s54, {WS_MOD+5*576*4}')
    A(f'buffer_load_dwordx4 {v(R+4,4)}, v{vA}, s[16:19], s54 offen')
    A('s_lshl_b32 s55, s55, 5')
    A(f'v_and_b32 v{vB}, 15, v{vLane}')
    A(f'v_add_u32 v{vO}, s55, v{vB}')
    A(f'v_mul_u32_u24 v{vO}, 1152, v{vO}')
    A(f'v_lshl_add_u32 v{vO}, v{vN}, 3, v{vO}')
    A(f'v_lshlrev_b32 v{vB}, 4, v{vB}')
    def quad(dst,k4,t):
        A(f'v_lshrrev_b32 v{t}, 1, v{k4}'); A(f'v_lshl_add_u32 v{dst}, v{t}, 8, v{vB}')
        A(f'v_and_b32 v{t}, 1, v{k4}'); A(f'v_lshl_add_u32 v{dst}, v{t}, 3, v{dst}')
    A(f's_cmp_lt_u32 s{sU}, 18')
    A(f's_cbranch_scc1 {Lj}')
    A(f'v_sub_u32 v{vN}, 216, v{vN}')
    A(f'v_cmp_eq_u32 vcc, 144, v{vN}'); A(f'v_mov_b32 v{R+12}, 72'); A('s_nop 0')
    A(f'v_cndmask_b32 v{R+12}, v{vN}, v{R+12}, vcc')
    quad(vA,R+12,R+13)
    A(f'buffer_load_ushort v{R+12}, v{vA}, s[16:19], s56 offen')
    A(f'buffer_load_ushort v{R+13}, v{vA}, s[16:19], s57 offen')
    A(f'v_add_u32 v{vN}, -1, v{vN}')
    A(f'{Lj}:')
    quad(vA,vN,R+14)
    A(f'buffer_load_dwordx2 {v(R+8,2)}, v{vA}, s[16:19], s56 offen')
    A(f'buffer_load_dwordx2 {v(R+10,2)}, v{vA}, s[16:19], s57 offen')

def out_block_post(A, R, sU, AC, T):
    Lm=A.label('op_m'); Lj=A.label('op_j')
    XR=R+8; XE=R+12
    A(f's_cmp_ge_u32 s{sU}, 18')
    A(f's_cbranch_scc1 {Lm}')
    for p in range(4):
        A(f'v_lshlrev_b32 v{T+2*p}, 16, v{XR+p}'); A(f'v_and_b32 v{T+2*p+1}, 0xffff0000, v{XR+p}')
    A(f's_branch {Lj}')
    A(f'{Lm}:')
    for h in range(2):
        A(f'v_lshlrev_b32 v{T+4*h}, 16, v{XE+h}')
        A(f'v_and_b32 v{T+4*h+1}, 0xffff0000, v{XR+2*h+1}')
        A(f'v_lshlrev_b32 v{T+4*h+2}, 16, v{XR+2*h+1}')
        A(f'v_and_b32 v{T+4*h+3}, 0xffff0000, v{XR+2*h}')
    A(f'{Lj}:')
    for i in range(8): A(f'v_fmac_f32 v{T+i}, v{AC+i}, v{R+4+(i&3)}')
    for p in range(4): A(f'v_cvt_pk_bf16_f32 v{AC+p}, v{T+2*p}, v{T+2*p+1}')
    A(f's_movk_i32 s54, {16*1152}')
    A(f'buffer_store_dwordx2 {v(AC,2)}, v{R}, s[64:67], 0 offen')
    A(f'buffer_store_dwordx2 {v(AC+2,2)}, v{R}, s[64:67], s54 offen')

def add_partial(A, AC, P, T, first=False):
    for p in range(4):
        if first:
            A(f'v_lshlrev_b32 v{AC+2*p}, 16, v{P+p}'); A(f'v_and_b32 v{AC+2*p+1}, 0xffff0000, v{P+p}')
        else:
            A(f'v_lshlrev_b32 v{T}, 16, v{P+p}'); A(f'v_and_b32 v{T+1}, 0xffff0000, v{P+p}')
            A(f'v_add_f32 v{AC+2*p}, v{AC+2*p}, v{T}'); A(f'v_add_f32 v{AC+2*p+1}, v{AC+2*p+1}, v{T+1}')

def gen_k4g(A, name='k4_mlp_kernel', store_flags='sc1', prewarm=False, prio=2, XB=(6,6,6), XI=(1,3), recon=True, dma_on=True, st_on=True, SIG=18, NEARLY=6, NE=6, SPR=3, DPR=None, ST0=14, ST1=23):
    NW=256; TILE=36864; L_HB=4*TILE; L_GS=L_HB+8192
    A.launch(name, NW, 512, L_GS+5120)
    A.begin(name)
    Lend=A.label('k4_end'); Lhelp=A.label('k4_help'); Lnorm=A.label('k4_norm')
    load_srds(A,[('ws',16),('w1',20),('w2',24),('out',64)])
    A(f's_cmp_ge_u32 s2, {NW}')
    A(f's_cbranch_scc1 {Lend}')
    sFC,sMT,sW,sM0,sDst=28,29,30,32,33
    vL16,vT0,vT1,vT2=1,2,3,4
    A(f's_and_b32 s{sFC}, s2, 7')
    A(f's_lshr_b32 s{sMT}, s2, 3')
    A(f'v_lshrrev_b32 v{vT0}, 6, v0')
    A(f'v_and_b32 v{vT1}, 63, v0')
    A(f'v_readfirstlane_b32 s{sW}, v{vT0}')
    A(f'v_lshlrev_b32 v{vL16}, 4, v{vT1}')
    A('s_nop 1')
    A(f's_cmp_ge_u32 s{sW}, 6')
    A(f's_cbranch_scc1 {Lnorm}')
    A(f's_cmp_ge_u32 s{sW}, 4')
    A(f's_cbranch_scc1 {Lhelp}')
    lg=Cnt('lgkm',15)
    def lgwait(i):
        w=lg.need(i)
        if w is not None: A(f's_waitcnt lgkmcnt({w})')
    def lgpre(k):
        if lg.n-lg.done+k>15: lgwait(lg.n-(15-k))
    vRd=5; vR2=9; vHBr=11
    NA=9
    FR=12
    BF=48
    OUT=80
    ACC=88
    acc=lambda q,b: ACC+16*q+4*b
    sCnt,sDel=46,47
    if prio==1: A('s_setprio 1')
    A(f'v_lshrrev_b32 v{vT0}, 2, v{vT1}')
    A(f'v_bfe_u32 v{vT2}, v{vT1}, 3, 2')
    A(f'v_and_b32 v{vHBr}, 3, v{vT1}')
    A(f'v_lshlrev_b32 v{vHBr}, 3, v{vHBr}')
    A(f'v_lshl_add_u32 v{vR2+1}, v{vT0}, 7, v{vHBr}')
    A(f'v_mul_u32_u24 v{vT0}, 1152, v{vT0}')
    A(f'v_add_u32 v{vT0}, v{vT0}, v{vHBr}')
    A(f's_mul_i32 s36, s{sW}, 9')
    for qq in range(4):
        A(f's_add_u32 s37, s36, {qq}')
        A(f'v_xor_b32 v{vRd+qq}, s37, v{vT2}')
        A(f'v_lshl_add_u32 v{vRd+qq}, v{vRd+qq}, 5, v{vT0}')
    A(f's_and_b32 s37, s{sW}, 2')
    A(f'v_add_u32 v{vR2+1}, {2*TILE}, v{vR2+1}')
    A(f'v_xor_b32 v{vT0}, s37, v{vT2}')
    A(f'v_lshl_add_u32 v{vR2}, v{vT0}, 5, v{vR2+1}')
    A(f'v_xor_b32 v{vT0}, 1, v{vT0}')
    A(f'v_lshl_add_u32 v{vR2+1}, v{vT0}, 5, v{vR2+1}')
    A(f'v_add_u32 v{vHBr}, {L_HB}, v{vL16}')
    A(f's_lshl_b32 s37, s{sFC}, 5')
    A(f's_add_u32 s37, s37, s{sMT}')
    A(f's_mul_i32 s48, s37, {72*1024}')
    A(f's_and_b32 s37, s{sW}, 2')
    A('s_lshl_b32 s37, s37, 11')
    A('s_add_u32 s48, s48, s37')
    A(f's_and_b32 s37, s{sW}, 1')
    A('s_lshl_b32 s37, s37, 10')
    A('s_add_u32 s48, s48, s37')
    A(f's_add_u32 s48, s48, {WS_PART}')
    A(f's_add_u32 s{sDst}, s48, {8*8192}')
    A(f's_mul_i32 s50, s{sMT}, {9*128}')
    A(f's_add_u32 s50, s50, {WS_CNT}')
    A(f's_mov_b32 s51, s{sFC}')
    vAt,vOne,vAtB=232,233,234
    A(f'v_add_u32 v{vAtB}, s{sFC}, v{vT1}')
    A(f'v_and_b32 v{vAtB}, 7, v{vAtB}')
    A(f'v_lshlrev_b32 v{vAtB}, 7, v{vAtB}')
    A(f'v_lshl_add_u32 v{vAtB}, v{vT1}, 2, v{vAtB}')
    A(f's_lshl_b32 s52, s{sFC}, 2'); A('s_add_u32 s52, s52, 1024')
    A(f'v_cmp_eq_u32 vcc, 0, v{vT1}')
    A(f'v_mov_b32 v{vAt}, s52')
    A(f'v_mov_b32 v{vOne}, 0x{OOB:x}')
    A(f'v_cndmask_b32 v{vAtB}, v{vAtB}, v{vAt}, vcc')
    A(f'v_cmp_gt_u32 vcc, {NE}, v{vT1}'); A('s_nop 1')
    A(f'v_cndmask_b32 v{vAt}, v{vOne}, v{vAtB}, vcc')
    A(f'v_cndmask_b32 v{vAtB}, v{vAtB}, v{vOne}, vcc')
    A(f'v_cmp_gt_u32 vcc, 8, v{vT1}'); A('s_nop 1')
    A(f'v_cndmask_b32 v{vAtB}, v{vOne}, v{vAtB}, vcc')
    A(f'v_mov_b32 v{vOne}, 1')
    A('s_lshl_b32 s44, s37, 1')
    A('s_lshr_b32 s37, s36, 1'); A('s_lshl_b32 s37, s37, 12'); A('s_and_b32 s40, s36, 1'); A('s_lshl_b32 s40, s40, 3'); A('s_add_u32 s42, s37, s40')
    A('s_add_u32 s36, s36, 1')
    A('s_lshr_b32 s37, s36, 1'); A('s_lshl_b32 s37, s37, 12'); A('s_and_b32 s40, s36, 1'); A('s_lshl_b32 s40, s40, 3'); A('s_add_u32 s43, s37, s40')
    for r in range(144): A(f'v_mov_b32 v{ACC+r}, 0')
    A(f's_mov_b32 s{sCnt}, 0')
    A(f's_mov_b32 s{sDel}, {2*TILE}')
    A('s_waitcnt lgkmcnt(0)')
    if prewarm:
        A(f's_mul_i32 s39, s{sFC}, {576*1152}')
        A(f'v_min_u32 v{vT2}, 161, v0')
        A(f'v_lshlrev_b32 v{vT2}, 7, v{vT2}')
        A(f's_mul_i32 s40, s{sMT}, {18*1152}')
        A('s_add_u32 s40, s40, s39')
    rd_id={}; b_id={}; h_id={}
    def a_half(ph,t,q,h):
        r=FR+4*(q%NA)+2*h
        lgpre(1)
        toff = TILE if t==1 else 0
        if ph==1: A(f'ds_read_b64_tr_b16 {v(r,2)}, v{vRd+(q&3)} offset:{toff+128*(q>>2)+16*1152*h}')
        else:
            k,z=divmod(q,2)
            if t==1: A(f'ds_read_b64_tr_b16 {v(r,2)}, v{vRd+z} offset:{4096*k+2048*h}')
            else: A(f'ds_read_b64_tr_b16 {v(r,2)}, v{vR2+z} offset:{4096*k+2048*h}')
        rd_id[(t&1,q)]=lg.issue()
    def b_one(par,b):
        lgpre(1)
        A(f'ds_read_b128 {v(BF+16*par+4*b,4)}, v{vHBr} offset:{par*4096+1024*b}'); b_id[par]=lg.issue()
    H1=lambda k2,b: ACC+8*k2+4*b
    def barrier():
        lgwait(lg.n); A('s_barrier')
    AC2=BF; TM2=BF+16
    def cvt_ops(q,b):
        r=acc(q,b)
        return [lambda: A(f'v_cvt_pk_bf16_f32 v{r}, v{r}, v{r+1}'), lambda: A(f'v_cvt_pk_bf16_f32 v{r+1}, v{r+2}, v{r+3}'),
                lambda: A(f'v_pk_max_i16 v{r}, v{r}, 0'), lambda: A(f'v_pk_max_i16 v{r+1}, v{r+1}, 0')]
    class Sl:
        def __init__(s): s.d={}
        def add(s,m,f): s.d.setdefault(m,[]).append(f)
        def spread(s,ops,m0,m1):
            n=len(ops)
            for x,o in enumerate(ops): s.add(m0+(x*(m1-m0))//max(n,1), o)
        def rd2(s,m,ph,t,q):
            s.add(m,lambda: a_half(ph,t,q,0)); s.add(m+1,lambda: a_half(ph,t,q,1))
    TAIL1=[(20,'a',0,0),(21,'a',0,1),(22,'b',0,0),(23,'b',1,0),(24,'a',1,0),(25,'a',1,1),(26,'b',2,0),(27,'b',3,0),
           (28,'a',2,0),(29,'a',2,1),(30,'a',3,0),(31,'a',3,1),(32,'a',4,0),(33,'a',4,1)]
    G2=[26,26,27,27,28,28,29,30,30,31,32,33,34,35]
    def h_write(q,b):
        if lg.n-lg.done>=15: lgwait(lg.n-8)
        A(f'ds_write_b64 v{vT0 if q%2==0 else vT2}, {v(acc(q,b),2)} offset:{(q>>1)*4096+1024*b}'); lg.issue()
    def body1(last):
        S=Sl()
        for t in range(2):
            M=36*t
            for s_ in range(4): S.rd2(M+4*s_,1,t,s_+5)
            if t==1 and not last:
                for x in range(4): S.add(M+15+x, lambda x=x: A(f'v_add_u32 v{vRd+x}, s{sDel}, v{vRd+x}'))
            S.add(M+19, barrier)
            if t==1 and last:
                for f,m in enumerate((20,22,24,26,28,30,33)): S.rd2(M+m,2,0,f)
                for q in range(6):
                    ops=[]
                    for b in range(4): ops+=cvt_ops(q,b)
                    S.spread(ops, M+4*q+12, M+4*q+16)
            else:
                for (m,kind,x,h) in TAIL1:
                    if kind=='a': S.add(M+m, lambda t=t,x=x,h=h: a_half(1,t+1,x,h))
                    else: S.add(M+m, lambda t=t,x=x: b_one((t+1)&1,x))
        if not last:
            S.add(70, lambda: A(f's_sub_u32 s{sDel}, 0, s{sDel}'))
            S.add(70, lambda: A(f's_add_u32 s{sCnt}, s{sCnt}, 1'))
            S.add(71, lambda: A(f's_cmp_lt_u32 s{sCnt}, 8'))
        for m in range(72):
            t,mm=divmod(m,36); q,b=divmod(mm,4)
            if b==0:
                lgwait(rd_id[(t,q)])
                if q==0: lgwait(b_id[t])
            A(f'v_mfma_f32_16x16x32_bf16 {v(acc(q,b),4)}, {v(FR+4*q,4)}, {v(BF+16*t+4*b,4)}, {v(acc(q,b),4)}')
            for f in S.d.get(m,[]): f()
    def st_ops():
        ops=[]
        for z in range(2):
            o=OUT+4*z
            for b in range(2):
                r=TM2+8*z+4*b
                ops.append(lambda r=r,o=o,b=b: A(f'v_cvt_pk_bf16_f32 v{o+2*b}, v{r}, v{r+1}'))
                ops.append(lambda r=r,o=o,b=b: A(f'v_cvt_pk_bf16_f32 v{o+2*b+1}, v{r+2}, v{r+3}'))
            ops.append(lambda z=z,o=o: A(f'buffer_store_dwordx4 {v(o,4)}, v{vL16}, s[16:19], s{sDst} offen offset:{2048*z} {store_flags}'))
        return ops
    def early():
        L=A.label('k4_ne')
        A(f's_cmp_lg_u32 s{sCnt}, 7'); A(f's_cbranch_scc1 {L}')
        A('s_waitcnt vmcnt(2)')
        A(f'buffer_atomic_add v{vOne}, v{vAt}, s[16:19], s50 offen')
        A(f'{L}:')
    def next_ops():
        def nxt():
            A('s_add_u32 s51, s51, 1'); A('s_and_b32 s51, s51, 7')
        def nxt2():
            A(f's_lshl_b32 s{sDst}, s51, 13'); A(f's_add_u32 s{sDst}, s{sDst}, s48')
        return [nxt,nxt2]
    def h_read(k2,b):
        lgpre(1)
        A(f'ds_read_b128 {v(H1(k2,b),4)}, v{vT0 if k2<9 else vT2} offset:{(k2%9)*4096+1024*b}'); h_id[(k2,b)]=lg.issue()
    def body2(first):
        S=Sl()
        for t in range(2):
            M=36*t
            for s_ in range(11): S.rd2(M+2*s_,2,t,s_+7)
            regs = vR2 if t==0 else vRd
            for x in range(2): S.add(M+22+x, lambda x=x,regs=regs: A(f'v_add_u32 v{regs+x}, s{sDel}, v{regs+x}'))
            if t==1 and not first:
                def cbar():
                    L=A.label('k4_nb')
                    lgwait(lg.n); A(f's_cbranch_scc1 {L}'); A('s_barrier'); A(f'{L}:')
                S.add(M+24, lambda: A(f's_cmp_eq_u32 s{sCnt}, 7'))
                S.add(M+25, cbar)
            else: S.add(M+25, barrier)
            seq=[(f,h) for f in range(7) for h in range(2)]
            for (f,h),g in zip(seq,G2): S.add(M+g, lambda t=t,f=f,h=h: a_half(2,t+1,f,h))
        if first:
            S.spread([lambda k2=k2,b=b: h_read(k2,b) for k2 in range(5,9) for b in range(2)], 0, 6)
            S.add(9, barrier)
            S.spread([lambda k2=k2,b=b: h_read(k2,b) for k2 in range(9,18) for b in range(2)], 10, 23)
        else:
            so=st_ops()
            S.add(2, early)
            S.spread(so[:5], ST0-8, ST0+1); S.spread(so[5:], ST1-8, ST1+1)
            S.spread(next_ops(), 64, 68)
        S.add(70, lambda: A(f's_sub_u32 s{sDel}, 0, s{sDel}'))
        if not first:
            S.add(70, lambda: A(f's_add_u32 s{sCnt}, s{sCnt}, 1'))
            S.add(71, lambda: A(f's_cmp_lt_u32 s{sCnt}, 8'))
        for m in range(72):
            t,mm=divmod(m,36); s_,b=divmod(mm,2); k,z=divmod(s_,2); k2=9*t+k
            if b==0 and z==0: lgwait(rd_id[(t,s_+1)])
            if first: lgwait(h_id[(k2,b)])
            c='0' if k2==0 else v(AC2+8*z+4*b,4)
            d=v(TM2+8*z+4*b,4) if k2==17 else v(AC2+8*z+4*b,4)
            A(f'v_mfma_f32_16x16x32_bf16 {d}, {v(FR+4*(s_%NA),4)}, {v(H1(k2,b),4)}, {c}')
            for f in S.d.get(m,[]): f()
    A('s_barrier')
    A.stamp(1)
    for (m,kind,x,h) in TAIL1:
        if kind=='a': a_half(1,0,x,h)
        else: b_one(0,x)
    if prewarm: A(f'buffer_load_dword v{OUT}, v{vT2}, s[24:27], s40 offen')
    L1=A.label('k4_l1')
    A('.p2align 6')
    A(f'{L1}:')
    st0=(lg.n-lg.done)
    body1(False)
    assert lg.n-lg.done==st0,(lg.n-lg.done,st0)
    A(f's_cbranch_scc1 {L1}')
    body1(True)
    A.stamp(2)
    A(f'v_add_u32 v{vT0}, s42, v{vL16}')
    A(f'v_add_u32 v{vT2}, s43, v{vL16}')
    for q in range(6):
        for b in range(4): h_write(q,b)
    for q in range(6,9):
        for b in range(4):
            for o in cvt_ops(q,b): o()
        for b in range(4): h_write(q,b)
    A(f'v_add_u32 v{vT0}, s44, v{vL16}')
    A(f'v_add_u32 v{vT2}, {TILE}, v{vT0}')
    for z in range(2): A(f'v_add_u32 v{vRd+z}, {TILE}, v{vR2+z}')
    A(f's_mov_b32 s{sDel}, {-2*TILE}')
    A(f's_mov_b32 s{sCnt}, 0')
    barrier()
    for k2 in range(5):
        for b in range(2): h_read(k2,b)
    A.stamp(3)
    body2(True)
    L2=A.label('k4_l2')
    A('.p2align 6')
    A(f'{L2}:')
    st0=(lg.n-lg.done)
    body2(False)
    assert lg.n-lg.done==st0,(lg.n-lg.done,st0)
    A(f's_cbranch_scc1 {L2}')
    A('s_waitcnt vmcnt(0)')
    A(f'buffer_atomic_add v{vOne}, v{vAtB}, s[16:19], s50 offen')
    A.stamp(4)
    A(f's_lshl_b32 s52, s{sW}, 12')
    A(f'v_add_u32 v{vT0}, s52, v{vL16}')
    A('s_nop 4')
    for x in range(4): A(f'ds_write_b128 v{vT0}, {v(TM2+4*x,4)} offset:{1024*x}')
    def poll_setup():
        A(f'v_lshlrev_b32 v{vT0}, 2, v{vT1}')
        A(f'v_cmp_gt_u32 vcc, 8, v{vT1}')
        A(f'v_mov_b32 v{vT2}, 0x{OOB:x}')
        A(f's_mul_i32 s63, s{sMT}, {9*128}'); A(f's_add_u32 s63, s63, {WS_CNT}')
        A(f'v_cndmask_b32 v{vT0}, v{vT2}, v{vT0}, vcc')
        A('s_mov_b32 s69, 0')
    def poll(sAddr, mask):
        Lp=A.label('k4_poll'); Lpd=A.label('k4_polld')
        A(f's_and_b32 s60, s69, {mask}'); A(f's_cmp_eq_u32 s60, {mask}'); A(f's_cbranch_scc1 {Lpd}')
        A('s_mov_b32 s61, 0')
        A(f'{Lp}:')
        A(f'v_mov_b32 v{vT2}, 0')
        A(f'buffer_atomic_add v{vT2}, v{vT0}, s[16:19], s{sAddr} offen sc0')
        A('s_waitcnt vmcnt(0)')
        A(f'v_cmp_eq_u32 vcc, 4, v{vT2}')
        A('s_add_u32 s61, s61, 1')
        A('s_mov_b32 s69, vcc_lo')
        A(f's_and_b32 s60, s69, {mask}'); A(f's_cmp_eq_u32 s60, {mask}'); A(f's_cbranch_scc1 {Lpd}')
        A('s_cmp_lt_u32 s61, 0x40000'); A(f's_cbranch_scc1 {Lp}')
        A(f'{Lpd}:')
    A('s_waitcnt lgkmcnt(0)')
    Ln8=A.label('k4_n8')
    A(f's_cmp_lg_u32 s{sW}, 3'); A(f's_cbranch_scc1 {Ln8}')
    R8,P8,A8,T8=96,112,176,200
    poll_setup()
    A(f's_add_u32 s59, s63, {8*128}')
    poll(59,0xff)
    A(f's_mul_i32 s60, s{sMT}, {72*1024}'); A(f's_lshl_b32 s61, s{sFC}, 10'); A('s_add_u32 s60, s60, s61'); A(f's_add_u32 s60, s60, {WS_PART+64*1024}')
    for j in range(8):
        A(f'buffer_load_dwordx4 {v(P8+4*j,4)}, v{vL16}, s[16:19], s60 offen sc1')
        A(f's_add_u32 s60, s60, {32*72*1024}')
    A(f's_lshr_b32 s68, s{sFC}, 1'); A('s_add_u32 s68, s68, 32'); A(f's_and_b32 s59, s{sFC}, 1')
    out_block_pre(A,R8,68,59,sMT,vT1,'c')
    A('s_waitcnt vmcnt(0)')
    for j in range(8): add_partial(A,A8,P8+4*j,T8,first=(j==0))
    out_block_post(A,R8,68,A8,T8)
    A(f'{Ln8}:')
    A('s_barrier')
    A.endpgm()
    Lred=A.label('k4_red')
    def reduce_code():
        sH=62
        RB=[64,80,96]; PD=112; AC=[176,184,192]; TT=200; OW=208
        A(f'{Lred}:')
        poll_setup()
        A(f's_lshl_b32 s59, s{sFC}, 7'); A('s_add_u32 s59, s59, s63')
        poll(59,(1<<NE)-2)
        A(f's_lshl_b32 s52, s{sFC}, 2'); A(f's_and_b32 s53, s{sH}, 2'); A('s_add_u32 s52, s52, s53')
        A('s_add_u32 s58, s52, 1')
        A(f's_and_b32 s53, s{sH}, 1')
        A(f's_mul_i32 s68, s{sMT}, {72*1024}'); A(f's_lshl_b32 s60, s52, 11'); A('s_add_u32 s68, s68, s60')
        A('s_lshl_b32 s60, s53, 10'); A('s_add_u32 s68, s68, s60'); A(f's_add_u32 s68, s68, {WS_PART}')
        def ploads(ps):
            for p in ps:
                A(f's_sub_u32 s60, s{sFC}, {p}'); A('s_and_b32 s60, s60, 7'); A(f's_mul_i32 s60, s60, {32*72*1024}'); A('s_add_u32 s60, s60, s68')
                for z in range(2):
                    A(f'buffer_load_dwordx4 {v(PD+8*(p-1)+4*z,4)}, v{vL16}, s[16:19], s60 offen offset:{2048*z} sc1')
        A.stamp(3)
        ploads(range(1,NE))
        out_block_pre(A,RB[0],52,53,sMT,vT1,'a')
        out_block_pre(A,RB[1],58,53,sMT,vT1,'b')
        poll(59,0x100-(1<<NE))
        A.stamp(4)
        ploads(range(NE,8))
        for p in range(1,8):
            A(f's_waitcnt vmcnt({2*(7-max(p,NE-1))})')
            for z in range(2): add_partial(A,AC[z],PD+8*(p-1)+4*z,TT,first=(p==1))
        A.stamp(5)
        A(f's_lshl_b32 s60, s{sH}, 12')
        A(f'v_add_u32 v{vT0}, s60, v{vL16}')
        A('s_barrier')
        for x in range(4): A(f'ds_read_b128 {v(OW+4*x,4)}, v{vT0} offset:{1024*x}')
        A('s_waitcnt lgkmcnt(0)')
        for z in range(2):
            for i in range(8): A(f'v_add_f32 v{AC[z]+i}, v{AC[z]+i}, v{OW+8*z+i}')
        A.stamp(6)
        out_block_post(A,RB[0],52,AC[0],TT)
        out_block_post(A,RB[1],58,AC[1],PD)
        A.endpgm()
    A(f'{Lhelp}:')
    if DPR is not None: A(f's_setprio {DPR}')
    elif prio==2: A('s_setprio 2')
    VA,VB,VC=14,23,32
    sBuf,sS,sN,sSkip,sPh=44,45,46,47,48
    A(f's_mul_i32 s38, s{sFC}, 1152')
    A(f's_mul_i32 s39, s{sFC}, {576*1152}')
    A(f's_sub_u32 s{sW}, s{sW}, 4')
    A(f's_mul_i32 s{sM0}, s{sW}, 18432')
    A(f's_mov_b32 s{sBuf}, s{sM0}')
    A(f's_add_u32 s49, s{sM0}, {4*TILE}')
    A(f's_mul_i32 s37, s{sW}, {144*1152}')
    A('s_add_u32 s39, s39, s37')
    A(f's_mul_i32 s37, s{sW}, {4*9216}')
    A(f's_add_u32 s{sS}, s38, s37')
    A('s_sub_u32 s35, s38, s37')
    A(f's_sub_u32 s40, {565*9216}, s37')
    A(f's_cmp_eq_u32 s{sW}, 0')
    A(f's_cselect_b32 s41, {277*9216}, s40')
    A('s_movk_i32 s37, 911')
    for j in range(9):
        A(f'v_add_u32 v{vT0}, {64*j}, v{vT1}')
        A(f'v_mul_u32_u24 v{vT2}, s37, v{vT0}')
        A(f'v_lshrrev_b32 v{vT2}, 16, v{vT2}')
        A(f'v_mul_u32_u24 v{VB+j}, 72, v{vT2}')
        A(f'v_sub_u32 v{vT0}, v{vT0}, v{VB+j}')
        A(f'v_and_b32 v{VB+j}, 6, v{vT2}')
        A(f'v_xor_b32 v{vT0}, v{vT0}, v{VB+j}')
        A(f'v_lshlrev_b32 v{vT0}, 4, v{vT0}')
        A(f'v_and_b32 v{VA+j}, 4, v{vT2}')
        A(f'v_add_u32 v{VA+j}, v{VA+j}, v{vT2}')
        A(f'v_sub_u32 v{VB+j}, 11, v{VA+j}')
        A(f'v_mul_u32_u24 v{VA+j}, 9216, v{VA+j}')
        A(f'v_mul_u32_u24 v{VB+j}, 9216, v{VB+j}')
        A(f'v_add_u32 v{VA+j}, v{VA+j}, v{vT0}')
        A(f'v_add_u32 v{VB+j}, v{VB+j}, v{vT0}')
    A(f'v_lshrrev_b32 v{vT0}, 3, v{vT1}')
    A(f'v_and_b32 v{vT2}, 6, v{vT0}')
    A(f'v_and_b32 v{VC}, 7, v{vT1}')
    A(f'v_xor_b32 v{VC}, v{VC}, v{vT2}')
    A(f'v_lshlrev_b32 v{VC}, 4, v{VC}')
    A(f'v_mul_u32_u24 v{vT0}, 1152, v{vT0}')
    A(f'v_add_u32 v{VC}, v{VC}, v{vT0}')
    if A.prof: A('s_mov_b32 s72, 0')
    def rec():
        if A.prof and recon:
            A('s_memtime s[70:71]'); A('s_waitcnt lgkmcnt(0)')
            A(f'v_cmp_eq_u32 vcc, s72, v{vT1}'); A('v_mov_b32 v61, s70'); A('s_add_u32 s72, s72, 1'); A('v_cndmask_b32 v60, v60, v61, vcc')
    def bar(n):
        A(f's_waitcnt vmcnt({n})'); A('s_barrier'); rec()
    sNB=51
    def nb_ops():
        return [lambda: A(f's_add_u32 s{sNB}, s{sBuf}, {TILE}'), lambda: A(f's_cmp_ge_u32 s{sNB}, s49'), lambda: A(f's_cselect_b32 s{sNB}, s{sM0}, s{sNB}')]
    def issue1(V, step, jr, tail=None):
        for j in jr:
            A(f's_add_u32 m0, s{sBuf}, {1024*j}')
            if j==9: A(f's_add_u32 s{sS}, s{sS}, {step}')
            elif j==12:
                for o in nb_ops(): o()
            elif j==13: A(f's_add_u32 s{sN}, s{sN}, 1')
            elif j==17:
                A(f's_mov_b32 s{sBuf}, s{sNB}'); A(f's_mov_b32 s50, s{sS}'); A(f's_add_u32 s{sS}, s{sS}, {step}'); tail()
            else: A('s_nop 0')
            if dma_on: A(f'buffer_load_dwordx4 v{V+j%9}, s[20:23], s{50 if j==17 else sS} offen lds')
    A('s_waitcnt lgkmcnt(0)')
    Ld=A.label('k4_dd'); Lds=A.label('k4_dds')
    A(f's_mov_b32 s{sN}, 0')
    A(f's_branch {Lds}')
    A('.p2align 6')
    A(f'{Ld}:')
    bar(36)
    A(f'{Lds}:')
    issue1(VA,16*9216,range(18),lambda: (A(f's_sub_u32 s52, s{sN}, 3'), A('s_cmp_lt_u32 s52, 6')))
    A(f's_cbranch_scc1 {Ld}')
    A(f's_cmp_lt_u32 s{sN}, 3')
    A(f's_cbranch_scc1 {Lds}')
    for j in range(9):
        A(f'v_cmp_le_u32 vcc, {11*9216}, v{VB+j}')
        A(f'v_add_u32 v{VA+j}, s40, v{VB+j}')
        A(f'v_add_u32 v{vT2}, s41, v{VB+j}')
        A(f'v_cndmask_b32 v{VA+j}, v{VA+j}, v{vT2}, vcc')
    A(f's_mov_b32 s{sS}, s38')
    bar(36)
    issue1(VA,0,range(9))
    A(f's_add_u32 s{sS}, s35, {(853-32*9)*9216}')
    Lm=A.label('k4_dm'); Lms=A.label('k4_dms')
    A(f's_branch {Lms}')
    A('.p2align 6')
    A(f'{Lm}:')
    bar(36)
    issue1(VB,0,range(9))
    A(f'{Lms}:')
    issue1(VB,-16*9216,range(9,18),lambda: A(f's_cmp_lt_u32 s{sN}, 18'))
    A(f's_cbranch_scc1 {Lm}')
    Lw=A.label('k4_dw'); Lws=A.label('k4_dws'); Lx20=A.label('k4_x20'); Lx21=A.label('k4_x21'); Lfin=A.label('k4_dfin')
    A(f's_add_u32 s{sS}, s39, {8*128}')
    A('.p2align 6')
    A(f'{Lw}:')
    bar(36)
    A(f'{Lws}:')
    for j in range(18):
        A(f's_add_u32 m0, s{sBuf}, {1024*j}')
        if j: A(f's_add_u32 s50, s50, {8*1152}')
        else: A(f's_mov_b32 s50, s{sS}')
        if j==10:
            A(f's_sub_u32 s53, s{sN}, 17'); A('s_lshr_b32 s54, s53, 1')
            A(f's_add_u32 s55, s54, s{sFC}'); A('s_and_b32 s55, s55, 7')
            A('s_cmp_eq_u32 s54, 0'); A('s_cselect_b32 s55, 8, s55'); A('s_lshl_b32 s55, s55, 7')
            A('s_and_b32 s53, s53, 1'); A(f's_mul_i32 s53, s53, {288*1152}')
            A('s_add_u32 s55, s55, s53'); A(f's_add_u32 s{sS}, s39, s55')
        if j==12:
            for o in nb_ops(): o()
        if j==13: A(f's_add_u32 s{sN}, s{sN}, 1')
        if j==17:
            A(f's_mov_b32 s{sBuf}, s{sNB}'); A(f's_sub_u32 s52, s{sN}, 23'); A('s_cmp_lt_u32 s52, 13')
        if dma_on: A(f'buffer_load_dwordx4 v{VC}, s[24:27], s50 offen lds')
    A(f's_cbranch_scc1 {Lw}')
    A(f's_cmp_eq_u32 s{sN}, 19'); A(f's_cbranch_scc1 {Lw}')
    A(f's_cmp_eq_u32 s{sN}, 20'); A(f's_cbranch_scc1 {Lx20}')
    A(f's_cmp_eq_u32 s{sN}, 21'); A(f's_cbranch_scc1 {Lx21}')
    A(f's_cmp_eq_u32 s{sN}, 22'); A(f's_cbranch_scc1 {Lws}')
    A(f's_branch {Lfin}')
    A(f'{Lx20}:')
    bar(36); bar(18)
    A('s_barrier'); rec(); A('s_barrier'); rec()
    A(f's_branch {Lws}')
    A(f'{Lx21}:')
    bar(18)
    A(f's_branch {Lws}')
    A(f'{Lfin}:')
    bar(36); bar(18); bar(0)
    if A.prof:
        A(f'v_lshrrev_b32 v61, 2, v{vL16}')
        A('s_lshl_b32 s60, s2, 8')
        A(f's_add_u32 s60, s60, {0x8000000+A.kidx*0x100000+0x80000}')
        A('buffer_store_dword v60, v61, s[16:19], s60 offen')
    A(f's_mov_b32 s62, s{sW}')
    reduce_code()
    A(f'{Lnorm}:')
    if prio==2: A('s_setprio 2')
    vHBw,vGS=9,10
    vR,vNmr=11,13
    TP=20; XR=76
    A(f's_sub_u32 s{sW}, s{sW}, 6')
    A(f's_lshl_b32 s34, s{sMT}, 1')
    A(f's_add_u32 s34, s34, s{sW}')
    A(f's_mul_i32 s35, s34, {36*1024}')
    A(f's_add_u32 s35, s35, {WS_X2}')
    A(f's_add_u32 s31, s35, {18*1024}')
    A(f'v_and_b32 v{vT0}, 15, v0')
    A(f's_lshl_b32 s36, s34, 5')
    A(f'v_add_u32 v{vT0}, s36, v{vT0}')
    A(f'v_lshlrev_b32 v{vT0}, 6, v{vT0}')
    A(f's_mov_b32 s36, {WS_STAT}')
    A(f's_mov_b32 m0, {L_GS}')
    A(f's_mov_b32 s37, {WS_MOD+3*2304}')
    A('s_waitcnt lgkmcnt(0)')
    ST=TP+16
    for b in range(2):
        for i in range(3):
            A(f'buffer_load_dwordx4 {v(ST+12*b+4*i,4)}, v{vT0}, s[16:19], s36 offen offset:{1024*b+16*i}')
    for k in range(4):
        A(f'buffer_load_dwordx4 v{vL16}, s[16:19], s37 offen offset:{1024*k} lds')
    A(f's_mov_b32 m0, {L_GS+4096}')
    A(f's_mov_b32 s37, {WS_MOD+3*2304+4096}')
    A(f'buffer_load_dwordx4 v{vL16}, s[16:19], s37 offen lds')
    nx=[0]
    def xbatch(n):
        for _ in range(n):
            ks=nx[0]; nx[0]+=1
            for b in range(2):
                A(f'buffer_load_dwordx4 {v(XR+8*ks+4*b,4)}, v{vL16}, s[16:19], s{35 if b==0 else 31} offen offset:{(ks&3)*1024}')
            if ks&3==3: A('s_add_u32 s35, s35, 4096'); A('s_add_u32 s31, s31, 4096')
    xbatch(XB[0])
    A(f's_lshl_b32 s37, s{sW}, 11')
    A(f's_add_u32 s37, s37, {L_HB}')
    A(f'v_add_u32 v{vHBw}, s37, v{vL16}')
    A(f'v_lshrrev_b32 v{vGS}, 4, v{vT1}')
    A(f'v_lshlrev_b32 v{vGS}, 5, v{vGS}')
    A(f'v_add_u32 v{vGS}, {L_GS}, v{vGS}')
    A(f's_mov_b32 s36, 0x3ae38e39')
    A(f's_mov_b32 s37, 0x3727c5ac')
    A.stamp(1)
    A(f's_waitcnt vmcnt({2*XB[0]})')
    GSr=TP; UX=TP+16; HO=TP+40
    def gs_read():
        for k in range(4):
            A(f'ds_read_b128 {v(GSr+4*k,4)}, v{vGS} offset:{(k>>1)*2304+16*(k&1)}')
        A(f'v_add_u32 v{vGS}, 128, v{vGS}')
    gs_read()
    for b in range(2):
        S_=ST+12*b
        for i in range(1,6):
            A(f'v_pk_add_f32 {v(S_,2)}, {v(S_,2)}, {v(S_+2*i,2)}')
        A(f'v_mul_f32 v{S_}, s36, v{S_}')
        A(f'v_mul_f32 v{S_+1}, s36, v{S_+1}')
        A(f'v_fma_f32 v{S_+1}, -v{S_}, v{S_}, v{S_+1}')
        A(f'v_max_f32 v{S_+1}, 0, v{S_+1}')
        bf16_round(A,f'v{S_+1}',f'v{S_+1}')
        A(f'v_add_f32 v{S_+1}, s37, v{S_+1}')
        bf16_round(A,f'v{S_+1}',f'v{S_+1}')
        A(f'v_sqrt_f32 v{S_+1}, v{S_+1}')
        A('s_nop 0')
        bf16_round(A,f'v{S_+1}',f'v{S_+1}')
        A(f'v_rcp_f32 v{vR+b}, v{S_+1}')
        bf16_round(A,f'v{S_}',f'v{S_}')
        A(f'v_mul_f32 v{vNmr+b}, -v{S_}, v{vR+b}')
    def store_phase():
        Ls=A.label('k4_sl')
        A('s_mov_b32 s52, 0')
        A(f'{Ls}:')
        A('s_barrier')
        A('s_add_u32 s52, s52, 1')
        A('s_cmp_lt_u32 s52, 20'); A(f's_cbranch_scc1 {Ls}')
        A(f's_add_u32 s62, s{sW}, 2')
        A(f's_branch {Lred}')
    sK,sIdx,sEv=44,45,46
    def part1():
        A(f's_set_gpr_idx_on s{sIdx}, gpr_idx(SRC1)')
        A(f's_add_u32 s{sK}, s{sK}, 1')
        for b in range(2):
            for p in range(4):
                A(f'v_lshlrev_b32 v{UX+8*b+2*p}, 16, v{XR+4*b+p}')
                A(f'v_and_b32 v{UX+8*b+2*p+1}, 0xffff0000, v{XR+4*b+p}')
        A('s_set_gpr_idx_off')
        A(f's_add_u32 s{sIdx}, s{sIdx}, 8')
        for b in range(2):
            for e in range(8): A(f'v_fma_f32 v{UX+8*b+e}, v{UX+8*b+e}, v{vR+b}, v{vNmr+b}')
    def hwrite():
        for b in range(2): A(f'ds_write_b128 v{vHBw}, {v(HO+4*b,4)} offset:{1024*b}')
        A(f'v_xor_b32 v{vHBw}, 4096, v{vHBw}')
    def part2(first=False):
        A('s_waitcnt lgkmcnt(0)' if first else 's_waitcnt lgkmcnt(2)')
        for b in range(2):
            for e in range(8): A(f'v_fma_f32 v{UX+8*b+e}, v{UX+8*b+e}, v{GSr+8+e}, v{GSr+e}')
        if not first: A('s_waitcnt lgkmcnt(0)')
        gs_read()
        for b in range(2):
            for p in range(4): A(f'v_cvt_pk_bf16_f32 v{HO+4*b+p}, v{UX+8*b+2*p}, v{UX+8*b+2*p+1}')
    ev={}
    ev.setdefault(2,[]).append(('w0',))
    ev.setdefault(XI[0]+1,[]).append(('i',1)); ev.setdefault(XI[1]+1,[]).append(('i',2))
    ev.setdefault(XB[0],[]).append(('w',1)); ev.setdefault(XB[0]+XB[1],[]).append(('w',2))
    ev.setdefault(18,[]).append(('end',))
    evk=sorted(ev)
    A(f's_mov_b32 s{sK}, 0')
    A(f's_mov_b32 s{sIdx}, 0')
    A(f's_mov_b32 s{sEv}, {evk[0]}')
    A(f's_waitcnt vmcnt({2*XB[0]-4})')
    part1(); part2(True)
    Ln=A.label('k4_nl'); Lin=A.label('k4_nin'); Lev=A.label('k4_nev')
    A(f's_branch {Lin}')
    A('.p2align 6')
    A(f'{Ln}:')
    A('s_barrier')
    A(f'{Lin}:')
    part1(); hwrite(); part2()
    A(f's_cmp_lg_u32 s{sK}, s{sEv}')
    A(f's_cbranch_scc1 {Ln}')
    issued=1
    labs={k:A.label('k4_ev') for k in evk}
    A('s_barrier')
    for x,k in enumerate(evk):
        A(f'{labs[k]}:')
        if x+1<len(evk):
            A(f's_cmp_lg_u32 s{sK}, {k}'); A(f's_cbranch_scc1 {labs[evk[x+1]]}')
        for e in ev[k]:
            if e[0]=='w0': A(f's_waitcnt vmcnt({sum(2*x_ for x_ in XB[1:issued])})')
            elif e[0]=='i': xbatch(XB[e[1]]); issued+=1
            elif e[0]=='w': A(f's_waitcnt vmcnt({sum(2*x_ for x_ in XB[e[1]+1:issued])})')
            else:
                hwrite()
                A('s_waitcnt lgkmcnt(0)')
                A('s_barrier')
                store_phase()
        if x+1<len(evk):
            A(f's_mov_b32 s{sEv}, {evk[x+1]}')
            A(f's_branch {Lin}')
    A('code_end:')
    A(f'{Lend}:')
    A.endpgm()
    A.end(name, 236, 76)
```

```python
from asmlib import *
from gen1 import *
from gen4 import Cnt
OOB=0x40000000

def sparse_prefetch(A, srd, vOff, sOff, vDst):
    A(f'buffer_load_dword v{vDst}, v{vOff}, {srd}, {sOff} offen')

def gen_k3b(A, name='k3_seq_kernel', prefetch=True, NPRE=8, w2pf=True):
    NW=192; NT=256
    L_CS=0; L_SS=32768; L_C5=65536; L_S5=L_C5+2048; L_XS=L_C5+4096; L_V=L_XS+16384
    L_X=L_V+1024
    L_ST=L_X+21*1024
    A.launch(name, NT if prefetch else NW, 512, L_ST+3072)
    A.begin(name)
    Lend=A.label('k3_end'); Lpf=A.label('k3_pf'); Lepi=A.label('k3_epi')
    load_srds(A,[('x',8),('Cs',12),('ws',16),('Ss',20),('w2',24)])
    A(f's_cmp_ge_u32 s2, {NT if prefetch else NW}')
    A(f's_cbranch_scc1 {Lend}')
    if prefetch:
        A(f's_cmp_ge_u32 s2, {NW}')
        A(f's_cbranch_scc1 {Lpf}')
    sET,sTT,sW=28,29,30
    A('s_lshr_b32 s31, s2, 3')
    A('s_mul_i32 s32, s31, 21846'); A('s_lshr_b32 s32, s32, 16')
    A('s_mul_i32 s33, s32, 3'); A('s_sub_u32 s33, s31, s33')
    A('s_and_b32 s34, s2, 1'); A('s_mul_i32 s34, s34, 3')
    A(f's_add_u32 s{sET}, s33, s34')
    A('s_bfe_u32 s34, s2, 0x20001'); A('s_lshl_b32 s34, s34, 3')
    A(f's_add_u32 s{sTT}, s32, s34')
    vLane,vT0,vT1,vL16,vL16b,vD0,vD1=1,2,3,4,5,6,7
    vBa=8
    vSl,vEc,vRs,vR1,vE0,vTs=12,13,14,15,16,17
    vXo=18
    X=22
    GA=32
    AE4=48
    ACC=60
    BR=72
    AF=104
    A(f'v_and_b32 v{vLane}, 63, v0')
    A(f'v_lshrrev_b32 v{vT0}, 6, v0')
    A(f'v_lshlrev_b32 v{vL16}, 4, v{vLane}')
    A(f'v_readfirstlane_b32 s{sW}, v{vT0}')
    A(f's_lshl_b32 s35, s{sW}, 1')
    A(f'v_xor_b32 v{vD0}, s35, v{vLane}')
    A(f'v_lshlrev_b32 v{vD0}, 4, v{vD0}')
    A(f'v_xor_b32 v{vD1}, 16, v{vD0}')
    A(f'v_add_u32 v{vD1}, 2048, v{vD1}')
    A(f's_lshl_b32 s36, s{sTT}, 4'); A('s_add_u32 s36, s36, s35'); A('s_lshl_b32 s36, s36, 12')
    A(f's_lshl_b32 s37, s{sW}, 12')
    A('s_mov_b32 m0, s37')
    A('s_waitcnt lgkmcnt(0)')
    def tdma(srd, sOff):
        A(f'buffer_load_dwordx4 v{vD0}, {srd}, {sOff} offen lds')
        A(f'buffer_load_dwordx4 v{vD0}, {srd}, {sOff} offen offset:1024 lds')
        A(f'buffer_load_dwordx4 v{vD1}, {srd}, {sOff} offen offset:2048 lds')
        A(f'buffer_load_dwordx4 v{vD1}, {srd}, {sOff} offen offset:3072 lds')
    tdma('s[12:15]','s36')
    A(f's_add_u32 m0, s37, {L_SS}'); A('s_nop 0')
    tdma('s[20:23]','s36')
    A('s_barrier')
    A(f's_cmp_lt_u32 s{sW}, 3')
    A(f's_cselect_b32 s39, 0, {WS_BO-WS_AE-3*32768}')
    A('s_mov_b32 s41, 0x00008000')
    A('s_cselect_b32 s41, 0x80000000, s41')
    A(f's_cselect_b32 s42, 0, {L_SS}')
    A(f's_mul_i32 s43, s{sET}, 3'); A(f's_add_u32 s43, s43, s{sW}'); A('s_lshl_b32 s43, s43, 15')
    A('s_add_u32 s39, s39, s43')
    A(f's_add_u32 s39, s39, {WS_AE}')
    A(f's_cmp_eq_u32 s{sW}, 6')
    A(f's_cselect_b32 s39, {WS_AE+18*32768}, s39')
    A('s_cselect_b32 s41, 0x80000000, s41')
    A('s_cselect_b32 s42, 0, s42')
    A(f's_cmp_eq_u32 s{sET}, 0')
    A('s_cselect_b32 s40, 7, 6')
    Lna=A.label('k3_na')
    def aload(ks):
        A(f'buffer_load_dwordx4 {v(AF+4*ks,4)}, v{vL16}, s[16:19], s39 offen offset:{(ks&3)*1024}')
        if ks&3==3: A('s_add_u32 s39, s39, 4096')
    A(f's_cmp_ge_u32 s{sW}, s40')
    A(f's_cbranch_scc1 {Lna}')
    for ks in range(NPRE): aload(ks)
    A(f'{Lna}:')
    Lnt=A.label('k3_nt'); Ln5=A.label('k3_n5'); Lj=A.label('k3_j')
    A(f's_cmp_lg_u32 s{sW}, 7')
    A(f's_cbranch_scc1 {Lnt}')
    A(f's_cmp_lg_u32 s{sTT}, 0')
    A(f's_cbranch_scc1 {Ln5}')
    A(f's_mov_b32 s38, {512*4096}')
    A(f's_mov_b32 m0, {L_C5}'); A('s_nop 0')
    A(f'buffer_load_dwordx4 v{vL16}, s[12:15], s38 offen lds')
    A(f'buffer_load_dwordx4 v{vL16}, s[12:15], s38 offen offset:1024 lds')
    A(f's_mov_b32 m0, {L_S5}'); A('s_nop 0')
    A(f'buffer_load_dwordx4 v{vL16}, s[20:23], s38 offen lds')
    A(f'buffer_load_dwordx4 v{vL16}, s[20:23], s38 offen offset:1024 lds')
    A(f'{Ln5}:')
    A('s_waitcnt vmcnt(0)')
    A('s_barrier')
    vQ,vI,vJ=BR,BR+1,BR+2
    A(f's_mul_i32 s45, s{sET}, 192')
    A(f'v_lshrrev_b32 v{vT0}, 4, v{vLane}')
    A(f'v_and_b32 v{vT1}, 15, v{vLane}')
    A(f'v_lshlrev_b32 v{vT1}, 4, v{vT1}')
    A(f'v_add_u32 v{vT1}, s45, v{vT1}')
    A(f'v_add_u32 v{vQ}, {WS_MOD+2*2304}, v{vT1}')
    A(f'v_add_u32 v{vI}, {WS_MOD+2*2304+1152}, v{vT1}')
    A(f'v_cmp_eq_u32 vcc, 1, v{vT0}'); A('s_nop 1'); A(f'v_cndmask_b32 v{vQ}, v{vQ}, v{vI}, vcc')
    A(f'v_add_u32 v{vI}, {WS_AE1024}, v{vT1}')
    A(f'v_cmp_eq_u32 vcc, 2, v{vT0}'); A('s_nop 1'); A(f'v_cndmask_b32 v{vQ}, v{vQ}, v{vI}, vcc')
    A(f'v_mov_b32 v{vI}, {WS_AE1024+1152}')
    A(f'v_cmp_eq_u32 vcc, 3, v{vT0}'); A('s_nop 1'); A(f'v_cndmask_b32 v{vQ}, v{vQ}, v{vI}, vcc')
    A(f's_mov_b32 m0, {L_V}'); A('s_nop 0')
    A(f'buffer_load_dwordx4 v{vQ}, s[16:19], 0 offen lds')
    A(f's_lshr_b32 s45, s45, 1')
    A(f's_sub_u32 s46, {1152-96}, s45')
    A(f'v_and_b32 v{vI}, 7, v{vLane}')
    A(f'v_lshlrev_b32 v{vI}, 4, v{vI}')
    A(f'v_add_u32 v{vJ}, s45, v{vI}')
    A(f'v_add_u32 v{vT1}, s46, v{vI}')
    A(f'v_and_b32 v{vQ}, 15, v{vLane}')
    A(f'v_cmp_gt_u32 vcc, 8, v{vQ}')
    A(f'v_mov_b32 v{vI}, 576')
    A('s_nop 0')
    A(f'v_cndmask_b32 v{vJ}, v{vT1}, v{vJ}, vcc')
    A(f'v_cmp_eq_u32 vcc, 15, v{vQ}')
    A('s_nop 1')
    A(f'v_cndmask_b32 v{vI}, v{vJ}, v{vI}, vcc')
    A(f's_lshl_b32 s47, s{sTT}, 4')
    A(f'v_add_u32 v{vT0}, s47, v{vT0}')
    A(f'v_cmp_eq_u32 s[48:49], 0, v{vT0}')
    A(f'v_mul_u32_u24 v{vT0}, 1152, v{vT0}')
    A(f'v_add_u32 v{vQ}, v{vI}, v{vT0}')
    A(f'v_sub_u32 v{vJ}, v{vI}, v{vT0}')
    A(f'v_add_u32 v{vJ}, {1012*1152}, v{vJ}')
    for grp,(base,pos) in enumerate(((0,True),(1024,False),(2048,False),(1024,True))):
        for j in range(4):
            A(f's_mov_b32 m0, {L_XS+4096*grp+1024*j}')
            if pos: so=(base+4*j)*1152; vr=vQ
            else: so=(base-1024+12-4*j)*1152; vr=vJ
            if grp>=2 and j==0:
                A(f'v_add_u32 v{vT1}, {so}, v{vr}')
                A(f'v_add_u32 v{vT0}, {(512 if grp==2 else 1536)*1152}, v{vI}')
                A(f'v_cndmask_b32 v{vT1}, v{vT1}, v{vT0}, s[48:49]')
                A(f'buffer_load_dwordx4 v{vT1}, s[8:11], 0 offen lds')
            else:
                A(f's_mov_b32 s46, {so}')
                A(f'buffer_load_dwordx4 v{vr}, s[8:11], s46 offen lds')
    A(f's_branch {Lepi}')
    A(f'{Lnt}:')
    A(f'v_and_b32 v{vT0}, 15, v{vLane}')
    A(f'v_lshrrev_b32 v{vT1}, 4, v{vLane}')
    A(f'v_xor_b32 v{vT1}, v{vT1}, v{vT0}')
    A(f'v_lshlrev_b32 v{vT0}, 11, v{vT0}')
    A(f'v_add_u32 v{vT0}, s42, v{vT0}')
    for kl in range(4):
        A(f'v_xor_b32 v{vBa+kl}, {4*kl}, v{vT1}')
        A(f'v_lshl_add_u32 v{vBa+kl}, v{vBa+kl}, 4, v{vT0}')
    A(f's_waitcnt vmcnt({NPRE})')
    A(f's_cmp_lt_u32 s{sW}, s40')
    A(f's_cbranch_scc1 {Lj}')
    A('s_waitcnt vmcnt(0)')
    A(f'{Lj}:')
    A.stamp(1)
    A('s_barrier')
    A.stamp(2)
    A(f's_cmp_ge_u32 s{sW}, s40')
    A(f's_cbranch_scc1 {Lepi}')
    Lne=A.label('k3_ne'); Led=A.label('k3_ed')
    vB5=vD0; B5=GA
    def bread(ks):
        A(f'ds_read_b128 {v(BR+8*(ks&3),4)}, v{vBa+(ks&3)} offset:{(ks>>2)*256}')
    def bread5(ks): A(f'ds_read_b128 {v(B5+4*(ks&3),4)}, v{vB5} offset:{ks*64}')
    def loop(edge):
        n=2 if edge else 1
        for ks in range(3):
            bread(ks)
            if edge: bread5(ks)
        issued=NPRE
        for ks in range(32):
            if ks+3<32:
                bread(ks+3)
                if edge: bread5(ks+3)
            for _ in range(2):
                if issued<32: aload(issued); issued+=1
            A(f's_waitcnt lgkmcnt({n*min(3,31-ks)})')
            b=BR+8*(ks&3)
            for p in range(4): A(f'v_xor_b32 v{b+4+p}, s41, v{b+p}')
            A(f's_waitcnt vmcnt({issued-1-ks})')
            c0='0' if ks==0 else v(ACC,4); c1='0' if ks==0 else v(ACC+4,4); c2='0' if ks==0 else v(ACC+8,4)
            A(f'v_mfma_f32_16x16x32_bf16 {v(ACC,4)}, {v(AF+4*ks,4)}, {v(b,4)}, {c0}')
            A(f'v_mfma_f32_16x16x32_bf16 {v(ACC+4,4)}, {v(AF+4*ks,4)}, {v(b+4,4)}, {c1}')
            if edge: A(f'v_mfma_f32_16x16x32_bf16 {v(ACC+8,4)}, {v(AF+4*ks,4)}, {v(B5+4*(ks&3),4)}, {c2}')
    A(f's_cmp_eq_u32 s{sTT}, 0')
    A(f's_cbranch_scc1 {Led}')
    loop(False)
    A(f's_branch {Lne}')
    A(f'{Led}:')
    A(f'v_lshrrev_b32 v{vB5}, 4, v{vLane}')
    A(f'v_lshlrev_b32 v{vB5}, 4, v{vB5}')
    A(f's_lshr_b32 s42, s42, 4')
    A(f's_add_u32 s42, s42, {L_C5}')
    A(f'v_add_u32 v{vB5}, s42, v{vB5}')
    loop(True)
    A(f'{Lne}:')
    A.stamp(3)
    A(f's_mul_i32 s46, s{sW}, 3072')
    A(f's_add_u32 s46, s46, {L_X}')
    A(f'v_add_u32 v{vT0}, s46, v{vL16}')
    A('s_nop 7')
    for t in range(3):
        A(f'ds_write_b128 v{vT0}, {v(ACC+4*t,4)} offset:{1024*t}')
    A(f'{Lepi}:')
    A(f'v_and_b32 v{vSl}, 31, v0')
    A(f'v_lshrrev_b32 v{vEc}, 5, v0')
    A(f'v_cmp_lt_u32 vcc, 5, v{vEc}')
    A(f'v_subrev_u32 v{vT0}, 6, v{vEc}')
    A('s_mov_b64 s[50:51], vcc')
    A(f'v_cndmask_b32 v{vEc}, v{vEc}, v{vT0}, vcc')
    A(f'v_and_b32 v{vT0}, 15, v{vSl}')
    A(f's_lshl_b32 s38, s{sTT}, 4')
    A(f'v_add_u32 v{vT0}, s38, v{vT0}')
    A(f'v_cmp_eq_u32 s[52:53], 0, v{vT0}')
    A(f'v_sub_u32 v{vT1}, 1024, v{vT0}')
    A(f'v_cmp_lt_u32 s[54:55], 15, v{vSl}')
    A('s_and_b64 s[52:53], s[52:53], s[50:51]')
    A(f'v_cndmask_b32 v{vTs}, v{vT0}, v{vT1}, s[54:55]')
    A(f'v_sub_u32 v{vT1}, 2048, v{vTs}')
    A(f'v_cndmask_b32 v{vR1}, v{vTs}, v{vT1}, s[50:51]')
    A(f'v_add_u32 v{vT1}, 512, v{vTs}')
    A(f'v_cndmask_b32 v{vR1}, v{vR1}, v{vT1}, s[52:53]')
    A(f's_mul_i32 s38, s{sET}, 48')
    A(f'v_lshl_add_u32 v{vE0}, v{vEc}, 3, s38')
    A(f'v_cmp_eq_u32 s[56:57], 0, v{vE0}')
    A(f'v_add_u32 v{vT0}, 32, v{vSl}')
    A(f'v_cndmask_b32 v{vT0}, v{vSl}, v{vT0}, s[50:51]')
    A(f'v_lshlrev_b32 v{vT0}, 8, v{vT0}')
    A(f'v_add_u32 v{vT0}, {L_XS}, v{vT0}')
    A(f'v_lshl_add_u32 v{vXo}, v{vEc}, 4, v{vT0}')
    A(f'v_lshlrev_b32 v{vT1}, 4, v{vEc}')
    A(f'v_sub_u32 v{vXo+1}, v{vT0}, v{vT1}')
    A(f'v_add_u32 v{vXo+1}, {13*16}, v{vXo+1}')
    A(f'v_add_u32 v{vXo+2}, 16, v{vXo+1}')
    A(f'v_add_u32 v{vT0}, {15*16}, v{vT0}')
    A(f'v_cndmask_b32 v{vXo+2}, v{vXo+2}, v{vT0}, s[56:57]')
    A(f'v_lshlrev_b32 v{vRs}, 5, v{vEc}')
    A(f'v_add_u32 v{vRs}, {L_V}, v{vRs}')
    vLa,vLe=BR,BR+1
    A(f'v_lshrrev_b32 v{vT0}, 4, v{vSl}')
    A(f'v_cndmask_b32 v{vT0}, v{vT0}, 2, s[52:53]')
    A(f'v_lshlrev_b32 v{vT0}, 10, v{vT0}')
    A(f'v_and_b32 v{vT1}, 15, v{vSl}')
    A(f'v_lshl_add_u32 v{vT0}, v{vT1}, 4, v{vT0}')
    A(f'v_add_u32 v{vLe}, {L_X+6*3072}, v{vT0}')
    A(f'v_lshrrev_b32 v{vT1}, 1, v{vEc}')
    A(f'v_mul_u32_u24 v{vT1}, 3072, v{vT1}')
    A(f'v_add_u32 v{vLa}, v{vT0}, v{vT1}')
    A(f'v_and_b32 v{vT1}, 1, v{vEc}')
    A(f'v_lshl_add_u32 v{vLa}, v{vT1}, 9, v{vLa}')
    A(f'v_add_u32 v{vLa}, {L_X}, v{vLa}')
    A('s_waitcnt vmcnt(0) lgkmcnt(0)')
    A('s_barrier')
    A.stamp(4)
    A(f's_cmp_ge_u32 s{sW}, 6')
    A(f's_cbranch_scc1 {Lend}')
    P=AF; Q=AF+8; O1=AF+16; O2=AF+24; U=AF+32; D=AF+48; vSg=BR+2; vQs=BR+3; PE=BR+4
    for hh in range(2): A(f'ds_read_b128 {v(P+4*hh,4)}, v{vLa} offset:{256*hh}')
    for hh in range(2): A(f'ds_read_b128 {v(Q+4*hh,4)}, v{vLa} offset:{9216+256*hh}')
    A(f'ds_read_b32 v{PE}, v{vLe}')
    for hh in range(2): A(f'ds_read_b128 {v(AE4+4*hh,4)}, v{vRs} offset:{512+16*hh}')
    A(f'v_mov_b32 v{vT1}, {L_V+768}')
    A(f'ds_read_b32 v{AE4+8}, v{vT1}')
    for hh in range(2):
        A(f'ds_read_b128 {v(GA+4*hh,4)}, v{vRs} offset:{16*hh}')
        A(f'ds_read_b128 {v(GA+8+4*hh,4)}, v{vRs} offset:{256+16*hh}')
    A(f'ds_read_b128 {v(X,4)}, v{vXo}')
    A(f'ds_read_b128 {v(X+4,4)}, v{vXo+1}')
    A(f'ds_read_u16 v{X+8}, v{vXo+2}')
    A(f'v_lshlrev_b32 v{vSg}, 31, v{vTs}')
    A('s_andn2_b64 s[58:59], s[52:53], s[54:55]')
    A('s_andn2_b64 s[58:59], s[50:51], s[58:59]')
    A(f'v_bfrev_b32 v{vT0}, 1')
    A(f'v_cndmask_b32 v{vQs}, 0, v{vT0}, s[58:59]')
    A('s_waitcnt lgkmcnt(7)')
    for i in range(9): A(f'v_xor_b32 v{AE4+i}, v{vSg}, v{AE4+i}')
    for i in range(8):
        A(f'v_add_f32 v{P+i}, v{P+i}, v{AE4+i}')
        A(f'v_xor_b32 v{Q+i}, v{vQs}, v{Q+i}')
    A(f'v_add_f32 v{PE}, v{PE}, v{AE4+8}')
    for i in range(8):
        A(f'v_sub_f32 v{O1+i}, v{P+i}, v{Q+i}')
        A(f'v_add_f32 v{O2+i}, v{P+i}, v{Q+i}')
    A(f'v_cndmask_b32 v{O2}, v{O2}, v{PE}, s[56:57]')
    def finish(O, ga, xs, dst):
        for i,(r,h) in enumerate(xs):
            if h=='lo': A(f'v_lshlrev_b32 v{U+8+i}, 16, v{r}')
            else: A(f'v_and_b32 v{U+8+i}, 0xffff0000, v{r}')
        for i in range(8): A(f'v_fmac_f32 v{U+8+i}, v{O+i}, v{ga+i}')
        for p in range(4): A(f'v_cvt_pk_bf16_f32 v{dst+p}, v{U+8+2*p}, v{U+8+2*p+1}')
    xdir=[(X+(i>>1),'lo' if i%2==0 else 'hi') for i in range(8)]
    xmir=[(X+8,'lo')]+[(X+4+((8-q)>>1),'lo' if (8-q)%2==0 else 'hi') for q in range(1,8)]
    vDd=vXo
    A('s_waitcnt lgkmcnt(0)')
    A(f'v_lshlrev_b32 v{vT0}, 5, v{vE0}')
    A(f'v_lshrrev_b32 v{vT1}, 4, v{vR1}')
    A(f'v_mul_u32_u24 v{vDd}, {18*1024}, v{vT1}')
    A(f'v_and_b32 v{vT1}, 15, v{vR1}')
    A(f'v_lshl_add_u32 v{vDd}, v{vT1}, 4, v{vDd}')
    A(f'v_add_u32 v{vDd}, v{vDd}, v{vT0}')
    A(f's_mov_b32 s38, {WS_X2}')
    A(f's_mov_b32 s39, {WS_X2+9*1024}')
    finish(O1,GA,xdir,D);     A(f'buffer_store_dwordx4 {v(D,4)}, v{vDd}, s[16:19], s38 offen')
    finish(O2,GA+8,xmir,D+4); A(f'buffer_store_dwordx4 {v(D+4,4)}, v{vDd}, s[16:19], s39 offen')
    A.stamp(5)
    ST=U
    A('s_mov_b32 s38, 0x3f803f80')
    for i in range(4): A(f'v_mov_b32 v{ST+i}, 0')
    for i in range(8):
        A(f'v_dot2_f32_bf16 v{ST+2*(i&1)}, v{D+i}, s38, v{ST+2*(i&1)}')
        A(f'v_dot2_f32_bf16 v{ST+2*(i&1)+1}, v{D+i}, v{D+i}, v{ST+2*(i&1)+1}')
    A(f'v_lshlrev_b32 v{vT0}, 3, v0')
    A(f'v_add_u32 v{vT0}, {L_ST}, v{vT0}')
    A('s_nop 1')
    A(f'v_pk_add_f32 {v(ST,2)}, {v(ST,2)}, {v(ST+2,2)}')
    A(f'ds_write_b64 v{vT0}, {v(ST,2)}')
    A('s_waitcnt lgkmcnt(0)')
    A('s_barrier')
    A(f's_cmp_eq_u32 s{sW}, 3'); A('s_cselect_b32 s38, 0, s30'); A('s_cmp_lg_u32 s38, 0')
    A(f's_cbranch_scc1 {Lend}')
    A('s_mov_b32 exec_hi, 0')
    for ec in range(6):
        A(f'ds_read_b64 {v(U+2*ec,2)}, v{vT0} offset:{256*ec}')
    A(f's_lshl_b32 s38, s{sET}, 3')
    A(f's_add_u32 s38, s38, {WS_STAT}')
    A(f'v_lshlrev_b32 v{vT1}, 6, v{vR1}')
    A('s_waitcnt lgkmcnt(0)')
    for ec in range(1,6):
        A(f'v_pk_add_f32 {v(U,2)}, {v(U,2)}, {v(U+2*ec,2)}')
    A(f'buffer_store_dwordx2 {v(U,2)}, v{vT1}, s[16:19], s38 offen')
    A.endpgm()
    if prefetch:
        A(f'{Lpf}:')
        A(f's_sub_u32 s32, s2, {NW}'); A('s_lshr_b32 s32, s32, 3')
        A('v_lshlrev_b32 v1, 7, v0')
        A(f'v_mov_b32 v3, 0x{OOB:x}')
        A('s_and_b32 s33, s2, 1'); A(f's_mul_i32 s33, s33, {9*32768}')
        A('v_lshl_add_u32 v6, v0, 3, s32')
        A('v_lshlrev_b32 v7, 7, v6')
        A(f'v_add_u32 v8, {WS_BO-WS_AE-2304*128}, v7')
        A('v_cmp_gt_u32 vcc, 2304, v6'); A('s_nop 1'); A('v_cndmask_b32 v8, v8, v7, vcc')
        A(f's_add_u32 s34, s33, {WS_AE}')
        A(f'v_add_u32 v9, {WS_BO+1792*128}, v7'); A('v_add_u32 v9, s33, v9')
        A(f'v_add_u32 v10, {WS_AE+18*32768-512*128}, v7')
        A('v_cmp_gt_u32 vcc, 512, v6'); A('s_nop 1'); A('v_cndmask_b32 v9, v10, v9, vcc')
        A('v_cmp_gt_u32 vcc, 768, v6'); A('s_nop 1'); A('v_cndmask_b32 v9, v3, v9, vcc')
        A('s_waitcnt lgkmcnt(0)')
        A('buffer_load_dword v11, v8, s[16:19], s34 offen')
        A('buffer_load_dword v12, v9, s[16:19], 0 offen')
        A('s_and_b32 s31, s2, 7'); A(f's_mul_i32 s31, s31, {576*1152}')
        A(f's_mul_i32 s32, s32, {648*128}')
        A('s_add_u32 s31, s31, s32')
        A('v_cmp_gt_u32 vcc, 136, v0')
        A(f'v_add_u32 v2, {512*128}, v1')
        A('s_nop 0')
        A('v_cndmask_b32 v2, v3, v2, vcc')
        if w2pf:
            A('buffer_load_dword v4, v1, s[24:27], s31 offen')
            A('buffer_load_dword v5, v2, s[24:27], s31 offen')
        A('s_waitcnt vmcnt(0)')
    A(f'{Lend}:')
    A.endpgm()
    A.end(name, 232, 72)
```

```python
class Asm:
    def __init__(self):
        self.lines=[]; self.kernels=[]; self.launches=[]; self._lab=0; self.prof=False; self.kidx=-1
    def __call__(self, s, *a):
        if a: s = s % a
        for l in s.split('\n'):
            l=l.strip()
            if l: self.lines.append('    '+l if not l.endswith(':') else l)
    def c(self, s): self.lines.append('    ; '+s)
    def label(self, base='L'):
        self._lab+=1; return f'{base}_{self._lab}'
    def stamp(self, i):
        if not self.prof: return
        self(f's_memrealtime s[{80+2*i}:{81+2*i}]')
        self('s_waitcnt lgkmcnt(0)')
    def cstamp(self, i):
        if not self.prof: return
        self(f's_memtime s[{80+2*i}:{81+2*i}]')
        self('s_waitcnt lgkmcnt(0)')
    def endpgm(self, wsrd=16):
        if self.prof:
            self.stamp(7)
            self('s_mov_b64 exec, 1')
            self('v_lshrrev_b32 v1, 6, v0')
            self('s_lshl_b32 s96, s2, 4')
            self('v_add_u32 v1, s96, v1')
            self('v_lshlrev_b32 v1, 5, v1')
            self(f's_mov_b32 s96, {0x8000000+self.kidx*0x100000}')
            for i in range(8):
                self(f'v_mov_b32 v2, s{80+2*i}')
                self(f'buffer_store_dword v2, v1, s[{wsrd}:{wsrd+3}], s96 offen offset:{4*i}')
        self('s_endpgm')
    def begin(self, name):
        self.kidx+=1
        self.lines.append(f'.globl {name}\n.p2align 8\n.type {name},@function\n{name}:')
        if self.prof:
            for i in range(1,8): self(f's_mov_b64 s[{80+2*i}:{81+2*i}], 0')
            self.stamp(0)
    def end(self, name, vgpr, sgpr=96, agpr=0):
        acc=(vgpr+3)//4*4
        nfv=acc+agpr if agpr else vgpr
        if self.prof: sgpr=100
        self.kernels.append((name,nfv,sgpr,acc))
    def launch(self, name, grid, block, lds):
        self.launches.append(f'; @launch kernel={name} grid=({grid},1,1) block=({block},1,1) lds={lds}')
    def text(self, header=''):
        s='\n'.join(self.launches)+'\n'
        if header: s+= '\n'.join('; '+l for l in header.strip('\n').split('\n'))+'\n'
        s+='.amdgcn_target "amdgcn-amd-amdhsa--gfx950"\n.text\n'
        s+='\n'.join(self.lines)+'\n'
        s+='.section .rodata,"a"\n'
        for (n,nfv,sg,acc) in self.kernels:
            s+=f'''.p2align 6
.amdhsa_kernel {n}
  .amdhsa_next_free_vgpr {nfv}
  .amdhsa_next_free_sgpr {sg}
  .amdhsa_accum_offset {acc}
  .amdhsa_group_segment_fixed_size 0
  .amdhsa_kernarg_size 104
  .amdhsa_user_sgpr_count 2
  .amdhsa_user_sgpr_kernarg_segment_ptr 1
  .amdhsa_system_sgpr_workgroup_id_x 1
  .amdhsa_float_denorm_mode_32 3
.end_amdhsa_kernel
'''
        return s

def v(i,n=1): return f'v{i}' if n==1 else f'v[{i}:{i+n-1}]'
def a(i,n=1): return f'a{i}' if n==1 else f'a[{i}:{i+n-1}]'
def s(i,n=1): return f's{i}' if n==1 else f's[{i}:{i+n-1}]'

KA=dict(x=0,Cs=8,Ss=16,Cd=24,Sd=32,Bx=40,w1=48,w2=56,c=64,wmod=72,out=80,dbg=88,ws=96)
SZ=dict(x=2048*576*2,Cs=2048*2048*2,Ss=2048*2048*2,Cd=576*576*2,Sd=576*576*2,w1=576*4608*2,w2=4608*576*2,c=1152,wmod=576*3456*2,out=2048*576*2,dbg=256,ws=268435456)

def load_srds(A, items):
    for n,r in items:
        A(f's_load_dwordx2 {s(r,2)}, s[0:1], {KA[n]}')
    for n,r in items:
        A(f's_mov_b32 {s(r+2)}, {SZ[n]}')
        A(f's_mov_b32 {s(r+3)}, 0x00020000')
```

```python
from asmlib import *
from gen1 import *
WS_PMOD=0x0008000
OOB=0x40000000

def silu_bf16(A, c, t, sLog2e):
    A(f'v_lshlrev_b32 v{c}, 16, v{c}')
    A(f'v_mul_f32 v{t}, s{sLog2e}, v{c}')
    A(f'v_exp_f32 v{t}, -v{t}')
    A('s_nop 0')
    A(f'v_add_f32 v{t}, 1.0, v{t}')
    A(f'v_rcp_f32 v{t}, v{t}')
    A('s_nop 0')
    A(f'v_mul_f32 v{c}, v{c}, v{t}')
    bf16_round(A,f'v{c}',f'v{c}')

def mod_issue(A, NRG, NP, sCol, sRow0, nrows, srdW, srdC, vC=8, vW=32):
    vCC,vRG,vOff,vCo=1,2,3,4; vT=120
    A(f'v_and_b32 v{vCC}, 7, v0')
    A(f'v_lshrrev_b32 v{vRG}, 3, v0')
    A(f'v_add_u32 v{vCo}, s{sRow0}, v{vRG}')
    A(f'v_mul_u32_u24 v{vOff}, 6912, v{vCo}')
    A(f'v_lshl_add_u32 v{vOff}, v{vCC}, 4, v{vOff}')
    A(f'v_lshlrev_b32 v{vCo}, 1, v{vCo}')
    last_partial = nrows%NRG
    if last_partial:
        A(f'v_cmp_gt_u32 vcc, {last_partial}, v{vRG}')
        A(f'v_mov_b32 v{vT}, 0x{OOB:x}')
        A('s_nop 0')
        A(f'v_cndmask_b32 v5, v{vT}, v{vOff}, vcc')
    A('s_waitcnt lgkmcnt(0)')
    for p in range(NP):
        A(f'buffer_load_dwordx4 {v(vW+4*p,4)}, v{5 if (last_partial and p==NP-1) else vOff}, {srdW}, s{sCol} offen')
        if p<NP-1: A(f's_add_u32 s{sCol}, s{sCol}, {NRG*6912}')
    for p in range(NP):
        A(f'buffer_load_ushort v{vC+p}, v{vCo}, {srdC}, 0 offen offset:{2*NRG*p}')

def mod_compute(A, NRG, NP, Lend, finish, extra=0, vC=8, vW=32):
    vCC=1; vAcc=112; vT=120; vX=96
    for i in range(8): A(f'v_mov_b32 v{vAcc+i}, 0')
    A(f's_mov_b32 s25, 0x{LOG2E:x}')
    A.stamp(1)
    A(f's_waitcnt vmcnt({extra})')
    A.stamp(2)
    for p in range(NP): silu_bf16(A,vC+p,vT,25)
    for p in range(NP):
        for i in range(4):
            w=vW+4*p+i
            A(f'v_lshlrev_b32 v{vT}, 16, v{w}')
            A(f'v_and_b32 v{vT+1}, 0xffff0000, v{w}')
            A(f'v_fmac_f32 v{vAcc+2*i}, v{vT}, v{vC+p}')
            A(f'v_fmac_f32 v{vAcc+2*i+1}, v{vT+1}, v{vC+p}')
    def xr(kind):
        for i in range(8):
            r=vAcc+i
            if kind=='8': A(f'v_add_f32_dpp v{r}, v{r}, v{r} row_ror:8 row_mask:0xf bank_mask:0xf')
            else: A(f'v_mov_b32 v{vX+i}, v{r}')
        if kind!='8':
            A('s_nop 1')
            for i in range(8): A(f'v_permlane{kind}_swap_b32 v{vX+i}, v{vAcc+i}')
            A('s_nop 1')
            for i in range(8): A(f'v_add_f32 v{vAcc+i}, v{vAcc+i}, v{vX+i}')
    A('s_nop 1'); xr('8'); xr('16'); xr('32')
    NWV=NRG//8
    A(f'v_lshrrev_b32 v{vT}, 6, v0')
    A(f'v_lshlrev_b32 v{vT}, 8, v{vT}')
    A(f'v_lshl_add_u32 v{vT}, v{vCC}, 5, v{vT}')
    A('s_mov_b64 exec, 0xff')
    A(f'ds_write_b128 v{vT}, {v(vAcc,4)}')
    A(f'ds_write_b128 v{vT}, {v(vAcc+4,4)} offset:16')
    A('s_mov_b64 exec, -1')
    A('s_waitcnt lgkmcnt(0)')
    A('s_barrier')
    A.stamp(3)
    A('v_cmp_gt_u32 vcc, 64, v0')
    A('s_and_saveexec_b64 s[26:27], vcc')
    A(f's_cbranch_execz {Lend}')
    A(f'v_lshlrev_b32 v{vT}, 2, v0')
    for r in range(NWV): A(f'ds_read_b32 v{32+r}, v{vT} offset:{256*r}')
    finish('pre')
    A('s_waitcnt lgkmcnt(0)')
    st=NWV//2
    while st:
        for r in range(st): A(f'v_add_f32 v{32+r}, v{32+r}, v{32+r+st}')
        st//=2
    finish('post')

def mod_block(A, NRG, NP, sCol, sRow0, nrows, srdW, srdC, Lend, finish, after_issue=None, extra=0):
    mod_issue(A,NRG,NP,sCol,sRow0,nrows,srdW,srdC)
    if after_issue: after_issue()
    mod_compute(A,NRG,NP,Lend,finish,extra)

def kappa_pos(A, vD, vTmp, sMask=None):
    A(f'v_sub_u32 v{vTmp}, 864, v{vD}')
    A(f'v_cmp_lt_u32 vcc, 288, v{vD}')
    if sMask: A(sMask)
    A('s_nop 1')
    A(f'v_cndmask_b32 v{vD}, v{vD}, v{vTmp}, vcc')

def k1_prefetch(A, V):
    v1,v2,v3,v4,v5,v6,v7,v8=[f'v{V+i}' for i in range(8)]
    Lpc=A.label('k1_pc')
    A('s_and_b32 s56, s2, 7')
    A('s_lshr_b32 s57, s2, 3')
    A(f'v_mov_b32 {v6}, 0x{OOB:x}')
    Lx=A.label('pfx'); Lh=A.label('pfh'); Ls=A.label('pfs'); Lc=A.label('pfc'); Ld=A.label('pfd')
    A('s_cmp_lt_u32 s57, 9'); A(f's_cbranch_scc1 {Lx}')
    A('s_cmp_lt_u32 s57, 21'); A(f's_cbranch_scc1 {Lh}')
    A('s_cmp_lt_u32 s57, 30'); A(f's_cbranch_scc1 {Ls}')
    A('s_getpc_b64 s[58:59]')
    A(f'{Lpc}:')
    A('s_sub_u32 s57, s57, 30'); A('s_lshl_b32 s57, s57, 15')
    A(f'v_lshlrev_b32 {v1}, 7, v0'); A(f'v_add_u32 {v1}, s57, {v1}')
    A(f'v_min_u32 {v2}, code_end-{Lpc}, {v1}')
    A(f'global_load_dword v{V+8}, {v2}, s[58:59]')
    A(f's_branch {Ld}')
    A(f'{Lx}:')
    A('s_lshl_b32 s58, s57, 8'); A(f'v_add_u32 {v1}, s58, v0')
    A(f's_mov_b32 s59, {(2**32+8)//9}')
    A(f'v_mul_hi_u32 {v2}, {v1}, s59')
    A(f'v_mul_u32_u24 {v3}, 9, {v2}'); A(f'v_sub_u32 {v3}, {v1}, {v3}')
    A(f'v_lshrrev_b32 {v4}, 5, {v2}'); A(f'v_lshlrev_b32 {v4}, 3, {v4}'); A(f'v_add_u32 {v4}, s56, {v4}'); A(f'v_lshlrev_b32 {v4}, 4, {v4}')
    A(f'v_and_b32 {v5}, 15, {v2}'); A(f'v_add_u32 {v4}, {v4}, {v5}')
    A(f'v_sub_u32 {v5}, 2048, {v4}')
    A(f'v_and_b32 {v7}, 16, {v2}'); A(f'v_cmp_eq_u32 vcc, 0, {v7}'); A('s_nop 1')
    A(f'v_cndmask_b32 {v4}, {v5}, {v4}, vcc')
    A(f'v_mul_u32_u24 {v4}, 1152, {v4}'); A(f'v_lshl_add_u32 {v4}, {v3}, 7, {v4}')
    A(f'buffer_load_dword v{V+8}, {v4}, s[20:23], 0 offen')
    A(f's_branch {Ld}')
    A(f'{Lh}:')
    A('s_sub_u32 s57, s57, 9')
    A('s_cmp_ge_u32 s57, 6')
    A('s_cselect_b32 s60, s44, s40'); A('s_cselect_b32 s61, s45, s41'); A('s_cselect_b32 s58, 6, 0')
    A(f's_mov_b32 s62, {SZ["Cd"]}'); A('s_mov_b32 s63, 0x00020000')
    A('s_sub_u32 s57, s57, s58'); A('s_lshl_b32 s58, s57, 8'); A(f'v_add_u32 {v8}, s58, v0')
    A(f's_mov_b32 s59, {(2**32+4)//5}')
    A(f'v_mul_hi_u32 {v2}, {v8}, s59')
    A(f'v_mul_u32_u24 {v3}, 5, {v2}'); A(f'v_sub_u32 {v3}, {v8}, {v3}')
    A(f'v_mul_u32_u24 {v5}, 1152, {v2}'); A(f'v_lshl_add_u32 {v5}, {v3}, 7, {v5}')
    A(f'buffer_load_dword v{V+8}, {v5}, s[60:63], 0 offen')
    A(f's_branch {Ld}')
    A(f'{Ls}:')
    A('s_sub_u32 s57, s57, 21'); A('s_lshl_b32 s58, s57, 8'); A(f'v_add_u32 {v1}, s58, v0')
    A(f'v_lshrrev_b32 {v2}, 4, {v1}'); A(f'v_and_b32 {v3}, 15, {v1}')
    A('s_lshr_b32 s58, s56, 1'); A('s_lshl_b32 s58, s58, 7')
    A(f'v_add_u32 {v7}, s58, {v2}'); A(f'v_add_u32 {v8}, 384, {v2}')
    A(f'v_cmp_gt_u32 vcc, 128, {v2}'); A('s_nop 1')
    A(f'v_cndmask_b32 {v7}, {v8}, {v7}, vcc')
    A(f'v_lshlrev_b32 {v7}, 12, {v7}'); A(f'v_lshl_add_u32 {v7}, {v3}, 7, {v7}')
    A(f'v_cmp_gt_u32 vcc, 129, {v2}'); A('s_nop 1')
    A(f'v_cndmask_b32 {v7}, {v6}, {v7}, vcc')
    A(f'buffer_load_dword v{V+8}, {v7}, s[48:51], 0 offen')
    A(f'buffer_load_dword v{V+9}, {v7}, s[52:55], 0 offen')
    A(f'{Ld}:')
    Lnw=A.label('pfnw')
    A('s_lshr_b32 s57, s2, 3')
    A('s_sub_u32 s58, s57, 21'); A('s_cmp_lt_u32 s58, 8'); A(f's_cbranch_scc1 {Lnw}')
    A('s_cmp_ge_u32 s57, 29'); A('s_cselect_b32 s58, 8, 0'); A('s_sub_u32 s57, s57, s58')
    A('s_mul_i32 s57, s57, 152'); A('s_add_u32 s57, s57, 1536')
    A(f'v_min_u32 {v1}, 151, v0'); A(f'v_add_u32 {v1}, s57, {v1}')
    A(f's_mov_b32 s59, {(2**32+8)//9}')
    A(f'v_mul_hi_u32 {v2}, {v1}, s59')
    A(f'v_mul_u32_u24 {v3}, 9, {v2}'); A(f'v_sub_u32 {v3}, {v1}, {v3}')
    A(f'v_mul_u32_u24 {v2}, 9216, {v2}'); A(f'v_lshl_add_u32 {v2}, {v3}, 7, {v2}')
    A('s_mul_i32 s58, s56, 1152')
    A(f'buffer_load_dword v{V+10}, {v2}, s[64:67], s58 offen')
    A(f'{Lnw}:')

def gen_k1b(A, name='k1_mod_kernel', pf=True, sf=''):
    NMOD=144; NT=256 if pf else 144
    A.launch(name, NT, 256, 2048)
    A.begin(name)
    Lpf=A.label('k1_pf'); Lend=A.label('k1_end')
    load_srds(A,[('wmod',8),('c',12),('ws',16),('x',20),('Cd',40),('Sd',44),('Cs',48),('Ss',52),('w1',64)])
    A(f's_cmp_ge_u32 s2, {NT}')
    A(f's_cbranch_scc1 {Lend}')
    A(f's_cmp_ge_u32 s2, {NMOD}')
    A(f's_cbranch_scc1 {Lpf}')
    A('s_and_b32 s28, s2, 7')
    A('s_lshr_b32 s29, s2, 3')
    A('s_lshl_b32 s24, s29, 7')
    A('s_mul_i32 s30, s28, 72')
    def fin(ph):
        if ph=='pre':
            A('s_cmp_ge_u32 s29, 9'); A('s_cselect_b32 s31, 9, 0'); A('s_cselect_b32 s32, 576, 0')
            A('s_sub_u32 s31, s29, s31'); A('s_lshl_b32 s31, s31, 6')
            A('v_add_u32 v3, s31, v0')
            kappa_pos(A,3,4)
            A('s_mul_i32 s33, s28, 1152'); A('s_add_u32 s33, s33, s32')
            A('v_add_u32 v3, s33, v3'); A('v_lshlrev_b32 v3, 2, v3')
            A(f's_mov_b32 s33, {WS_PMOD}')
        else:
            A(f'buffer_store_dword v32, v3, s[16:19], s33 offen {sf}')
    mod_block(A,32,3,24,30,72,'s[8:11]','s[12:15]',Lend,fin, after_issue=(lambda: k1_prefetch(A,64)) if pf else None, extra=2 if pf else 0)
    A.endpgm()
    A(f'{Lpf}:')
    A('s_waitcnt lgkmcnt(0)')
    k1_prefetch(A,64)
    A('s_waitcnt vmcnt(0)')
    A(f'{Lend}:')
    A.endpgm()
    A.end(name, 128, 72)
```

```python
from asmlib import *
from gen1 import *
from gen2 import row_allreduce16
from gen1b import *
OOB=0x40000000

def gen_k2b(A, name='k2_hid_kernel', prefetch=True, NB1=14, P2=None, late=False, sf=''):
    ND=195; NT=256
    PITCH=592; L_HOO=16*PITCH; L_NQ=32*PITCH; L_MOD=19456; L_TB=L_MOD+5120
    A.launch(name, NT if prefetch else ND, 512, L_TB+13*9216)
    A.begin(name)
    Lp=A.label('k2_pf'); Lend=A.label('k2_end'); Lm=A.label('k2_mf')
    load_srds(A,[('x',8),('Cd',12),('ws',16),('Sd',20),('w1',24),('wmod',56),('c',60)])
    A(f's_cmp_ge_u32 s2, {NT if prefetch else ND}')
    A(f's_cbranch_scc1 {Lend}')
    if prefetch:
        A(f's_cmp_ge_u32 s2, {ND}')
        A(f's_cbranch_scc1 {Lp}')
    sST,sEG,sW=28,29,30
    A('s_lshr_b32 s31, s2, 3')
    A('s_mul_i32 s32, s31, 21846'); A('s_lshr_b32 s32, s32, 16')
    A('s_mul_i32 s33, s32, 3'); A(f's_sub_u32 s{sEG}, s31, s33')
    A('s_lshl_b32 s32, s32, 3'); A('s_and_b32 s33, s2, 7'); A(f's_add_u32 s{sST}, s32, s33')
    A('s_cmp_ge_u32 s2, 192')
    A(f's_cselect_b32 s{sST}, 64, s{sST}')
    A(f's_cselect_b32 s{sEG}, s33, s{sEG}')
    vRP,vL16,vS,vA1,vM1,vA3,vM3,vG1,vG2,vT0,vT1,vLane=1,2,3,4,5,6,7,8,9,10,11,12
    A(f'v_lshrrev_b32 v{vT0}, 6, v0')
    A(f'v_and_b32 v{vLane}, 63, v0')
    A(f'v_readfirstlane_b32 s{sW}, v{vT0}')
    A('s_nop 3')
    A(f's_cmp_ge_u32 s{sW}, 4')
    A(f's_cbranch_scc1 {Lm}')
    T=32; M=128
    def Tr(row,reg,i): return T+((row*2+reg)*3+i)*8
    G1=lambda i:M+8*i; G2=lambda i:M+24+8*i; SA1=lambda i:M+48+8*i; SA2=lambda i:M+72+8*i
    A(f'v_lshrrev_b32 v{vRP}, 4, v0')
    A(f'v_and_b32 v{vL16}, 15, v0')
    A(f's_lshl_b32 s31, s{sST}, 4')
    A(f'v_add_u32 v{vS}, s31, v{vRP}')
    A(f'v_cmp_gt_u32 s[32:33], 12, v{vL16}')
    A(f'v_cmp_eq_u32 s[34:35], 12, v{vL16}')
    A(f'v_cmp_ge_u32 vcc, 1024, v{vS}')
    A('s_and_b64 s[36:37], vcc, s[32:33]')
    A(f'v_add_u32 v{vT0}, -1, v{vS}')
    A(f'v_cmp_gt_u32 vcc, 1023, v{vT0}')
    A('s_mov_b64 s[38:39], vcc')
    A('s_and_b64 s[40:41], s[38:39], s[32:33]')
    A(f'v_lshlrev_b32 v{vT0}, 4, v{vL16}')
    A(f'v_mul_u32_u24 v{vA1}, 1152, v{vS}')
    A(f'v_sub_u32 v{vT1}, 2048, v{vS}')
    A(f'v_mul_u32_u24 v{vA3}, 1152, v{vT1}')
    A(f'v_sub_u32 v{vM1}, v{vA1}, v{vT0}')
    A(f'v_add_u32 v{vM1}, {1136-384}, v{vM1}')
    A(f'v_sub_u32 v{vM3}, v{vA3}, v{vT0}')
    A(f'v_add_u32 v{vM3}, {1136-384}, v{vM3}')
    A(f'v_add_u32 v{vA1}, v{vA1}, v{vT0}')
    A(f'v_add_u32 v{vA3}, v{vA3}, v{vT0}')
    A(f'v_mov_b32 v{vT1}, 0x{OOB:x}')
    for r,m in ((vA1,36),(vM1,36),(vA3,40),(vM3,40)):
        A(f'v_cndmask_b32 v{r}, v{vT1}, v{r}, s[{m}:{m+1}]')
    A('s_waitcnt lgkmcnt(0)')
    for row,(va,vm) in enumerate(((vA1,vM1),(vA3,vM3))):
        for i in range(3):
            A(f'buffer_load_dwordx4 {v(Tr(row,0,i)+4,4)}, v{va}, s[8:11], 0 offen offset:{192*i}')
        for i in range(3):
            A(f'buffer_load_dwordx4 {v(Tr(row,1,i)+4,4)}, v{vm}, s[8:11], 0 offen offset:{384-192*i}')
    A('s_barrier')
    A(f'v_min_u32 v{vG1}, 11, v{vL16}')
    A(f'v_lshlrev_b32 v{vG1}, 5, v{vG1}')
    A(f'v_add_u32 v{vG1}, {L_MOD}, v{vG1}')
    A(f'v_add_u32 v{vG2}, {288*4}, v{vG1}')
    A(f'v_mov_b32 v{vT1}, {L_MOD+288*4-768}')
    A(f'v_cndmask_b32 v{vG2}, v{vG2}, v{vT1}, s[34:35]')
    A.stamp(1)
    mu=[14,16]; rr=[18,20]; ac=[22,24]; mean=[26,27]; vWf=28
    for row in range(2):
        A(f's_waitcnt vmcnt({6*(1-row)})')
        if row==0: A.stamp(2)
        for i in range(3):
            R=Tr(row,0,i)
            for q in range(4):
                src=R+4+q
                A(f'v_lshlrev_b32 v{R+2*q}, 16, v{src}')
                A(f'v_and_b32 v{R+2*q+1}, 0xffff0000, v{src}')
            R=Tr(row,1,i)
            A(f'v_lshlrev_b32 v{R+0}, 16, v{R+5}'); A(f'v_and_b32 v{R+3}, 0xffff0000, v{R+5}')
            A(f'v_lshlrev_b32 v{R+2}, 16, v{R+6}'); A(f'v_and_b32 v{R+5}, 0xffff0000, v{R+6}')
            A(f'v_and_b32 v{R+1}, 0xffff0000, v{R+4}'); A(f'v_lshlrev_b32 v{R+6}, 16, v{R+4}')
            A(f'v_lshlrev_b32 v{R+4}, 16, v{R+7}'); A(f'v_and_b32 v{R+7}, 0xffff0000, v{R+7}')
    for row in range(2):
        base=Tr(row,0,0)
        A(f'v_pk_add_f32 {v(ac[row],2)}, {v(base,2)}, {v(base+2,2)}')
    for p in range(2,24):
        for row in range(2):
            base=Tr(row,0,0)
            A(f'v_pk_add_f32 {v(ac[row],2)}, {v(ac[row],2)}, {v(base+2*p,2)}')
    for row in range(2): A(f'v_add_f32 v{mean[row]}, v{ac[row]}, v{ac[row]+1}')
    row_allreduce16(A,mean)
    A(f's_mov_b32 s52, 0x3ae38e39')
    for row in range(2):
        A(f'v_mul_f32 v{mean[row]}, s52, v{mean[row]}')
        bf16_round(A,f'v{mu[row]}',f'v{mean[row]}')
        A(f'v_sub_f32 v{mean[row]}, v{mean[row]}, v{mu[row]}')
        m=(36,40)[row]
        A(f'v_cndmask_b32 v{mu[row]}, 0, v{mu[row]}, s[{m}:{m+1}]')
    for p in range(24):
        for row in range(2):
            r=Tr(row,0,0)+2*p
            A(f'v_pk_add_f32 {v(r,2)}, {v(r,2)}, {v(mu[row],2)} op_sel_hi:[1,0] neg_lo:[0,1] neg_hi:[0,1]')
    for p in range(24):
        for row in range(2):
            r=Tr(row,0,0)+2*p
            if p==0: A(f'v_pk_mul_f32 {v(ac[row],2)}, {v(r,2)}, {v(r,2)}')
            else: A(f'v_pk_fma_f32 {v(ac[row],2)}, {v(r,2)}, {v(r,2)}, {v(ac[row],2)}')
    for row in range(2): A(f'v_add_f32 v{rr[row]}, v{ac[row]}, v{ac[row]+1}')
    def mod_reads(i):
        for hh in range(2):
            A(f'ds_read_b128 {v(G1(i)+4*hh,4)}, v{vG1} offset:{2304+384*i+16*hh}')
            A(f'ds_read_b128 {v(G2(i)+4*hh,4)}, v{vG2} offset:{2304+384*i+16*hh}')
            A(f'ds_read_b128 {v(SA1(i)+4*hh,4)}, v{vG1} offset:{384*i+16*hh}')
            A(f'ds_read_b128 {v(SA2(i)+4*hh,4)}, v{vG2} offset:{384*i+16*hh}')
    row_allreduce16(A,rr)
    A(f's_mov_b32 s53, 0x3727c5ac')
    for row in range(2):
        r=rr[row]
        A(f'v_mul_f32 v{r}, s52, v{r}')
        A(f'v_fma_f32 v{r}, -v{mean[row]}, v{mean[row]}, v{r}')
        A(f'v_max_f32 v{r}, 0, v{r}')
        bf16_round(A,f'v{r}',f'v{r}')
        A(f'v_add_f32 v{r}, s53, v{r}')
        bf16_round(A,f'v{r}',f'v{r}')
        A(f'v_sqrt_f32 v{r}, v{r}')
        A('s_nop 0')
        bf16_round(A,f'v{r}',f'v{r}')
        A(f'v_rcp_f32 v{r}, v{r}')
    A(f'v_cndmask_b32 v{vWf}, 1.0, 2.0, s[38:39]')
    A('s_mov_b32 s54, -2.0'); A('s_mov_b32 s55, -2.0')
    for p in range(24):
        r1=Tr(0,0,0)+2*p; r3=Tr(1,0,0)+2*p
        A(f'v_pk_mul_f32 {v(r3,2)}, {v(r3,2)}, {v(rr[1],2)} op_sel_hi:[1,0]')
        A(f'v_pk_fma_f32 {v(r1,2)}, {v(r1,2)}, {v(rr[0],2)}, {v(r3,2)} op_sel_hi:[1,0,1]')
        A(f'v_pk_fma_f32 {v(r3,2)}, {v(r3,2)}, s[54:55], {v(r1,2)}')
    A.stamp(4)
    A('s_barrier')
    A.stamp(5)
    mod_reads(0)
    for row in range(2):
        m0=[Tr(row,1,i)+6 for i in range(3)]
        tm=[vA1,vM1,vA3]
        A('s_nop 1')
        A(f'v_mov_b32 v{tm[0]}, 0')
        for i in (1,2): A(f'v_mov_b32_dpp v{tm[i]}, v{m0[i-1]} row_shl:11 row_mask:0xf bank_mask:0xf bound_ctrl:0')
        A('s_nop 1')
        for i in range(3): A(f'v_mov_b32_dpp v{tm[i]}, v{m0[i]} row_shr:1 row_mask:0xf bank_mask:0xf')
        for i in range(3): A(f'v_mov_b32 v{m0[i]}, v{tm[i]}')
    A(f'v_cmp_eq_u32 vcc, 0, v{vL16}')
    A(f'v_mul_u32_u24 v{vT0}, {PITCH}, v{vRP}')
    A(f'v_lshl_add_u32 v{vT0}, v{vL16}, 4, v{vT0}')
    A(f'v_lshlrev_b32 v{vT1}, 2, v{vRP}')
    A('s_waitcnt lgkmcnt(0)')
    mod_reads(1)
    A(f'v_cndmask_b32 v{SA2(0)}, v{SA2(0)}, 0, vcc')
    for i in range(3):
        if i==1:
            A('s_waitcnt lgkmcnt(2)')
            mod_reads(2)
        if i==2:
            A('s_waitcnt lgkmcnt(2)')
            A(f'v_cndmask_b32 v{SA1(2)}, v{SA1(2)}, 0, s[34:35]')
        for p in range(4):
            g1=G1(i)+2*p; g2=G2(i)+2*p; s1=SA1(i)+2*p; s2=SA2(i)+2*p
            ned=Tr(0,0,i)+2*p; neD=Tr(0,1,i)+2*(3-p); nod=Tr(1,0,i)+2*p; noD=Tr(1,1,i)+2*(3-p)
            A(f'v_pk_add_f32 {v(s1,2)}, {v(s1,2)}, {v(s2,2)}')
            A(f'v_pk_mul_f32 {v(s1,2)}, {v(s1,2)}, {v(vWf,2)} op_sel_hi:[1,0]')
            A(f'v_pk_fma_f32 {v(s1,2)}, {v(neD,2)}, {v(g2,2)}, {v(s1,2)}')
            A(f'v_pk_fma_f32 {v(s1,2)}, {v(ned,2)}, {v(g1,2)}, {v(s1,2)}')
            A(f'v_pk_mul_f32 {v(s2,2)}, {v(noD,2)}, {v(g2,2)}')
            A(f'v_pk_fma_f32 {v(s2,2)}, {v(nod,2)}, {v(g1,2)}, {v(s2,2)} neg_lo:[0,0,1] neg_hi:[0,0,1]')
        for p in range(4):
            A(f'v_cvt_pk_bf16_f32 v{G1(i)+p}, v{SA1(i)+2*p}, v{SA1(i)+2*p+1}')
            A(f'v_cvt_pk_bf16_f32 v{G1(i)+4+p}, v{SA2(i)+2*p}, v{SA2(i)+2*p+1}')
        A('s_mov_b64 exec, s[32:33]')
        A(f'ds_write_b128 v{vT0}, {v(G1(i),4)} offset:{192*i}')
        A(f'ds_write_b128 v{vT0}, {v(G1(i)+4,4)} offset:{L_HOO+192*i}')
        if i==2:
            A('s_mov_b64 exec, s[34:35]')
            A(f'ds_write_b32 v{vT1}, v{SA1(2)} offset:{L_NQ}')
        A('s_mov_b64 exec, -1')
    A.stamp(3)
    A('s_waitcnt lgkmcnt(0)')
    A('s_barrier')
    A.endpgm()
    A(f'{Lm}:')
    TB=64
    A(f's_sub_u32 s{sW}, s{sW}, 4')
    vTab=13; VO=16
    A(f's_and_b32 s49, s{sW}, 1')
    A('s_mul_i32 s49, s49, 3')
    A(f's_mul_i32 s50, s{sEG}, 6')
    A('s_add_u32 s49, s49, s50')
    A('s_mul_i32 s50, s49, 18432')
    A(f's_mul_i32 s31, s{sW}, {3*9216}')
    A(f's_add_u32 s31, s31, {L_TB}')
    A('s_movk_i32 s32, 1821')
    A('s_waitcnt lgkmcnt(0)')
    A(f's_cmp_lt_u32 s{sW}, 2')
    A('s_cselect_b32 s44, s12, s20')
    A('s_cselect_b32 s45, s13, s21')
    A(f's_mov_b32 s46, {SZ["Cd"]}')
    A('s_mov_b32 s47, 0x00020000')
    A('s_cselect_b32 s48, -1, 0')
    PM=TB; vH,vH2=26,27
    A(f'v_and_b32 v{vH}, 255, v0')
    A(f'v_lshlrev_b32 v{vH}, 4, v{vH}')
    A(f'v_add_u32 v{vH2}, 4096, v{vH}')
    A(f'v_min_u32 v{vH2}, {4608-16}, v{vH2}')
    A(f's_mov_b32 s33, {WS_PMOD}')
    Lq=A.label('k2_q')
    A('s_barrier')
    A('s_setprio 3')
    def ploads():
        A(f's_cmp_lg_u32 s{sW}, 0')
        A(f's_cbranch_scc1 {Lq}')
        for kq in range(8):
            A(f'buffer_load_dwordx4 {v(PM+8*kq+4,4)}, v{vH2}, s[16:19], s33 offen')
            A('s_add_u32 s33, s33, 4608')
        A(f's_mov_b32 s33, {WS_PMOD}')
        A(f'{Lq}:')
        for kq in range(8):
            A(f'buffer_load_dwordx4 {v(PM+8*kq,4)}, v{vH}, s[16:19], s33 offen')
            A('s_add_u32 s33, s33, 4608')
    if not late: ploads()
    def tpiece(t,j,sM,sS):
        A(f's_add_u32 m0, s{sM}, {t*9216+1024*j}'); A('s_nop 0')
        A(f'buffer_load_dwordx4 v{VO+j}, s[44:47], s{sS} offen lds')
    for j in range(9):
        A(f'v_add_u32 v{vT0}, {64*j}, v{vLane}')
        A(f'v_mul_u32_u24 v{vT1}, s32, v{vT0}')
        A(f'v_lshrrev_b32 v{vT1}, 16, v{vT1}')
        A(f'v_mul_u32_u24 v{VO+j}, {1152-576}, v{vT1}')
        A(f'v_lshl_add_u32 v{VO+j}, v{vT0}, 4, v{VO+j}')
        tpiece(0,j,31,50)
    A('s_add_u32 s50, s50, 18432')
    if late:
        for j in range(9): tpiece(1,j,31,50)
        A('s_add_u32 s50, s50, 18432')
        for j in range(9): tpiece(2,j,31,50)
        ploads()
        A('s_waitcnt vmcnt(0)')
    else:
        for j in range(NB1-9): tpiece(1,j,31,50)
        A(f's_waitcnt vmcnt({NB1})')
    A.stamp(5)
    for st in (4,2,1):
        for kq in range(st):
            for p in range(4):
                A(f'v_pk_add_f32 {v(PM+8*kq+2*p,2)}, {v(PM+8*kq+2*p,2)}, {v(PM+8*(kq+st)+2*p,2)}')
    A(f'v_cmp_le_u32 vcc, 2304, v{vH}')
    for i in range(8): bf16_round(A,f'v{PM+i}',f'v{PM+i}')
    A(f'v_cndmask_b32 v{PM+8}, 0, 1.0, vcc')
    for i in range(8):
        A(f'v_add_f32 v{PM+i}, {"v%d"%(PM+8) if i<4 else "1.0"}, v{PM+i}')
        bf16_round(A,f'v{PM+i}',f'v{PM+i}')
    A(f'ds_write_b128 v{vH}, {v(PM,4)} offset:{L_MOD}')
    Lq2=A.label('k2_q2')
    A(f's_cmp_lg_u32 s{sW}, 0')
    A(f's_cbranch_scc1 {Lq2}')
    A(f'ds_write_b128 v{vH2}, {v(PM+4,4)} offset:{L_MOD}')
    A(f'{Lq2}:')
    A('s_waitcnt lgkmcnt(0)')
    A.stamp(1)
    A('s_barrier')
    if P2 is not None: A(f's_setprio {P2}')
    if not late:
        for j in range(NB1-9,9): tpiece(1,j,31,50)
        A('s_add_u32 s50, s50, 18432')
        for j in range(9): tpiece(2,j,31,50)
    Lx1=A.label('k2_x1')
    A(f's_lshl_b32 s51, s{sW}, 2')
    A(f's_add_u32 s51, s51, s{sEG}')
    A(f'v_and_b32 v{vT0}, 15, v{vLane}')
    A(f'v_lshrrev_b32 v{vT1}, 4, v{vLane}')
    A(f'v_mul_u32_u24 v{vTab}, 576, v{vT0}')
    A(f'v_lshl_add_u32 v{vTab}, v{vT1}, 4, v{vTab}')
    A(f'v_add_u32 v{vM3}, {L_TB+12*9216}, v{vTab}')
    A(f'v_add_u32 v{vTab}, s31, v{vTab}')
    A('s_cmp_lg_u32 s51, 2')
    A(f's_cbranch_scc1 {Lx1}')
    A(f's_mov_b32 s50, {18*18432}')
    A(f's_mov_b32 s33, {L_TB+12*9216}')
    for j in range(9): tpiece(0,j,33,50)
    A('s_waitcnt vmcnt(0)')
    for kd in range(9):
        A(f'ds_read_b128 {v(TB+108+4*kd,4)}, v{vM3} offset:{64*kd}')
    A('s_waitcnt lgkmcnt(0)')
    A(f'{Lx1}:')
    for t in range(3):
        A(f's_waitcnt vmcnt({18-9*t}) lgkmcnt(4)')
        for kd in range(9):
            A(f'ds_read_b128 {v(TB+36*t+4*kd,4)}, v{vTab} offset:{9216*t+64*kd}')
    A(f'v_mul_u32_u24 v{vA1}, {PITCH}, v{vT0}')
    A(f'v_lshl_add_u32 v{vA1}, v{vT1}, 4, v{vA1}')
    A(f's_andn2_b32 s52, {L_HOO}, s48')
    A(f'v_add_u32 v{vA1}, s52, v{vA1}')
    A(f'v_lshlrev_b32 v{vM1}, 4, v{vT1}')
    A(f'v_lshlrev_b32 v{vM3}, 31, v{vLane}')
    A(f'v_lshrrev_b32 v{vA3}, 1, v{vT1}')
    A(f'v_lshlrev_b32 v{vA3}, 8, v{vA3}')
    A(f'v_lshl_add_u32 v{vA3}, v{vT0}, 4, v{vA3}')
    A(f'v_and_b32 v{vG1}, 1, v{vT1}')
    A(f'v_lshl_add_u32 v{vA3}, v{vG1}, 3, v{vA3}')
    A(f's_lshr_b32 s52, s{sST}, 1')
    A('s_lshl_b32 s52, s52, 10')
    A(f's_and_b32 s53, s{sST}, 1')
    A('s_lshl_b32 s53, s53, 9')
    A('s_add_u32 s52, s52, s53')
    A(f's_cmp_lt_u32 s{sW}, 2')
    A(f's_cselect_b32 s53, 0, {WS_BO-WS_AE}')
    A(f's_add_u32 s53, s53, {WS_AE}')
    A('s_add_u32 s52, s52, s53')
    A('s_lshl_b32 s54, s49, 15')
    A('s_add_u32 s54, s54, s52')
    A('s_waitcnt lgkmcnt(0)')
    A.stamp(2)
    A('s_barrier')
    A.stamp(3)
    AF=16; CI=52; ACC=208
    A(f'ds_read_b128 {v(CI,4)}, v{vM1} offset:{L_NQ}')
    for kd in range(9):
        A(f'ds_read_b128 {v(AF+4*kd,4)}, v{vA1} offset:{64*kd}')
    A('s_waitcnt lgkmcnt(9)')
    for r in range(4):
        A(f'v_xor_b32 v{CI+r}, v{CI+r}, v{vM3}')
        A(f'v_and_b32 v{CI+r}, s48, v{CI+r}')
    A('s_nop 1')
    for kd in range(9):
        A(f's_waitcnt lgkmcnt({8-kd})')
        for t in range(3):
            c = v(CI,4) if kd==0 else v(ACC+4*t,4)
            A(f'v_mfma_f32_16x16x32_bf16 {v(ACC+4*t,4)}, {v(AF+4*kd,4)}, {v(TB+36*t+4*kd,4)}, {c}')
    Lx2=A.label('k2_x2'); Lny=A.label('k2_ny')
    A('s_cmp_lg_u32 s51, 2')
    A(f's_cbranch_scc1 {Lx2}')
    for kd in range(9):
        c = v(CI,4) if kd==0 else v(ACC+12,4)
        A(f'v_mfma_f32_16x16x32_bf16 {v(ACC+12,4)}, {v(AF+4*kd,4)}, {v(TB+108+4*kd,4)}, {c}')
    A(f'{Lx2}:')
    A('s_nop 7')
    A.stamp(4)
    A(f's_cmp_eq_u32 s{sST}, 64')
    A(f's_cbranch_scc1 {Lny}')
    for t in range(3):
        A(f'v_cvt_pk_bf16_f32 v{ACC+4*t}, v{ACC+4*t}, v{ACC+4*t+1}')
        A(f'v_cvt_pk_bf16_f32 v{ACC+4*t+1}, v{ACC+4*t+2}, v{ACC+4*t+3}')
        A(f'buffer_store_dwordx2 {v(ACC+4*t,2)}, v{vA3}, s[16:19], s54 offen {sf}')
        A('s_add_u32 s54, s54, 32768')
    A('s_cmp_lg_u32 s51, 2')
    A(f's_cbranch_scc1 {Lend}')
    A(f's_add_u32 s54, s52, {18*32768}')
    A(f'v_cvt_pk_bf16_f32 v{ACC+12}, v{ACC+12}, v{ACC+13}')
    A(f'v_cvt_pk_bf16_f32 v{ACC+13}, v{ACC+14}, v{ACC+15}')
    A(f'buffer_store_dwordx2 {v(ACC+12,2)}, v{vA3}, s[16:19], s54 offen {sf}')
    A.endpgm()
    A(f'{Lny}:')
    A(f's_cmp_ge_u32 s{sW}, 2')
    A(f's_cbranch_scc1 {Lend}')
    A(f'v_lshlrev_b32 v{vA3}, 2, v{vLane}')
    A('s_lshl_b32 s54, s49, 6')
    A('s_mov_b64 exec, 0xffff')
    A(f's_add_u32 s54, s54, {WS_AE1024}')
    for t in range(3):
        A(f'buffer_store_dword v{ACC+4*t}, v{vA3}, s[16:19], s54 offen offset:{64*t}')
    A('s_cmp_lg_u32 s51, 2')
    A(f's_cbranch_scc1 {Lend}')
    A(f's_mov_b32 s54, {WS_AE1024+18*64}')
    A(f'buffer_store_dword v{ACC+12}, v{vA3}, s[16:19], s54 offen {sf}')
    A.endpgm()
    if prefetch:
        A(f'{Lp}:')
        Lw=A.label('k2_w1')
        A('s_cmp_ge_u32 s2, 231')
        A(f's_cbranch_scc1 {Lw}')
        A(f's_sub_u32 s29, s2, {195-18}')
        A('s_lshl_b32 s64, s29, 7')
        A('s_mov_b32 s30, 0')
        def fin(ph):
            if ph=='pre':
                A('s_mul_i32 s28, s29, 7282'); A('s_lshr_b32 s28, s28, 16')
                A('s_mul_i32 s31, s28, 9'); A('s_sub_u32 s31, s29, s31'); A('s_lshl_b32 s31, s31, 6')
                A('v_add_u32 v3, s31, v0')
                A('s_cmp_eq_u32 s28, 5')
                kappa_pos(A,3,4,'s_cselect_b64 vcc, 0, vcc')
                A('s_mul_i32 s31, s28, 576')
                A('v_add_u32 v3, s31, v3'); A('v_lshlrev_b32 v3, 2, v3')
                A('s_cmp_eq_u32 s28, 4'); A('s_cselect_b32 s31, 1.0, 0')
            else:
                bf16_round(A,'v32','v32')
                A('v_add_f32 v32, s31, v32')
                bf16_round(A,'v32','v32')
                A(f'buffer_store_dword v32, v3, s[16:19], 0 offen offset:{WS_MOD}')
        mod_block(A,64,9,64,30,576,'s[56:59]','s[60:63]',Lend,fin)
        A.endpgm()
        A(f'{Lw}:')
        Lz=A.label('k2_z')
        A('s_cmp_ge_u32 s2, 232')
        A(f's_cbranch_scc1 {Lz}')
        A('v_min_u32 v1, 287, v0'); A('v_lshlrev_b32 v1, 7, v1')
        for r in range(4): A(f'v_mov_b32 v{4+r}, 0')
        A('s_mov_b32 s31, 0x50000')
        A('s_waitcnt lgkmcnt(0)')
        A('buffer_store_dwordx4 v[4:7], v1, s[16:19], s31 offen')
        A('buffer_store_dwordx4 v[4:7], v1, s[16:19], s31 offen offset:16')
        A(f's_branch {Lend}')
        A(f'{Lz}:')
        A('s_and_b32 s31, s2, 7')
        A('s_sub_u32 s32, s2, 232'); A('s_lshr_b32 s32, s32, 3')
        A('s_lshl_b32 s33, s32, 9')
        A('v_add_u32 v1, s33, v0')
        A('s_mul_i32 s35, s31, 1152')
        A(f's_mov_b32 s36, {(2**32+8)//9}')
        A('v_mul_hi_u32 v2, v1, s36')
        A('v_mul_u32_u24 v3, 9, v2'); A('v_sub_u32 v3, v1, v3')
        A('v_mul_u32_u24 v4, 9216, v2'); A('v_lshl_add_u32 v4, v3, 7, v4')
        A('v_min_u32 v5, 287, v1'); A('v_lshlrev_b32 v5, 7, v5'); A(f's_mov_b32 s34, {WS_PMOD}')
        A('s_waitcnt lgkmcnt(0)')
        if late: A('buffer_load_dword v13, v5, s[16:19], s34 offen')
        A(f'buffer_load_dword v12, v4, s[24:27], s35 offen')
        A('s_waitcnt vmcnt(0)')
    A(f'{Lend}:')
    A.endpgm()
    A.end(name, 224, 72)
```

```python
from asmlib import *
from gen1 import *
from gen2 import row_allreduce16
from gen1b import *
OOB=0x40000000

def gen_k2c(A, name='k2_hid_kernel', prefetch=True, wpf=True, tpf=True):
    ND=195; NT=256
    PITCH=592; L_HOO=16*PITCH; L_NQ=32*PITCH; L_MOD=19456; L_TB=L_MOD+5120
    A.launch(name, NT if prefetch else ND, 512, L_TB+13*9216)
    A.begin(name)
    Lp=A.label('k2_pf'); Lend=A.label('k2_end'); Lm=A.label('k2_mf')
    load_srds(A,[('x',8),('Cd',12),('ws',16),('Sd',20),('w1',24),('wmod',56),('c',60),('dbg',68),('Cs',72),('Ss',76)])
    A(f's_cmp_ge_u32 s2, {NT if prefetch else ND}')
    A(f's_cbranch_scc1 {Lend}')
    if prefetch:
        A(f's_cmp_ge_u32 s2, {ND}')
        A(f's_cbranch_scc1 {Lp}')
    sST,sEG,sW=28,29,30
    A('s_lshr_b32 s31, s2, 3')
    A('s_mul_i32 s32, s31, 21846'); A('s_lshr_b32 s32, s32, 16')
    A('s_mul_i32 s33, s32, 3'); A(f's_sub_u32 s{sEG}, s31, s33')
    A('s_lshl_b32 s32, s32, 3'); A('s_and_b32 s33, s2, 7'); A(f's_add_u32 s{sST}, s32, s33')
    A('s_cmp_ge_u32 s2, 192')
    A(f's_cselect_b32 s{sST}, 64, s{sST}')
    A(f's_cselect_b32 s{sEG}, s33, s{sEG}')
    vRP,vL16,vS,vA1,vM1,vA3,vM3,vG1,vG2,vT0,vT1,vLane=1,2,3,4,5,6,7,8,9,10,11,12
    A(f'v_lshrrev_b32 v{vT0}, 6, v0')
    A(f'v_and_b32 v{vLane}, 63, v0')
    A(f'v_readfirstlane_b32 s{sW}, v{vT0}')
    A('s_nop 3')
    A(f's_cmp_ge_u32 s{sW}, 4')
    A(f's_cbranch_scc1 {Lm}')
    T=32; M=128
    def Tr(row,reg,i): return T+((row*2+reg)*3+i)*8
    G1=lambda i:M+8*i; G2=lambda i:M+24+8*i; SA1=lambda i:M+48+8*i; SA2=lambda i:M+72+8*i
    A(f'v_lshrrev_b32 v{vRP}, 4, v0')
    A(f'v_and_b32 v{vL16}, 15, v0')
    A(f's_lshl_b32 s31, s{sST}, 4')
    A(f'v_add_u32 v{vS}, s31, v{vRP}')
    A(f'v_cmp_gt_u32 s[32:33], 12, v{vL16}')
    A(f'v_cmp_eq_u32 s[34:35], 12, v{vL16}')
    A(f'v_cmp_ge_u32 vcc, 1024, v{vS}')
    A('s_and_b64 s[36:37], vcc, s[32:33]')
    A(f'v_add_u32 v{vT0}, -1, v{vS}')
    A(f'v_cmp_gt_u32 vcc, 1023, v{vT0}')
    A('s_mov_b64 s[38:39], vcc')
    A('s_and_b64 s[40:41], s[38:39], s[32:33]')
    A(f'v_lshlrev_b32 v{vT0}, 4, v{vL16}')
    A(f'v_mul_u32_u24 v{vA1}, 1152, v{vS}')
    A(f'v_sub_u32 v{vT1}, 2048, v{vS}')
    A(f'v_mul_u32_u24 v{vA3}, 1152, v{vT1}')
    A(f'v_sub_u32 v{vM1}, v{vA1}, v{vT0}')
    A(f'v_add_u32 v{vM1}, {1136-384}, v{vM1}')
    A(f'v_sub_u32 v{vM3}, v{vA3}, v{vT0}')
    A(f'v_add_u32 v{vM3}, {1136-384}, v{vM3}')
    A(f'v_add_u32 v{vA1}, v{vA1}, v{vT0}')
    A(f'v_add_u32 v{vA3}, v{vA3}, v{vT0}')
    A(f'v_mov_b32 v{vT1}, 0x{OOB:x}')
    for r,m in ((vA1,36),(vM1,36),(vA3,40),(vM3,40)):
        A(f'v_cndmask_b32 v{r}, v{vT1}, v{r}, s[{m}:{m+1}]')
    A('s_waitcnt lgkmcnt(0)')
    for row,(va,vm) in enumerate(((vA1,vM1),(vA3,vM3))):
        for i in range(3):
            A(f'buffer_load_dwordx4 {v(Tr(row,0,i)+4,4)}, v{va}, s[8:11], 0 offen offset:{192*i}')
        for i in range(3):
            A(f'buffer_load_dwordx4 {v(Tr(row,1,i)+4,4)}, v{vm}, s[8:11], 0 offen offset:{384-192*i}')
    A(f'v_min_u32 v{vG1}, 11, v{vL16}')
    A(f'v_lshlrev_b32 v{vG1}, 5, v{vG1}')
    A(f'v_add_u32 v{vG1}, {L_MOD}, v{vG1}')
    A(f'v_add_u32 v{vG2}, {288*4}, v{vG1}')
    A(f'v_mov_b32 v{vT1}, {L_MOD+288*4-768}')
    A(f'v_cndmask_b32 v{vG2}, v{vG2}, v{vT1}, s[34:35]')
    A.stamp(1)
    mu=[14,16]; rr=[18,20]; ac=[22,24]; mean=[26,27]; vWf=28
    for row in range(2):
        A(f's_waitcnt vmcnt({6*(1-row)})')
        if row==0: A.stamp(2)
        for i in range(3):
            R=Tr(row,0,i)
            for q in range(4):
                src=R+4+q
                A(f'v_lshlrev_b32 v{R+2*q}, 16, v{src}')
                A(f'v_and_b32 v{R+2*q+1}, 0xffff0000, v{src}')
            R=Tr(row,1,i)
            A(f'v_lshlrev_b32 v{R+0}, 16, v{R+5}'); A(f'v_and_b32 v{R+3}, 0xffff0000, v{R+5}')
            A(f'v_lshlrev_b32 v{R+2}, 16, v{R+6}'); A(f'v_and_b32 v{R+5}, 0xffff0000, v{R+6}')
            A(f'v_and_b32 v{R+1}, 0xffff0000, v{R+4}'); A(f'v_lshlrev_b32 v{R+6}, 16, v{R+4}')
            A(f'v_lshlrev_b32 v{R+4}, 16, v{R+7}'); A(f'v_and_b32 v{R+7}, 0xffff0000, v{R+7}')
    for row in range(2):
        base=Tr(row,0,0)
        A(f'v_pk_add_f32 {v(ac[row],2)}, {v(base,2)}, {v(base+2,2)}')
    for p in range(2,24):
        for row in range(2):
            base=Tr(row,0,0)
            A(f'v_pk_add_f32 {v(ac[row],2)}, {v(ac[row],2)}, {v(base+2*p,2)}')
    for row in range(2): A(f'v_add_f32 v{mean[row]}, v{ac[row]}, v{ac[row]+1}')
    row_allreduce16(A,mean)
    A(f's_mov_b32 s52, 0x3ae38e39')
    for row in range(2):
        A(f'v_mul_f32 v{mean[row]}, s52, v{mean[row]}')
        bf16_round(A,f'v{mu[row]}',f'v{mean[row]}')
        A(f'v_sub_f32 v{mean[row]}, v{mean[row]}, v{mu[row]}')
        m=(36,40)[row]
        A(f'v_cndmask_b32 v{mu[row]}, 0, v{mu[row]}, s[{m}:{m+1}]')
    for p in range(24):
        for row in range(2):
            r=Tr(row,0,0)+2*p
            A(f'v_pk_add_f32 {v(r,2)}, {v(r,2)}, {v(mu[row],2)} op_sel_hi:[1,0] neg_lo:[0,1] neg_hi:[0,1]')
    for p in range(24):
        for row in range(2):
            r=Tr(row,0,0)+2*p
            if p==0: A(f'v_pk_mul_f32 {v(ac[row],2)}, {v(r,2)}, {v(r,2)}')
            else: A(f'v_pk_fma_f32 {v(ac[row],2)}, {v(r,2)}, {v(r,2)}, {v(ac[row],2)}')
    for row in range(2): A(f'v_add_f32 v{rr[row]}, v{ac[row]}, v{ac[row]+1}')
    def mod_reads(i):
        for hh in range(2):
            A(f'ds_read_b128 {v(G1(i)+4*hh,4)}, v{vG1} offset:{2304+384*i+16*hh}')
            A(f'ds_read_b128 {v(G2(i)+4*hh,4)}, v{vG2} offset:{2304+384*i+16*hh}')
            A(f'ds_read_b128 {v(SA1(i)+4*hh,4)}, v{vG1} offset:{384*i+16*hh}')
            A(f'ds_read_b128 {v(SA2(i)+4*hh,4)}, v{vG2} offset:{384*i+16*hh}')
    row_allreduce16(A,rr)
    A(f's_mov_b32 s53, 0x3727c5ac')
    for row in range(2):
        r=rr[row]
        A(f'v_mul_f32 v{r}, s52, v{r}')
        A(f'v_fma_f32 v{r}, -v{mean[row]}, v{mean[row]}, v{r}')
        A(f'v_max_f32 v{r}, 0, v{r}')
        bf16_round(A,f'v{r}',f'v{r}')
        A(f'v_add_f32 v{r}, s53, v{r}')
        bf16_round(A,f'v{r}',f'v{r}')
        A(f'v_sqrt_f32 v{r}, v{r}')
        A('s_nop 0')
        bf16_round(A,f'v{r}',f'v{r}')
        A(f'v_rcp_f32 v{r}, v{r}')
    A(f'v_cndmask_b32 v{vWf}, 1.0, 2.0, s[38:39]')
    A('s_mov_b32 s54, -2.0'); A('s_mov_b32 s55, -2.0')
    for p in range(24):
        r1=Tr(0,0,0)+2*p; r3=Tr(1,0,0)+2*p
        A(f'v_pk_mul_f32 {v(r3,2)}, {v(r3,2)}, {v(rr[1],2)} op_sel_hi:[1,0]')
        A(f'v_pk_fma_f32 {v(r1,2)}, {v(r1,2)}, {v(rr[0],2)}, {v(r3,2)} op_sel_hi:[1,0,1]')
        A(f'v_pk_fma_f32 {v(r3,2)}, {v(r3,2)}, s[54:55], {v(r1,2)}')
    A.stamp(4)
    A('s_barrier')
    A.stamp(5)
    mod_reads(0)
    for row in range(2):
        m0=[Tr(row,1,i)+6 for i in range(3)]
        tm=[vA1,vM1,vA3]
        A('s_nop 1')
        A(f'v_mov_b32 v{tm[0]}, 0')
        for i in (1,2): A(f'v_mov_b32_dpp v{tm[i]}, v{m0[i-1]} row_shl:11 row_mask:0xf bank_mask:0xf bound_ctrl:0')
        A('s_nop 1')
        for i in range(3): A(f'v_mov_b32_dpp v{tm[i]}, v{m0[i]} row_shr:1 row_mask:0xf bank_mask:0xf')
        for i in range(3): A(f'v_mov_b32 v{m0[i]}, v{tm[i]}')
    A(f'v_cmp_eq_u32 vcc, 0, v{vL16}')
    A(f'v_mul_u32_u24 v{vT0}, {PITCH}, v{vRP}')
    A(f'v_lshl_add_u32 v{vT0}, v{vL16}, 4, v{vT0}')
    A(f'v_lshlrev_b32 v{vT1}, 2, v{vRP}')
    A('s_waitcnt lgkmcnt(0)')
    mod_reads(1)
    A(f'v_cndmask_b32 v{SA2(0)}, v{SA2(0)}, 0, vcc')
    for i in range(3):
        if i==1:
            A('s_waitcnt lgkmcnt(2)')
            mod_reads(2)
        if i==2:
            A('s_waitcnt lgkmcnt(2)')
            A(f'v_cndmask_b32 v{SA1(2)}, v{SA1(2)}, 0, s[34:35]')
        for p in range(4):
            g1=G1(i)+2*p; g2=G2(i)+2*p; s1=SA1(i)+2*p; s2=SA2(i)+2*p
            ned=Tr(0,0,i)+2*p; neD=Tr(0,1,i)+2*(3-p); nod=Tr(1,0,i)+2*p; noD=Tr(1,1,i)+2*(3-p)
            A(f'v_pk_add_f32 {v(s1,2)}, {v(s1,2)}, {v(s2,2)}')
            A(f'v_pk_mul_f32 {v(s1,2)}, {v(s1,2)}, {v(vWf,2)} op_sel_hi:[1,0]')
            A(f'v_pk_fma_f32 {v(s1,2)}, {v(neD,2)}, {v(g2,2)}, {v(s1,2)}')
            A(f'v_pk_fma_f32 {v(s1,2)}, {v(ned,2)}, {v(g1,2)}, {v(s1,2)}')
            A(f'v_pk_mul_f32 {v(s2,2)}, {v(noD,2)}, {v(g2,2)}')
            A(f'v_pk_fma_f32 {v(s2,2)}, {v(nod,2)}, {v(g1,2)}, {v(s2,2)} neg_lo:[0,0,1] neg_hi:[0,0,1]')
        for p in range(4):
            A(f'v_cvt_pk_bf16_f32 v{G1(i)+p}, v{SA1(i)+2*p}, v{SA1(i)+2*p+1}')
            A(f'v_cvt_pk_bf16_f32 v{G1(i)+4+p}, v{SA2(i)+2*p}, v{SA2(i)+2*p+1}')
        A('s_mov_b64 exec, s[32:33]')
        A(f'ds_write_b128 v{vT0}, {v(G1(i),4)} offset:{192*i}')
        A(f'ds_write_b128 v{vT0}, {v(G1(i)+4,4)} offset:{L_HOO+192*i}')
        if i==2:
            A('s_mov_b64 exec, s[34:35]')
            A(f'ds_write_b32 v{vT1}, v{SA1(2)} offset:{L_NQ}')
        A('s_mov_b64 exec, -1')
    A.stamp(3)
    A('s_waitcnt lgkmcnt(0)')
    A('s_barrier')
    A.endpgm()
    A(f'{Lm}:')
    TB=64
    A(f's_sub_u32 s{sW}, s{sW}, 4')
    vTab=13; VO=16
    A(f's_and_b32 s49, s{sW}, 1')
    A('s_mul_i32 s49, s49, 3')
    A(f's_mul_i32 s50, s{sEG}, 6')
    A('s_add_u32 s49, s49, s50')
    A('s_mul_i32 s50, s49, 18432')
    A(f's_mul_i32 s31, s{sW}, {3*9216}')
    A(f's_add_u32 s31, s31, {L_TB}')
    A('s_movk_i32 s32, 1821')
    A('s_waitcnt lgkmcnt(0)')
    A(f's_cmp_lt_u32 s{sW}, 2')
    A('s_cselect_b32 s44, s12, s20')
    A('s_cselect_b32 s45, s13, s21')
    A(f's_mov_b32 s46, {SZ["Cd"]}')
    A('s_mov_b32 s47, 0x00020000')
    A('s_cselect_b32 s48, -1, 0')
    if tpf:
        A('s_lshr_b32 s33, s2, 3'); A('s_lshl_b32 s33, s33, 1'); A(f's_and_b32 s34, s{sW}, 1'); A('s_add_u32 s33, s33, s34'); A('s_lshl_b32 s33, s33, 5')
        A(f'v_and_b32 v{vT0}, 31, v{vLane}'); A(f'v_add_u32 v{vT0}, s33, v{vT0}')
        A(f's_mov_b32 s34, {(2**32+4)//5}')
        A(f'v_mul_hi_u32 v{vT1}, v{vT0}, s34')
        A(f'v_mul_u32_u24 v{VO}, {1152-640}, v{vT1}')
        A(f'v_lshl_add_u32 v{VO}, v{vT0}, 7, v{VO}')
        A(f'buffer_load_dword v58, v{VO}, s[44:47], 0 offen')
    def tpiece(t,j,sM,sS):
        A(f's_add_u32 m0, s{sM}, {t*9216+1024*j}'); A('s_nop 0')
        A(f'buffer_load_dwordx4 v{VO+j}, s[44:47], s{sS} offen lds')
    for j in range(9):
        A(f'v_add_u32 v{vT0}, {64*j}, v{vLane}')
        A(f'v_mul_u32_u24 v{vT1}, s32, v{vT0}')
        A(f'v_lshrrev_b32 v{vT1}, 16, v{vT1}')
        A(f'v_mul_u32_u24 v{VO+j}, {1152-576}, v{vT1}')
        A(f'v_lshl_add_u32 v{VO+j}, v{vT0}, 4, v{VO+j}')
    if tpf: A('s_waitcnt vmcnt(0)')
    A.stamp(6)
    for t in (0,1,2):
        for j in range(9): tpiece(t,j,31,50)
        A('s_add_u32 s50, s50, 18432')
    Lx1=A.label('k2_x1')
    A(f's_lshl_b32 s51, s{sW}, 2')
    A(f's_add_u32 s51, s51, s{sEG}')
    A(f'v_and_b32 v{vT0}, 15, v{vLane}')
    A(f'v_lshrrev_b32 v{vT1}, 4, v{vLane}')
    A(f'v_mul_u32_u24 v{vTab}, 576, v{vT0}')
    A(f'v_lshl_add_u32 v{vTab}, v{vT1}, 4, v{vTab}')
    A(f'v_add_u32 v{vM3}, {L_TB+12*9216}, v{vTab}')
    A(f'v_add_u32 v{vTab}, s31, v{vTab}')
    A('s_cmp_lg_u32 s51, 2')
    A(f's_cbranch_scc1 {Lx1}')
    A(f's_mov_b32 s50, {18*18432}')
    A(f's_mov_b32 s33, {L_TB+12*9216}')
    for j in range(9): tpiece(0,j,33,50)
    A('s_waitcnt vmcnt(0)')
    for kd in range(9):
        A(f'ds_read_b128 {v(TB+108+4*kd,4)}, v{vM3} offset:{64*kd}')
    A('s_waitcnt lgkmcnt(0)')
    A(f'{Lx1}:')
    for t in range(3):
        A(f's_waitcnt vmcnt({18-9*t}) lgkmcnt(4)')
        for kd in range(9):
            A(f'ds_read_b128 {v(TB+36*t+4*kd,4)}, v{vTab} offset:{9216*t+64*kd}')
    A(f'v_mul_u32_u24 v{vA1}, {PITCH}, v{vT0}')
    A(f'v_lshl_add_u32 v{vA1}, v{vT1}, 4, v{vA1}')
    A(f's_andn2_b32 s52, {L_HOO}, s48')
    A(f'v_add_u32 v{vA1}, s52, v{vA1}')
    A(f'v_lshlrev_b32 v{vM1}, 4, v{vT1}')
    A(f'v_lshlrev_b32 v{vM3}, 31, v{vLane}')
    A(f'v_lshrrev_b32 v{vA3}, 1, v{vT1}')
    A(f'v_lshlrev_b32 v{vA3}, 8, v{vA3}')
    A(f'v_lshl_add_u32 v{vA3}, v{vT0}, 4, v{vA3}')
    A(f'v_and_b32 v{vG1}, 1, v{vT1}')
    A(f'v_lshl_add_u32 v{vA3}, v{vG1}, 3, v{vA3}')
    A(f's_lshr_b32 s52, s{sST}, 1')
    A('s_lshl_b32 s52, s52, 10')
    A(f's_and_b32 s53, s{sST}, 1')
    A('s_lshl_b32 s53, s53, 9')
    A('s_add_u32 s52, s52, s53')
    A(f's_cmp_lt_u32 s{sW}, 2')
    A(f's_cselect_b32 s53, 0, {WS_BO-WS_AE}')
    A(f's_add_u32 s53, s53, {WS_AE}')
    A('s_add_u32 s52, s52, s53')
    A('s_lshl_b32 s54, s49, 15')
    A('s_add_u32 s54, s54, s52')
    A('s_waitcnt lgkmcnt(0)')
    A.stamp(2)
    Lnp=A.label('k2_np'); Lb1=A.label('k2_b1')
    A(f's_cmp_eq_u32 s{sW}, 3')
    A(f's_cbranch_scc1 {Lnp}')
    if wpf:
        A('s_cmp_ge_u32 s2, 192'); A(f's_cbranch_scc1 {Lb1}')
        A('s_lshr_b32 s33, s2, 3'); A('s_mul_i32 s33, s33, 3'); A(f's_add_u32 s33, s33, s{sW}'); A('s_lshl_b32 s33, s33, 3')
        A('s_mul_i32 s33, s33, 9216'); A('s_and_b32 s34, s2, 7'); A('s_mul_i32 s34, s34, 1152'); A('s_add_u32 s33, s33, s34')
        A(f'v_lshrrev_b32 v16, 3, v{vLane}'); A('v_mul_u32_u24 v16, 9216, v16')
        A(f'v_and_b32 v17, 7, v{vLane}'); A('v_lshl_add_u32 v17, v17, 7, v16')
        A('v_add_u32 v16, 1024, v16')
        A('buffer_load_dword v56, v17, s[24:27], s33 offen')
        A('buffer_load_dword v57, v16, s[24:27], s33 offen')
    A(f's_branch {Lb1}')
    A(f'{Lnp}:')
    PM=[16,TB+108]; vH=56
    A(f'v_lshlrev_b32 v{vH}, 2, v{vLane}')
    Lp_=A.label('k2_poll'); Lpd=A.label('k2_polld')
    A('s_mov_b32 s33, 0')
    A(f'{Lp_}:')
    A(f'buffer_load_dword v57, v{vH}, s[68:71], 0 offen sc1')
    A('s_waitcnt vmcnt(0)')
    A('v_cmp_ne_u32 vcc, 0, v57')
    A('s_add_u32 s33, s33, 1')
    A('s_and_b32 s34, vcc_hi, 15'); A('s_cmp_eq_u32 s34, 15'); A('s_cselect_b32 s34, vcc_lo, 0')
    A('s_cmp_eq_u32 s34, -1'); A(f's_cbranch_scc1 {Lpd}')
    A('s_sleep 2')
    A('s_cmp_lt_u32 s33, 0x40000'); A(f's_cbranch_scc1 {Lp_}')
    A(f'{Lpd}:')
    A.stamp(5)
    A(f'v_lshlrev_b32 v{vH}, 4, v{vLane}')
    A(f'v_add_u32 v57, 4096, v{vH}')
    A(f'v_min_u32 v57, {4608-16}, v57')
    A(f's_mov_b32 s33, {WS_PMOD}'); A(f's_mov_b32 s34, {WS_PMOD+4608}')
    for k in range(5):
        for h in range(2):
            A(f'buffer_load_dwordx4 {v(PM[h]+4*k,4)}, v{vH if k<4 else 57}, s[16:19], s{33+h} offen offset:{1024*k if k<4 else 0} sc1')
    A(f'v_cmp_le_u32 vcc, 256, v{vH}')
    A('s_nop 1')
    A('v_cndmask_b32 v58, 0, 1.0, vcc')
    for k in range(5):
        A(f's_waitcnt vmcnt({8-2*k})')
        for i in range(4):
            r=PM[0]+4*k+i
            A(f'v_add_f32 v{r}, v{r}, v{PM[1]+4*k+i}')
            bf16_round(A,f'v{r}',f'v{r}')
            if k>=2:
                A(f'v_add_f32 v{r}, {"v58" if k==2 else "1.0"}, v{r}')
                bf16_round(A,f'v{r}',f'v{r}')
        A(f'ds_write_b128 v{vH if k<4 else 57}, {v(PM[0]+4*k,4)} offset:{L_MOD+(1024*k if k<4 else 0)}')
    A('s_waitcnt lgkmcnt(0)')
    A(f'{Lb1}:')
    A.stamp(1)
    A('s_barrier')
    A('s_barrier')
    A.stamp(3)
    AF=16; CI=52; ACC=208
    A(f'ds_read_b128 {v(CI,4)}, v{vM1} offset:{L_NQ}')
    for kd in range(9):
        A(f'ds_read_b128 {v(AF+4*kd,4)}, v{vA1} offset:{64*kd}')
    A('s_waitcnt lgkmcnt(9)')
    for r in range(4):
        A(f'v_xor_b32 v{CI+r}, v{CI+r}, v{vM3}')
        A(f'v_and_b32 v{CI+r}, s48, v{CI+r}')
    A('s_nop 1')
    for kd in range(9):
        A(f's_waitcnt lgkmcnt({8-kd})')
        for t in range(3):
            c = v(CI,4) if kd==0 else v(ACC+4*t,4)
            A(f'v_mfma_f32_16x16x32_bf16 {v(ACC+4*t,4)}, {v(AF+4*kd,4)}, {v(TB+36*t+4*kd,4)}, {c}')
    Lx2=A.label('k2_x2'); Lny=A.label('k2_ny')
    A('s_cmp_lg_u32 s51, 2')
    A(f's_cbranch_scc1 {Lx2}')
    for kd in range(9):
        c = v(CI,4) if kd==0 else v(ACC+12,4)
        A(f'v_mfma_f32_16x16x32_bf16 {v(ACC+12,4)}, {v(AF+4*kd,4)}, {v(TB+108+4*kd,4)}, {c}')
    A(f'{Lx2}:')
    A('s_nop 7')
    A.stamp(4)
    A(f's_cmp_eq_u32 s{sST}, 64')
    A(f's_cbranch_scc1 {Lny}')
    for t in range(3):
        A(f'v_cvt_pk_bf16_f32 v{ACC+4*t}, v{ACC+4*t}, v{ACC+4*t+1}')
        A(f'v_cvt_pk_bf16_f32 v{ACC+4*t+1}, v{ACC+4*t+2}, v{ACC+4*t+3}')
        A(f'buffer_store_dwordx2 {v(ACC+4*t,2)}, v{vA3}, s[16:19], s54 offen')
        A('s_add_u32 s54, s54, 32768')
    A('s_cmp_lg_u32 s51, 2')
    A(f's_cbranch_scc1 {Lend}')
    A(f's_add_u32 s54, s52, {18*32768}')
    A(f'v_cvt_pk_bf16_f32 v{ACC+12}, v{ACC+12}, v{ACC+13}')
    A(f'v_cvt_pk_bf16_f32 v{ACC+13}, v{ACC+14}, v{ACC+15}')
    A(f'buffer_store_dwordx2 {v(ACC+12,2)}, v{vA3}, s[16:19], s54 offen')
    A.endpgm()
    A(f'{Lny}:')
    A(f's_cmp_ge_u32 s{sW}, 2')
    A(f's_cbranch_scc1 {Lend}')
    A(f'v_lshlrev_b32 v{vA3}, 2, v{vLane}')
    A('s_lshl_b32 s54, s49, 6')
    A('s_mov_b64 exec, 0xffff')
    A(f's_add_u32 s54, s54, {WS_AE1024}')
    for t in range(3):
        A(f'buffer_store_dword v{ACC+4*t}, v{vA3}, s[16:19], s54 offen offset:{64*t}')
    A('s_cmp_lg_u32 s51, 2')
    A(f's_cbranch_scc1 {Lend}')
    A(f's_mov_b32 s54, {WS_AE1024+18*64}')
    A(f'buffer_store_dword v{ACC+12}, v{vA3}, s[16:19], s54 offen')
    A.endpgm()
    if prefetch:
        A(f'{Lp}:')
        Lw=A.label('k2_w1')
        A('s_cmp_ge_u32 s2, 231')
        A(f's_cbranch_scc1 {Lw}')
        Lj2=A.label('k2_j2')
        A('s_sub_u32 s65, s2, 195')
        A('s_and_b32 s28, s65, 1'); A('s_lshr_b32 s29, s65, 1')
        A('s_lshl_b32 s64, s29, 7')
        A('s_mul_i32 s30, s28, 288')
        def fin1(ph):
            if ph=='pre':
                A('s_cmp_ge_u32 s29, 9'); A('s_cselect_b32 s31, 9, 0'); A('s_cselect_b32 s32, 576, 0')
                A('s_sub_u32 s31, s29, s31'); A('s_lshl_b32 s31, s31, 6')
                A('v_add_u32 v3, s31, v0')
                kappa_pos(A,3,4)
                A('s_mul_i32 s33, s28, 1152'); A('s_add_u32 s33, s33, s32')
                A('v_add_u32 v3, s33, v3'); A('v_lshlrev_b32 v3, 2, v3')
                A(f's_mov_b32 s33, {WS_PMOD}')
            else:
                A('buffer_store_dword v32, v3, s[16:19], s33 offen sc1')
                A('s_lshl_b32 s33, s65, 2'); A('v_mov_b32 v33, 1')
                A('s_mov_b64 exec, 1')
                A('s_waitcnt vmcnt(0)')
                A('buffer_store_dword v33, off, s[68:71], s33 sc1')
        mod_issue(A,64,5,64,30,288,'s[56:59]','s[60:63]')
        A(f's_sub_u32 s66, s2, {195-18}')
        A('s_lshl_b32 s64, s66, 7'); A('s_mov_b32 s30, 0')
        mod_compute(A,64,5,Lj2,fin1)
        A(f'{Lj2}:')
        A('s_mov_b64 exec, -1')
        A.stamp(4)
        A('s_barrier')
        mod_issue(A,64,9,64,30,576,'s[56:59]','s[60:63]',vC=128,vW=140)
        A('s_mov_b32 s29, s66')
        def fin(ph):
            if ph=='pre':
                A('s_mul_i32 s28, s29, 7282'); A('s_lshr_b32 s28, s28, 16')
                A('s_mul_i32 s31, s28, 9'); A('s_sub_u32 s31, s29, s31'); A('s_lshl_b32 s31, s31, 6')
                A('v_add_u32 v3, s31, v0')
                A('s_cmp_eq_u32 s28, 5')
                kappa_pos(A,3,4,'s_cselect_b64 vcc, 0, vcc')
                A('s_mul_i32 s31, s28, 576')
                A('v_add_u32 v3, s31, v3'); A('v_lshlrev_b32 v3, 2, v3')
                A('s_cmp_eq_u32 s28, 4'); A('s_cselect_b32 s31, 1.0, 0')
            else:
                bf16_round(A,'v32','v32')
                A('v_add_f32 v32, s31, v32')
                bf16_round(A,'v32','v32')
                A(f'buffer_store_dword v32, v3, s[16:19], 0 offen offset:{WS_MOD}')
        mod_compute(A,64,9,Lend,fin,vC=128,vW=140)
        A.endpgm()
        A(f'{Lw}:')
        Lz=A.label('k2_z')
        A('s_cmp_ge_u32 s2, 232')
        A(f's_cbranch_scc1 {Lz}')
        A('v_min_u32 v1, 287, v0'); A('v_lshlrev_b32 v1, 7, v1')
        for r in range(4): A(f'v_mov_b32 v{4+r}, 0')
        A('s_mov_b32 s31, 0x50000')
        A('s_waitcnt lgkmcnt(0)')
        A('buffer_store_dwordx4 v[4:7], v1, s[16:19], s31 offen')
        A('buffer_store_dwordx4 v[4:7], v1, s[16:19], s31 offen offset:16')
        A(f's_branch {Lend}')
        A(f'{Lz}:')
        Lpc=A.label('k2_pc')
        A('s_and_b32 s31, s2, 7')
        A('s_sub_u32 s32, s2, 232'); A('s_lshr_b32 s32, s32, 3')
        A('s_lshl_b32 s33, s32, 9')
        A('v_add_u32 v1, s33, v0')
        A(f'v_mov_b32 v6, 0x{OOB:x}')
        A('s_lshr_b32 s34, s31, 1'); A('s_lshl_b32 s34, s34, 7')
        A('s_waitcnt lgkmcnt(0)')
        for r in range(2):
            if r: A('v_add_u32 v1, 1536, v1')
            A('v_lshrrev_b32 v2, 4, v1'); A('v_and_b32 v3, 15, v1')
            A('v_add_u32 v7, s34, v2'); A('v_add_u32 v9, 384, v2')
            A('v_cmp_gt_u32 vcc, 128, v2'); A('s_nop 1')
            A('v_cndmask_b32 v7, v9, v7, vcc')
            A('v_lshlrev_b32 v7, 12, v7'); A('v_lshl_add_u32 v7, v3, 7, v7')
            A('v_cmp_gt_u32 vcc, 129, v2'); A('s_nop 1')
            A('v_cndmask_b32 v7, v6, v7, vcc')
            A(f'buffer_load_dword v{12+2*r}, v7, s[72:75], 0 offen')
            A(f'buffer_load_dword v{13+2*r}, v7, s[76:79], 0 offen')
        A('s_cmp_lg_u32 s32, 2'); A(f's_cbranch_scc1 {Lend}')
        A('s_getpc_b64 s[36:37]')
        A(f'{Lpc}:')
        A('v_lshlrev_b32 v1, 7, v0')
        A(f'v_min_u32 v1, code_end-{Lpc}, v1')
        A('global_load_dword v16, v1, s[36:37]')
        A('s_waitcnt vmcnt(0)')
    A(f'{Lend}:')
    A.endpgm()
    A.end(name, 224, 80)
```

```python
from asmlib import *
from gen1 import *
from gen4 import Cnt
OOB=0x40000000

def sparse_prefetch(A, srd, vOff, sOff, vDst):
    A(f'buffer_load_dword v{vDst}, v{vOff}, {srd}, {sOff} offen')

def gen_k3b(A, name='k3_seq_kernel', prefetch=True, NPRE=8, w2pf=True, sf='sc1', sf2=''):
    NW=192; NT=256
    L_CS=0; L_SS=32768; L_C5=65536; L_S5=L_C5+2048; L_XS=L_C5+4096; L_V=L_XS+16384
    L_X=L_V+1024
    L_ST=L_X+21*1024
    A.launch(name, NT if prefetch else NW, 512, L_ST+3072)
    A.begin(name)
    Lend=A.label('k3_end'); Lpf=A.label('k3_pf'); Lepi=A.label('k3_epi')
    load_srds(A,[('x',8),('Cs',12),('ws',16),('Ss',20),('w2',24)])
    A(f's_cmp_ge_u32 s2, {NT if prefetch else NW}')
    A(f's_cbranch_scc1 {Lend}')
    if prefetch:
        A(f's_cmp_ge_u32 s2, {NW}')
        A(f's_cbranch_scc1 {Lpf}')
    sET,sTT,sW=28,29,30
    A('s_lshr_b32 s31, s2, 3')
    A('s_mul_i32 s32, s31, 21846'); A('s_lshr_b32 s32, s32, 16')
    A('s_mul_i32 s33, s32, 3'); A('s_sub_u32 s33, s31, s33')
    A('s_and_b32 s34, s2, 1'); A('s_mul_i32 s34, s34, 3')
    A(f's_add_u32 s{sET}, s33, s34')
    A('s_bfe_u32 s34, s2, 0x20001'); A('s_lshl_b32 s34, s34, 3')
    A(f's_add_u32 s{sTT}, s32, s34')
    vLane,vT0,vT1,vL16,vL16b,vD0,vD1=1,2,3,4,5,6,7
    vBa=8
    vSl,vEc,vRs,vR1,vE0,vTs=12,13,14,15,16,17
    vXo=18
    X=22
    GA=32
    AE4=48
    ACC=60
    BR=72
    AF=104
    A(f'v_and_b32 v{vLane}, 63, v0')
    A(f'v_lshrrev_b32 v{vT0}, 6, v0')
    A(f'v_lshlrev_b32 v{vL16}, 4, v{vLane}')
    A(f'v_readfirstlane_b32 s{sW}, v{vT0}')
    A(f's_lshl_b32 s35, s{sW}, 1')
    A(f'v_xor_b32 v{vD0}, s35, v{vLane}')
    A(f'v_lshlrev_b32 v{vD0}, 4, v{vD0}')
    A(f'v_xor_b32 v{vD1}, 16, v{vD0}')
    A(f'v_add_u32 v{vD1}, 2048, v{vD1}')
    A(f's_lshl_b32 s36, s{sTT}, 4'); A('s_add_u32 s36, s36, s35'); A('s_lshl_b32 s36, s36, 12')
    A(f's_lshl_b32 s37, s{sW}, 12')
    A('s_mov_b32 m0, s37')
    A('s_waitcnt lgkmcnt(0)')
    def tdma(srd, sOff):
        A(f'buffer_load_dwordx4 v{vD0}, {srd}, {sOff} offen lds')
        A(f'buffer_load_dwordx4 v{vD0}, {srd}, {sOff} offen offset:1024 lds')
        A(f'buffer_load_dwordx4 v{vD1}, {srd}, {sOff} offen offset:2048 lds')
        A(f'buffer_load_dwordx4 v{vD1}, {srd}, {sOff} offen offset:3072 lds')
    tdma('s[12:15]','s36')
    A(f's_add_u32 m0, s37, {L_SS}'); A('s_nop 0')
    tdma('s[20:23]','s36')
    A('s_barrier')
    A(f's_cmp_lt_u32 s{sW}, 3')
    A(f's_cselect_b32 s39, 0, {WS_BO-WS_AE-3*32768}')
    A('s_mov_b32 s41, 0x00008000')
    A('s_cselect_b32 s41, 0x80000000, s41')
    A(f's_cselect_b32 s42, 0, {L_SS}')
    A(f's_mul_i32 s43, s{sET}, 3'); A(f's_add_u32 s43, s43, s{sW}'); A('s_lshl_b32 s43, s43, 15')
    A('s_add_u32 s39, s39, s43')
    A(f's_add_u32 s39, s39, {WS_AE}')
    A(f's_cmp_eq_u32 s{sW}, 6')
    A(f's_cselect_b32 s39, {WS_AE+18*32768}, s39')
    A('s_cselect_b32 s41, 0x80000000, s41')
    A('s_cselect_b32 s42, 0, s42')
    A(f's_cmp_eq_u32 s{sET}, 0')
    A('s_cselect_b32 s40, 7, 6')
    Lna=A.label('k3_na')
    A(f'v_and_b32 v{vT0}, 15, v{vLane}')
    A(f'v_cmp_ne_u32 vcc, 0, v{vT0}')
    A(f's_cmp_eq_u32 s{sW}, 6'); A('s_cselect_b64 vcc, vcc, 0')
    A(f'v_mov_b32 v{vT0}, 0x{OOB:x}')
    A('s_nop 0')
    A(f'v_cndmask_b32 v{vL16b}, v{vL16}, v{vT0}, vcc')
    def aload(ks):
        A(f'buffer_load_dwordx4 {v(AF+4*ks,4)}, v{vL16b}, s[16:19], s39 offen offset:{(ks&3)*1024}')
        if ks&3==3: A('s_add_u32 s39, s39, 4096')
    A(f's_cmp_ge_u32 s{sW}, s40')
    A(f's_cbranch_scc1 {Lna}')
    for ks in range(NPRE): aload(ks)
    A(f'{Lna}:')
    Lnt=A.label('k3_nt'); Ln5=A.label('k3_n5'); Lj=A.label('k3_j')
    A(f's_cmp_lg_u32 s{sW}, 7')
    A(f's_cbranch_scc1 {Lnt}')
    A(f's_cmp_lg_u32 s{sTT}, 0')
    A(f's_cbranch_scc1 {Ln5}')
    A(f's_mov_b32 s38, {512*4096}')
    A(f's_mov_b32 m0, {L_C5}'); A('s_nop 0')
    A(f'buffer_load_dwordx4 v{vL16}, s[12:15], s38 offen lds')
    A(f'buffer_load_dwordx4 v{vL16}, s[12:15], s38 offen offset:1024 lds')
    A(f's_mov_b32 m0, {L_S5}'); A('s_nop 0')
    A(f'buffer_load_dwordx4 v{vL16}, s[20:23], s38 offen lds')
    A(f'buffer_load_dwordx4 v{vL16}, s[20:23], s38 offen offset:1024 lds')
    A(f'{Ln5}:')
    A('s_waitcnt vmcnt(0)')
    A('s_barrier')
    vQ,vI,vJ=BR,BR+1,BR+2
    A(f's_mul_i32 s45, s{sET}, 192')
    A(f'v_lshrrev_b32 v{vT0}, 4, v{vLane}')
    A(f'v_and_b32 v{vT1}, 15, v{vLane}')
    A(f'v_lshlrev_b32 v{vT1}, 4, v{vT1}')
    A(f'v_add_u32 v{vT1}, s45, v{vT1}')
    A(f'v_add_u32 v{vQ}, {WS_MOD+2*2304}, v{vT1}')
    A(f'v_add_u32 v{vI}, {WS_MOD+2*2304+1152}, v{vT1}')
    A(f'v_cmp_eq_u32 vcc, 1, v{vT0}'); A('s_nop 1'); A(f'v_cndmask_b32 v{vQ}, v{vQ}, v{vI}, vcc')
    A(f'v_add_u32 v{vI}, {WS_AE1024}, v{vT1}')
    A(f'v_cmp_eq_u32 vcc, 2, v{vT0}'); A('s_nop 1'); A(f'v_cndmask_b32 v{vQ}, v{vQ}, v{vI}, vcc')
    A(f'v_mov_b32 v{vI}, {WS_AE1024+1152}')
    A(f'v_cmp_eq_u32 vcc, 3, v{vT0}'); A('s_nop 1'); A(f'v_cndmask_b32 v{vQ}, v{vQ}, v{vI}, vcc')
    A(f's_mov_b32 m0, {L_V}'); A('s_nop 0')
    A(f'buffer_load_dwordx4 v{vQ}, s[16:19], 0 offen lds')
    A(f's_lshr_b32 s45, s45, 1')
    A(f's_sub_u32 s46, {1152-96}, s45')
    A(f'v_and_b32 v{vI}, 7, v{vLane}')
    A(f'v_lshlrev_b32 v{vI}, 4, v{vI}')
    A(f'v_add_u32 v{vJ}, s45, v{vI}')
    A(f'v_add_u32 v{vT1}, s46, v{vI}')
    A(f'v_and_b32 v{vQ}, 15, v{vLane}')
    A(f'v_cmp_gt_u32 vcc, 8, v{vQ}')
    A(f'v_mov_b32 v{vI}, 576')
    A('s_nop 0')
    A(f'v_cndmask_b32 v{vJ}, v{vT1}, v{vJ}, vcc')
    A(f'v_cmp_eq_u32 vcc, 15, v{vQ}')
    A('s_nop 1')
    A(f'v_cndmask_b32 v{vI}, v{vJ}, v{vI}, vcc')
    A(f's_lshl_b32 s47, s{sTT}, 4')
    A(f'v_add_u32 v{vT0}, s47, v{vT0}')
    A(f'v_cmp_eq_u32 s[48:49], 0, v{vT0}')
    A(f'v_mul_u32_u24 v{vT0}, 1152, v{vT0}')
    A(f'v_add_u32 v{vQ}, v{vI}, v{vT0}')
    A(f'v_sub_u32 v{vJ}, v{vI}, v{vT0}')
    A(f'v_add_u32 v{vJ}, {1012*1152}, v{vJ}')
    for grp,(base,pos) in enumerate(((0,True),(1024,False),(2048,False),(1024,True))):
        for j in range(4):
            A(f's_mov_b32 m0, {L_XS+4096*grp+1024*j}')
            if pos: so=(base+4*j)*1152; vr=vQ
            else: so=(base-1024+12-4*j)*1152; vr=vJ
            if grp>=2 and j==0:
                A(f'v_add_u32 v{vT1}, {so}, v{vr}')
                A(f'v_add_u32 v{vT0}, {(512 if grp==2 else 1536)*1152}, v{vI}')
                A(f'v_cndmask_b32 v{vT1}, v{vT1}, v{vT0}, s[48:49]')
                A(f'buffer_load_dwordx4 v{vT1}, s[8:11], 0 offen lds')
            else:
                A(f's_mov_b32 s46, {so}')
                A(f'buffer_load_dwordx4 v{vr}, s[8:11], s46 offen lds')
    A(f's_branch {Lepi}')
    A(f'{Lnt}:')
    A(f'v_and_b32 v{vT0}, 15, v{vLane}')
    A(f'v_lshrrev_b32 v{vT1}, 4, v{vLane}')
    A(f'v_xor_b32 v{vT1}, v{vT1}, v{vT0}')
    A(f'v_lshlrev_b32 v{vT0}, 11, v{vT0}')
    A(f'v_add_u32 v{vT0}, s42, v{vT0}')
    for kl in range(4):
        A(f'v_xor_b32 v{vBa+kl}, {4*kl}, v{vT1}')
        A(f'v_lshl_add_u32 v{vBa+kl}, v{vBa+kl}, 4, v{vT0}')
    A(f's_waitcnt vmcnt({NPRE})')
    A(f's_cmp_lt_u32 s{sW}, s40')
    A(f's_cbranch_scc1 {Lj}')
    A('s_waitcnt vmcnt(0)')
    A(f'{Lj}:')
    A.stamp(1)
    A('s_barrier')
    A.stamp(2)
    A(f's_cmp_ge_u32 s{sW}, s40')
    A(f's_cbranch_scc1 {Lepi}')
    Lne=A.label('k3_ne'); Led=A.label('k3_ed')
    vB5=vD0; B5=GA
    def bread(ks):
        A(f'ds_read_b128 {v(BR+8*(ks&3),4)}, v{vBa+(ks&3)} offset:{(ks>>2)*256}')
    def bread5(ks): A(f'ds_read_b128 {v(B5+4*(ks&3),4)}, v{vB5} offset:{ks*64}')
    def loop(edge):
        n=2 if edge else 1
        for ks in range(3):
            bread(ks)
            if edge: bread5(ks)
        issued=NPRE
        for ks in range(32):
            if ks+3<32:
                bread(ks+3)
                if edge: bread5(ks+3)
            for _ in range(2):
                if issued<32: aload(issued); issued+=1
            A(f's_waitcnt lgkmcnt({n*min(3,31-ks)})')
            b=BR+8*(ks&3)
            for p in range(4): A(f'v_xor_b32 v{b+4+p}, s41, v{b+p}')
            A(f's_waitcnt vmcnt({issued-1-ks})')
            c0='0' if ks==0 else v(ACC,4); c1='0' if ks==0 else v(ACC+4,4); c2='0' if ks==0 else v(ACC+8,4)
            A(f'v_mfma_f32_16x16x32_bf16 {v(ACC,4)}, {v(AF+4*ks,4)}, {v(b,4)}, {c0}')
            A(f'v_mfma_f32_16x16x32_bf16 {v(ACC+4,4)}, {v(AF+4*ks,4)}, {v(b+4,4)}, {c1}')
            if edge: A(f'v_mfma_f32_16x16x32_bf16 {v(ACC+8,4)}, {v(AF+4*ks,4)}, {v(B5+4*(ks&3),4)}, {c2}')
    A(f's_cmp_eq_u32 s{sTT}, 0')
    A(f's_cbranch_scc1 {Led}')
    loop(False)
    A(f's_branch {Lne}')
    A(f'{Led}:')
    A(f'v_lshrrev_b32 v{vB5}, 4, v{vLane}')
    A(f'v_lshlrev_b32 v{vB5}, 4, v{vB5}')
    A(f's_lshr_b32 s42, s42, 4')
    A(f's_add_u32 s42, s42, {L_C5}')
    A(f'v_add_u32 v{vB5}, s42, v{vB5}')
    loop(True)
    A(f'{Lne}:')
    A.stamp(3)
    A(f's_mul_i32 s46, s{sW}, 3072')
    A(f's_add_u32 s46, s46, {L_X}')
    A(f'v_add_u32 v{vT0}, s46, v{vL16}')
    A('s_nop 7')
    for t in range(3):
        A(f'ds_write_b128 v{vT0}, {v(ACC+4*t,4)} offset:{1024*t}')
    A(f'{Lepi}:')
    A(f'v_and_b32 v{vSl}, 31, v0')
    A(f'v_lshrrev_b32 v{vEc}, 5, v0')
    A(f'v_cmp_lt_u32 vcc, 5, v{vEc}')
    A(f'v_subrev_u32 v{vT0}, 6, v{vEc}')
    A('s_mov_b64 s[50:51], vcc')
    A(f'v_cndmask_b32 v{vEc}, v{vEc}, v{vT0}, vcc')
    A(f'v_and_b32 v{vT0}, 15, v{vSl}')
    A(f's_lshl_b32 s38, s{sTT}, 4')
    A(f'v_add_u32 v{vT0}, s38, v{vT0}')
    A(f'v_cmp_eq_u32 s[52:53], 0, v{vT0}')
    A(f'v_sub_u32 v{vT1}, 1024, v{vT0}')
    A(f'v_cmp_lt_u32 s[54:55], 15, v{vSl}')
    A('s_and_b64 s[52:53], s[52:53], s[50:51]')
    A('s_nop 0')
    A(f'v_cndmask_b32 v{vTs}, v{vT0}, v{vT1}, s[54:55]')
    A(f'v_sub_u32 v{vT1}, 2048, v{vTs}')
    A(f'v_cndmask_b32 v{vR1}, v{vTs}, v{vT1}, s[50:51]')
    A(f'v_add_u32 v{vT1}, 512, v{vTs}')
    A(f'v_cndmask_b32 v{vR1}, v{vR1}, v{vT1}, s[52:53]')
    A(f's_mul_i32 s38, s{sET}, 48')
    A(f'v_lshl_add_u32 v{vE0}, v{vEc}, 3, s38')
    A(f'v_cmp_eq_u32 s[56:57], 0, v{vE0}')
    A(f'v_add_u32 v{vT0}, 32, v{vSl}')
    A(f'v_cndmask_b32 v{vT0}, v{vSl}, v{vT0}, s[50:51]')
    A(f'v_lshlrev_b32 v{vT0}, 8, v{vT0}')
    A(f'v_add_u32 v{vT0}, {L_XS}, v{vT0}')
    A(f'v_lshl_add_u32 v{vXo}, v{vEc}, 4, v{vT0}')
    A(f'v_lshlrev_b32 v{vT1}, 4, v{vEc}')
    A(f'v_sub_u32 v{vXo+1}, v{vT0}, v{vT1}')
    A(f'v_add_u32 v{vXo+1}, {13*16}, v{vXo+1}')
    A(f'v_add_u32 v{vXo+2}, 16, v{vXo+1}')
    A(f'v_add_u32 v{vT0}, {15*16}, v{vT0}')
    A(f'v_cndmask_b32 v{vXo+2}, v{vXo+2}, v{vT0}, s[56:57]')
    A(f'v_lshlrev_b32 v{vRs}, 5, v{vEc}')
    A(f'v_add_u32 v{vRs}, {L_V}, v{vRs}')
    vLa,vLe=BR,BR+1
    A(f'v_lshrrev_b32 v{vT0}, 4, v{vSl}')
    A(f'v_cndmask_b32 v{vT0}, v{vT0}, 2, s[52:53]')
    A(f'v_lshlrev_b32 v{vT0}, 10, v{vT0}')
    A(f'v_and_b32 v{vT1}, 15, v{vSl}')
    A(f'v_lshl_add_u32 v{vT0}, v{vT1}, 4, v{vT0}')
    A(f'v_add_u32 v{vLe}, {L_X+6*3072}, v{vT0}')
    A(f'v_lshrrev_b32 v{vT1}, 1, v{vEc}')
    A(f'v_mul_u32_u24 v{vT1}, 3072, v{vT1}')
    A(f'v_add_u32 v{vLa}, v{vT0}, v{vT1}')
    A(f'v_and_b32 v{vT1}, 1, v{vEc}')
    A(f'v_lshl_add_u32 v{vLa}, v{vT1}, 9, v{vLa}')
    A(f'v_add_u32 v{vLa}, {L_X}, v{vLa}')
    A('s_waitcnt vmcnt(0) lgkmcnt(0)')
    A('s_barrier')
    A.stamp(4)
    A(f's_cmp_ge_u32 s{sW}, 6')
    A(f's_cbranch_scc1 {Lend}')
    P=AF; Q=AF+8; O1=AF+16; O2=AF+24; U=AF+32; D=AF+48; vSg=BR+2; vQs=BR+3; PE=BR+4
    for hh in range(2): A(f'ds_read_b128 {v(P+4*hh,4)}, v{vLa} offset:{256*hh}')
    for hh in range(2): A(f'ds_read_b128 {v(Q+4*hh,4)}, v{vLa} offset:{9216+256*hh}')
    A(f'ds_read_b32 v{PE}, v{vLe}')
    for hh in range(2): A(f'ds_read_b128 {v(AE4+4*hh,4)}, v{vRs} offset:{512+16*hh}')
    A(f'v_mov_b32 v{vT1}, {L_V+768}')
    A(f'ds_read_b32 v{AE4+8}, v{vT1}')
    for hh in range(2):
        A(f'ds_read_b128 {v(GA+4*hh,4)}, v{vRs} offset:{16*hh}')
        A(f'ds_read_b128 {v(GA+8+4*hh,4)}, v{vRs} offset:{256+16*hh}')
    A(f'ds_read_b128 {v(X,4)}, v{vXo}')
    A(f'ds_read_b128 {v(X+4,4)}, v{vXo+1}')
    A(f'ds_read_u16 v{X+8}, v{vXo+2}')
    A(f'v_lshlrev_b32 v{vSg}, 31, v{vTs}')
    A('s_andn2_b64 s[58:59], s[52:53], s[54:55]')
    A('s_andn2_b64 s[58:59], s[50:51], s[58:59]')
    A(f'v_bfrev_b32 v{vT0}, 1')
    A(f'v_cndmask_b32 v{vQs}, 0, v{vT0}, s[58:59]')
    A('s_waitcnt lgkmcnt(7)')
    for i in range(9): A(f'v_xor_b32 v{AE4+i}, v{vSg}, v{AE4+i}')
    for i in range(8):
        A(f'v_add_f32 v{P+i}, v{P+i}, v{AE4+i}')
        A(f'v_xor_b32 v{Q+i}, v{vQs}, v{Q+i}')
    A(f'v_add_f32 v{PE}, v{PE}, v{AE4+8}')
    for i in range(8):
        A(f'v_sub_f32 v{O1+i}, v{P+i}, v{Q+i}')
        A(f'v_add_f32 v{O2+i}, v{P+i}, v{Q+i}')
    A(f'v_cndmask_b32 v{O2}, v{O2}, v{PE}, s[56:57]')
    def finish(O, ga, xs, dst):
        for i,(r,h) in enumerate(xs):
            if h=='lo': A(f'v_lshlrev_b32 v{U+8+i}, 16, v{r}')
            else: A(f'v_and_b32 v{U+8+i}, 0xffff0000, v{r}')
        for i in range(8): A(f'v_fmac_f32 v{U+8+i}, v{O+i}, v{ga+i}')
        for p in range(4): A(f'v_cvt_pk_bf16_f32 v{dst+p}, v{U+8+2*p}, v{U+8+2*p+1}')
    xdir=[(X+(i>>1),'lo' if i%2==0 else 'hi') for i in range(8)]
    xmir=[(X+8,'lo')]+[(X+4+((8-q)>>1),'lo' if (8-q)%2==0 else 'hi') for q in range(1,8)]
    vDd=vXo
    A('s_waitcnt lgkmcnt(0)')
    A(f'v_lshlrev_b32 v{vT0}, 5, v{vE0}')
    A(f'v_lshrrev_b32 v{vT1}, 4, v{vR1}')
    A(f'v_mul_u32_u24 v{vDd}, {18*1024}, v{vT1}')
    A(f'v_and_b32 v{vT1}, 15, v{vR1}')
    A(f'v_lshl_add_u32 v{vDd}, v{vT1}, 4, v{vDd}')
    A(f'v_add_u32 v{vDd}, v{vDd}, v{vT0}')
    A(f's_mov_b32 s38, {WS_X2}')
    A(f's_mov_b32 s39, {WS_X2+9*1024}')
    finish(O1,GA,xdir,D);     A(f'buffer_store_dwordx4 {v(D,4)}, v{vDd}, s[16:19], s38 offen {sf}')
    finish(O2,GA+8,xmir,D+4); A(f'buffer_store_dwordx4 {v(D+4,4)}, v{vDd}, s[16:19], s39 offen {sf}')
    A.stamp(5)
    ST=U
    A('s_mov_b32 s38, 0x3f803f80')
    for i in range(4): A(f'v_mov_b32 v{ST+i}, 0')
    for i in range(8):
        A(f'v_dot2_f32_bf16 v{ST+2*(i&1)}, v{D+i}, s38, v{ST+2*(i&1)}')
        A(f'v_dot2_f32_bf16 v{ST+2*(i&1)+1}, v{D+i}, v{D+i}, v{ST+2*(i&1)+1}')
    A(f'v_lshlrev_b32 v{vT0}, 3, v0')
    A(f'v_add_u32 v{vT0}, {L_ST}, v{vT0}')
    A('s_nop 1')
    A(f'v_pk_add_f32 {v(ST,2)}, {v(ST,2)}, {v(ST+2,2)}')
    A(f'ds_write_b64 v{vT0}, {v(ST,2)}')
    A('s_waitcnt lgkmcnt(0)')
    A('s_barrier')
    A(f's_cmp_eq_u32 s{sW}, 3'); A('s_cselect_b32 s38, 0, s30'); A('s_cmp_lg_u32 s38, 0')
    A(f's_cbranch_scc1 {Lend}')
    A('s_mov_b32 exec_hi, 0')
    for ec in range(6):
        A(f'ds_read_b64 {v(U+2*ec,2)}, v{vT0} offset:{256*ec}')
    A(f's_lshl_b32 s38, s{sET}, 14')
    A(f's_add_u32 s38, s38, {WS_STAT}')
    A(f'v_lshlrev_b32 v{vT1}, 3, v{vR1}')
    A('s_waitcnt lgkmcnt(0)')
    for ec in range(1,6):
        A(f'v_pk_add_f32 {v(U,2)}, {v(U,2)}, {v(U+2*ec,2)}')
    A(f'buffer_store_dwordx2 {v(U,2)}, v{vT1}, s[16:19], s38 offen {sf2}')
    A.endpgm()
    if prefetch:
        A(f'{Lpf}:')
        A(f's_sub_u32 s32, s2, {NW}'); A('s_lshr_b32 s32, s32, 3')
        A('v_lshlrev_b32 v1, 7, v0')
        A(f'v_mov_b32 v3, 0x{OOB:x}')
        A('s_and_b32 s33, s2, 1'); A(f's_mul_i32 s33, s33, {9*32768}')
        A('v_lshl_add_u32 v6, v0, 3, s32')
        A('v_lshlrev_b32 v7, 7, v6')
        A(f'v_add_u32 v8, {WS_BO-WS_AE-2304*128}, v7')
        A('v_cmp_gt_u32 vcc, 2304, v6'); A('s_nop 1'); A('v_cndmask_b32 v8, v8, v7, vcc')
        A(f's_add_u32 s34, s33, {WS_AE}')
        A(f'v_add_u32 v9, {WS_BO+1792*128}, v7'); A('v_add_u32 v9, s33, v9')
        A(f'v_add_u32 v10, {WS_AE+18*32768-512*128}, v7')
        A('v_cmp_gt_u32 vcc, 512, v6'); A('s_nop 1'); A('v_cndmask_b32 v9, v10, v9, vcc')
        A('v_cmp_gt_u32 vcc, 768, v6'); A('s_nop 1'); A('v_cndmask_b32 v9, v3, v9, vcc')
        A('s_waitcnt lgkmcnt(0)')
        A('buffer_load_dword v11, v8, s[16:19], s34 offen')
        A('buffer_load_dword v12, v9, s[16:19], 0 offen')
        A('s_and_b32 s31, s2, 7'); A(f's_mul_i32 s31, s31, {576*1152}')
        A(f's_mul_i32 s32, s32, {648*128}')
        A('s_add_u32 s31, s31, s32')
        A('v_cmp_gt_u32 vcc, 136, v0')
        A(f'v_add_u32 v2, {512*128}, v1')
        A('s_nop 0')
        A('v_cndmask_b32 v2, v3, v2, vcc')
        if w2pf:
            A('buffer_load_dword v4, v1, s[24:27], s31 offen')
            A('buffer_load_dword v5, v2, s[24:27], s31 offen')
        A('s_waitcnt vmcnt(0)')
    A(f'{Lend}:')
    A.endpgm()
    A.end(name, 232, 72)
```

```python
from asmlib import *
from gen1 import *
from gen4 import Cnt

WS_CNT=0x0050000
OOB=0x40000000

def out_block_pre(A, R, sU, sBeta, sMT, vLane, tag):
    vO,vA,vB,vN=R,R+1,R+2,R+3
    Lm=A.label('ob_m'); Lj=A.label('ob_j')
    A(f'v_lshrrev_b32 v{vN}, 4, v{vLane}')
    A(f's_lshl_b32 s54, s{sU}, 2')
    A(f'v_add_u32 v{vN}, s54, v{vN}')
    A(f's_lshl_b32 s55, s{sMT}, 1'); A(f's_add_u32 s55, s55, s{sBeta}')
    A(f's_mul_i32 s56, s55, {36*1024}'); A(f's_add_u32 s56, s56, {WS_X2}'); A(f's_add_u32 s57, s56, {18*1024}')
    A(f'v_lshlrev_b32 v{vA}, 4, v{vN}')
    A(f's_mov_b32 s54, {WS_MOD+5*576*4}')
    A(f'buffer_load_dwordx4 {v(R+4,4)}, v{vA}, s[16:19], s54 offen')
    A('s_lshl_b32 s55, s55, 5')
    A(f'v_and_b32 v{vB}, 15, v{vLane}')
    A(f'v_add_u32 v{vO}, s55, v{vB}')
    A(f'v_mul_u32_u24 v{vO}, 1152, v{vO}')
    A(f'v_lshl_add_u32 v{vO}, v{vN}, 3, v{vO}')
    A(f'v_lshlrev_b32 v{vB}, 4, v{vB}')
    def quad(dst,k4,t):
        A(f'v_lshrrev_b32 v{t}, 1, v{k4}'); A(f'v_lshl_add_u32 v{dst}, v{t}, 8, v{vB}')
        A(f'v_and_b32 v{t}, 1, v{k4}'); A(f'v_lshl_add_u32 v{dst}, v{t}, 3, v{dst}')
    A(f's_cmp_lt_u32 s{sU}, 18')
    A(f's_cbranch_scc1 {Lj}')
    A(f'v_sub_u32 v{vN}, 216, v{vN}')
    A(f'v_cmp_eq_u32 vcc, 144, v{vN}'); A(f'v_mov_b32 v{R+12}, 72'); A('s_nop 0')
    A(f'v_cndmask_b32 v{R+12}, v{vN}, v{R+12}, vcc')
    quad(vA,R+12,R+13)
    A(f'buffer_load_ushort v{R+12}, v{vA}, s[16:19], s56 offen')
    A(f'buffer_load_ushort v{R+13}, v{vA}, s[16:19], s57 offen')
    A(f'v_add_u32 v{vN}, -1, v{vN}')
    A(f'{Lj}:')
    quad(vA,vN,R+14)
    A(f'buffer_load_dwordx2 {v(R+8,2)}, v{vA}, s[16:19], s56 offen')
    A(f'buffer_load_dwordx2 {v(R+10,2)}, v{vA}, s[16:19], s57 offen')

def out_block_post(A, R, sU, AC, T):
    Lm=A.label('op_m'); Lj=A.label('op_j')
    XR=R+8; XE=R+12
    A(f's_cmp_ge_u32 s{sU}, 18')
    A(f's_cbranch_scc1 {Lm}')
    for p in range(4):
        A(f'v_lshlrev_b32 v{T+2*p}, 16, v{XR+p}'); A(f'v_and_b32 v{T+2*p+1}, 0xffff0000, v{XR+p}')
    A(f's_branch {Lj}')
    A(f'{Lm}:')
    for h in range(2):
        A(f'v_lshlrev_b32 v{T+4*h}, 16, v{XE+h}')
        A(f'v_and_b32 v{T+4*h+1}, 0xffff0000, v{XR+2*h+1}')
        A(f'v_lshlrev_b32 v{T+4*h+2}, 16, v{XR+2*h+1}')
        A(f'v_and_b32 v{T+4*h+3}, 0xffff0000, v{XR+2*h}')
    A(f'{Lj}:')
    for i in range(8): A(f'v_fmac_f32 v{T+i}, v{AC+i}, v{R+4+(i&3)}')
    for p in range(4): A(f'v_cvt_pk_bf16_f32 v{AC+p}, v{T+2*p}, v{T+2*p+1}')
    A(f's_movk_i32 s54, {16*1152}')
    A(f'buffer_store_dwordx2 {v(AC,2)}, v{R}, s[64:67], 0 offen')
    A(f'buffer_store_dwordx2 {v(AC+2,2)}, v{R}, s[64:67], s54 offen')

def add_partial(A, AC, P, T, first=False):
    for p in range(4):
        if first:
            A(f'v_lshlrev_b32 v{AC+2*p}, 16, v{P+p}'); A(f'v_and_b32 v{AC+2*p+1}, 0xffff0000, v{P+p}')
        else:
            A(f'v_lshlrev_b32 v{T}, 16, v{P+p}'); A(f'v_and_b32 v{T+1}, 0xffff0000, v{P+p}')
            A(f'v_add_f32 v{AC+2*p}, v{AC+2*p}, v{T}'); A(f'v_add_f32 v{AC+2*p+1}, v{AC+2*p+1}, v{T+1}')

def gen_k4g(A, name='k4_mlp_kernel', store_flags='sc1', prewarm=False, prio=2, XB=(6,6,6), XI=(1,3), recon=True, dma_on=True, st_on=True, SIG=18, NEARLY=6, NE=6, SPR=3, DPR=None, ST0=14, ST1=23, NPW=4, STB=None):
    NW=256; TILE=36864; L_HB=4*TILE; L_GS=L_HB+8192
    A.launch(name, NW, 512, L_GS+5120)
    A.begin(name)
    Lend=A.label('k4_end'); Lhelp=A.label('k4_help'); Lnorm=A.label('k4_norm')
    load_srds(A,[('ws',16),('w1',20),('w2',24),('out',64)])
    A(f's_cmp_ge_u32 s2, {NW}')
    A(f's_cbranch_scc1 {Lend}')
    sFC,sMT,sW,sM0,sDst=28,29,30,32,33
    vL16,vT0,vT1,vT2=1,2,3,4
    A(f's_and_b32 s{sFC}, s2, 7')
    A(f's_lshr_b32 s{sMT}, s2, 3')
    A(f'v_lshrrev_b32 v{vT0}, 6, v0')
    A(f'v_and_b32 v{vT1}, 63, v0')
    A(f'v_readfirstlane_b32 s{sW}, v{vT0}')
    A(f'v_lshlrev_b32 v{vL16}, 4, v{vT1}')
    A('s_nop 1')
    A(f's_cmp_ge_u32 s{sW}, 6')
    A(f's_cbranch_scc1 {Lnorm}')
    A(f's_cmp_ge_u32 s{sW}, 4')
    A(f's_cbranch_scc1 {Lhelp}')
    lg=Cnt('lgkm',15)
    def lgwait(i):
        w=lg.need(i)
        if w is not None: A(f's_waitcnt lgkmcnt({w})')
    def lgpre(k):
        if lg.n-lg.done+k>15: lgwait(lg.n-(15-k))
    vRd=5; vR2=9; vHBr=11
    NA=9
    FR=12
    BF=48
    OUT=80
    ACC=88
    acc=lambda q,b: ACC+16*q+4*b
    sCnt,sDel=46,47
    if prio==1: A('s_setprio 1')
    A(f'v_lshrrev_b32 v{vT0}, 2, v{vT1}')
    A(f'v_bfe_u32 v{vT2}, v{vT1}, 3, 2')
    A(f'v_and_b32 v{vHBr}, 3, v{vT1}')
    A(f'v_lshlrev_b32 v{vHBr}, 3, v{vHBr}')
    A(f'v_lshl_add_u32 v{vR2+1}, v{vT0}, 7, v{vHBr}')
    A(f'v_mul_u32_u24 v{vT0}, 1152, v{vT0}')
    A(f'v_add_u32 v{vT0}, v{vT0}, v{vHBr}')
    A(f's_mul_i32 s36, s{sW}, 9')
    for qq in range(4):
        A(f's_add_u32 s37, s36, {qq}')
        A(f'v_xor_b32 v{vRd+qq}, s37, v{vT2}')
        A(f'v_lshl_add_u32 v{vRd+qq}, v{vRd+qq}, 5, v{vT0}')
    A(f's_and_b32 s37, s{sW}, 2')
    A(f'v_add_u32 v{vR2+1}, {2*TILE}, v{vR2+1}')
    A(f'v_xor_b32 v{vT0}, s37, v{vT2}')
    A(f'v_lshl_add_u32 v{vR2}, v{vT0}, 5, v{vR2+1}')
    A(f'v_xor_b32 v{vT0}, 1, v{vT0}')
    A(f'v_lshl_add_u32 v{vR2+1}, v{vT0}, 5, v{vR2+1}')
    A(f'v_add_u32 v{vHBr}, {L_HB}, v{vL16}')
    A(f's_lshl_b32 s37, s{sFC}, 5')
    A(f's_add_u32 s37, s37, s{sMT}')
    A(f's_mul_i32 s48, s37, {72*1024}')
    A(f's_and_b32 s37, s{sW}, 2')
    A('s_lshl_b32 s37, s37, 11')
    A('s_add_u32 s48, s48, s37')
    A(f's_and_b32 s37, s{sW}, 1')
    A('s_lshl_b32 s37, s37, 10')
    A('s_add_u32 s48, s48, s37')
    A(f's_add_u32 s48, s48, {WS_PART}')
    A(f's_add_u32 s{sDst}, s48, {8*8192}')
    A(f's_mul_i32 s50, s{sMT}, {9*128}')
    A(f's_add_u32 s50, s50, {WS_CNT}')
    A(f's_mov_b32 s51, s{sFC}')
    vAt,vOne,vAtB=232,233,234
    A(f'v_add_u32 v{vAtB}, s{sFC}, v{vT1}')
    A(f'v_and_b32 v{vAtB}, 7, v{vAtB}')
    A(f'v_lshlrev_b32 v{vAtB}, 7, v{vAtB}')
    A(f'v_lshl_add_u32 v{vAtB}, v{vT1}, 2, v{vAtB}')
    A(f's_lshl_b32 s52, s{sFC}, 2'); A('s_add_u32 s52, s52, 1024')
    A(f'v_cmp_eq_u32 vcc, 0, v{vT1}')
    A(f'v_mov_b32 v{vAt}, s52')
    A(f'v_mov_b32 v{vOne}, 0x{OOB:x}')
    A(f'v_cndmask_b32 v{vAtB}, v{vAtB}, v{vAt}, vcc')
    A(f'v_cmp_gt_u32 vcc, {NE}, v{vT1}'); A('s_nop 1')
    A(f'v_cndmask_b32 v{vAt}, v{vOne}, v{vAtB}, vcc')
    A(f'v_cndmask_b32 v{vAtB}, v{vAtB}, v{vOne}, vcc')
    A(f'v_cmp_gt_u32 vcc, 8, v{vT1}'); A('s_nop 1')
    A(f'v_cndmask_b32 v{vAtB}, v{vOne}, v{vAtB}, vcc')
    A(f'v_mov_b32 v{vOne}, 1')
    A('s_lshl_b32 s44, s37, 1')
    A('s_lshr_b32 s37, s36, 1'); A('s_lshl_b32 s37, s37, 12'); A('s_and_b32 s40, s36, 1'); A('s_lshl_b32 s40, s40, 3'); A('s_add_u32 s42, s37, s40')
    A('s_add_u32 s36, s36, 1')
    A('s_lshr_b32 s37, s36, 1'); A('s_lshl_b32 s37, s37, 12'); A('s_and_b32 s40, s36, 1'); A('s_lshl_b32 s40, s40, 3'); A('s_add_u32 s43, s37, s40')
    for r in range(144): A(f'v_mov_b32 v{ACC+r}, 0')
    A(f's_mov_b32 s{sCnt}, 0')
    A(f's_mov_b32 s{sDel}, {2*TILE}')
    A('s_waitcnt lgkmcnt(0)')
    if prewarm:
        A(f's_mul_i32 s39, s{sFC}, {576*1152}')
        A(f'v_min_u32 v{vT2}, 161, v0')
        A(f'v_lshlrev_b32 v{vT2}, 7, v{vT2}')
        A(f's_mul_i32 s40, s{sMT}, {18*1152}')
        A('s_add_u32 s40, s40, s39')
    rd_id={}; b_id={}; h_id={}
    def a_half(ph,t,q,h):
        r=FR+4*(q%NA)+2*h
        lgpre(1)
        toff = TILE if t==1 else 0
        if ph==1: A(f'ds_read_b64_tr_b16 {v(r,2)}, v{vRd+(q&3)} offset:{toff+128*(q>>2)+16*1152*h}')
        else:
            k,z=divmod(q,2)
            if t==1: A(f'ds_read_b64_tr_b16 {v(r,2)}, v{vRd+z} offset:{4096*k+2048*h}')
            else: A(f'ds_read_b64_tr_b16 {v(r,2)}, v{vR2+z} offset:{4096*k+2048*h}')
        rd_id[(t&1,q)]=lg.issue()
    def b_one(par,b):
        lgpre(1)
        A(f'ds_read_b128 {v(BF+16*par+4*b,4)}, v{vHBr} offset:{par*4096+1024*b}'); b_id[par]=lg.issue()
    H1=lambda k2,b: ACC+8*k2+4*b
    def barrier():
        lgwait(lg.n); A('s_barrier')
    AC2=BF; TM2=BF+16
    def cvt_ops(q,b):
        r=acc(q,b)
        return [lambda: A(f'v_cvt_pk_bf16_f32 v{r}, v{r}, v{r+1}'), lambda: A(f'v_cvt_pk_bf16_f32 v{r+1}, v{r+2}, v{r+3}'),
                lambda: A(f'v_pk_max_i16 v{r}, v{r}, 0'), lambda: A(f'v_pk_max_i16 v{r+1}, v{r+1}, 0')]
    class Sl:
        def __init__(s): s.d={}
        def add(s,m,f): s.d.setdefault(m,[]).append(f)
        def spread(s,ops,m0,m1):
            n=len(ops)
            for x,o in enumerate(ops): s.add(m0+(x*(m1-m0))//max(n,1), o)
        def rd2(s,m,ph,t,q):
            s.add(m,lambda: a_half(ph,t,q,0)); s.add(m+1,lambda: a_half(ph,t,q,1))
    TAIL1=[(20,'a',0,0),(21,'a',0,1),(22,'b',0,0),(23,'b',1,0),(24,'a',1,0),(25,'a',1,1),(26,'b',2,0),(27,'b',3,0),
           (28,'a',2,0),(29,'a',2,1),(30,'a',3,0),(31,'a',3,1),(32,'a',4,0),(33,'a',4,1)]
    G2=[26,26,27,27,28,28,29,30,30,31,32,33,34,35]
    def h_write(q,b):
        if lg.n-lg.done>=15: lgwait(lg.n-8)
        A(f'ds_write_b64 v{vT0 if q%2==0 else vT2}, {v(acc(q,b),2)} offset:{(q>>1)*4096+1024*b}'); lg.issue()
    def body1(last):
        S=Sl()
        for t in range(2):
            M=36*t
            for s_ in range(4): S.rd2(M+4*s_,1,t,s_+5)
            if t==1 and not last:
                for x in range(4): S.add(M+15+x, lambda x=x: A(f'v_add_u32 v{vRd+x}, s{sDel}, v{vRd+x}'))
            S.add(M+19, barrier)
            if t==1 and last:
                for f,m in enumerate((20,22,24,26,28,30,33)): S.rd2(M+m,2,0,f)
                for q in range(6):
                    ops=[]
                    for b in range(4): ops+=cvt_ops(q,b)
                    S.spread(ops, M+4*q+12, M+4*q+16)
                S.add(M+14, lambda: A(f'v_add_u32 v{vT0}, s42, v{vL16}'))
                S.add(M+15, lambda: A(f'v_add_u32 v{vT2}, s43, v{vL16}'))
                S.spread([lambda q=q,b=b: h_write(q,b) for q in range(NPW) for b in range(4)], M+20, M+36)
            else:
                for (m,kind,x,h) in TAIL1:
                    if kind=='a': S.add(M+m, lambda t=t,x=x,h=h: a_half(1,t+1,x,h))
                    else: S.add(M+m, lambda t=t,x=x: b_one((t+1)&1,x))
        if not last:
            S.add(70, lambda: A(f's_sub_u32 s{sDel}, 0, s{sDel}'))
            S.add(70, lambda: A(f's_add_u32 s{sCnt}, s{sCnt}, 1'))
            S.add(71, lambda: A(f's_cmp_lt_u32 s{sCnt}, 8'))
        for m in range(72):
            t,mm=divmod(m,36); q,b=divmod(mm,4)
            if b==0:
                lgwait(rd_id[(t,q)])
                if q==0: lgwait(b_id[t])
            A(f'v_mfma_f32_16x16x32_bf16 {v(acc(q,b),4)}, {v(FR+4*q,4)}, {v(BF+16*t+4*b,4)}, {v(acc(q,b),4)}')
            for f in S.d.get(m,[]): f()
    def st_ops():
        ops=[]
        for z in range(2):
            o=OUT+4*z
            for b in range(2):
                r=TM2+8*z+4*b
                ops.append(lambda r=r,o=o,b=b: A(f'v_cvt_pk_bf16_f32 v{o+2*b}, v{r}, v{r+1}'))
                ops.append(lambda r=r,o=o,b=b: A(f'v_cvt_pk_bf16_f32 v{o+2*b+1}, v{r+2}, v{r+3}'))
            ops.append(lambda z=z,o=o: A(f'buffer_store_dwordx4 {v(o,4)}, v{vL16}, s[16:19], s{sDst} offen offset:{2048*z} {store_flags}'))
        return ops
    def early():
        L=A.label('k4_ne')
        A(f's_cmp_lg_u32 s{sCnt}, 7'); A(f's_cbranch_scc1 {L}')
        A('s_waitcnt vmcnt(2)')
        A(f'buffer_atomic_add v{vOne}, v{vAt}, s[16:19], s50 offen')
        A(f'{L}:')
    def next_ops():
        def nxt():
            A('s_add_u32 s51, s51, 1'); A('s_and_b32 s51, s51, 7')
        def nxt2():
            A(f's_lshl_b32 s{sDst}, s51, 13'); A(f's_add_u32 s{sDst}, s{sDst}, s48')
        return [nxt,nxt2]
    def h_read(k2,b):
        lgpre(1)
        A(f'ds_read_b128 {v(H1(k2,b),4)}, v{vT0 if k2<9 else vT2} offset:{(k2%9)*4096+1024*b}'); h_id[(k2,b)]=lg.issue()
    def body2(first):
        S=Sl()
        for t in range(2):
            M=36*t
            for s_ in range(11): S.rd2(M+2*s_,2,t,s_+7)
            regs = vR2 if t==0 else vRd
            for x in range(2): S.add(M+22+x, lambda x=x,regs=regs: A(f'v_add_u32 v{regs+x}, s{sDel}, v{regs+x}'))
            if t==1 and not first:
                def cbar():
                    L=A.label('k4_nb')
                    lgwait(lg.n); A(f's_cbranch_scc1 {L}'); A('s_barrier'); A(f'{L}:')
                S.add(M+24, lambda: A(f's_cmp_eq_u32 s{sCnt}, 7'))
                S.add(M+25, cbar)
            else: S.add(M+25, barrier)
            seq=[(f,h) for f in range(7) for h in range(2)]
            for (f,h),g in zip(seq,G2): S.add(M+g, lambda t=t,f=f,h=h: a_half(2,t+1,f,h))
        if first:
            S.spread([lambda k2=k2,b=b: h_read(k2,b) for k2 in range(5,9) for b in range(2)], 0, 6)
            S.add(9, barrier)
            S.spread([lambda k2=k2,b=b: h_read(k2,b) for k2 in range(9,18) for b in range(2)], 10, 23)
        else:
            so=st_ops()
            S.add(2, early)
            if STB:
                S.spread(so[:4]+so[5:9], 6, 22)
                S.add(STB[0], so[4]); S.add(STB[1], so[9])
            else:
                S.spread(so[:5], ST0-8, ST0+1); S.spread(so[5:], ST1-8, ST1+1)
            S.spread(next_ops(), 64, 68)
        S.add(70, lambda: A(f's_sub_u32 s{sDel}, 0, s{sDel}'))
        if not first:
            S.add(70, lambda: A(f's_add_u32 s{sCnt}, s{sCnt}, 1'))
            S.add(71, lambda: A(f's_cmp_lt_u32 s{sCnt}, 8'))
        for m in range(72):
            t,mm=divmod(m,36); s_,b=divmod(mm,2); k,z=divmod(s_,2); k2=9*t+k
            if b==0 and z==0: lgwait(rd_id[(t,s_+1)])
            if first: lgwait(h_id[(k2,b)])
            c='0' if k2==0 else v(AC2+8*z+4*b,4)
            d=v(TM2+8*z+4*b,4) if k2==17 else v(AC2+8*z+4*b,4)
            A(f'v_mfma_f32_16x16x32_bf16 {d}, {v(FR+4*(s_%NA),4)}, {v(H1(k2,b),4)}, {c}')
            for f in S.d.get(m,[]): f()
    A('s_barrier')
    A.stamp(1)
    for (m,kind,x,h) in TAIL1:
        if kind=='a': a_half(1,0,x,h)
        else: b_one(0,x)
    if prewarm: A(f'buffer_load_dword v{OUT}, v{vT2}, s[24:27], s40 offen')
    L1=A.label('k4_l1')
    A('.p2align 6')
    A(f'{L1}:')
    st0=(lg.n-lg.done)
    body1(False)
    assert lg.n-lg.done==st0,(lg.n-lg.done,st0)
    A(f's_cbranch_scc1 {L1}')
    body1(True)
    A.stamp(2)
    for q in range(NPW,6):
        for b in range(4): h_write(q,b)
    for q in range(6,9):
        for b in range(4):
            for o in cvt_ops(q,b): o()
        for b in range(4): h_write(q,b)
    A(f'v_add_u32 v{vT0}, s44, v{vL16}')
    A(f'v_add_u32 v{vT2}, {TILE}, v{vT0}')
    for z in range(2): A(f'v_add_u32 v{vRd+z}, {TILE}, v{vR2+z}')
    A(f's_mov_b32 s{sDel}, {-2*TILE}')
    A(f's_mov_b32 s{sCnt}, 0')
    barrier()
    for k2 in range(5):
        for b in range(2): h_read(k2,b)
    A.stamp(3)
    body2(True)
    L2=A.label('k4_l2')
    A('.p2align 6')
    A(f'{L2}:')
    st0=(lg.n-lg.done)
    body2(False)
    assert lg.n-lg.done==st0,(lg.n-lg.done,st0)
    A(f's_cbranch_scc1 {L2}')
    A('s_waitcnt vmcnt(0)')
    A(f'buffer_atomic_add v{vOne}, v{vAtB}, s[16:19], s50 offen')
    A.stamp(4)
    A(f's_lshl_b32 s52, s{sW}, 12')
    A(f'v_add_u32 v{vT0}, s52, v{vL16}')
    A('s_nop 4')
    for x in range(4): A(f'ds_write_b128 v{vT0}, {v(TM2+4*x,4)} offset:{1024*x}')
    def poll_setup():
        A(f'v_lshlrev_b32 v{vT0}, 2, v{vT1}')
        A(f'v_cmp_gt_u32 vcc, 8, v{vT1}')
        A(f'v_mov_b32 v{vT2}, 0x{OOB:x}')
        A(f's_mul_i32 s63, s{sMT}, {9*128}'); A(f's_add_u32 s63, s63, {WS_CNT}')
        A(f'v_cndmask_b32 v{vT0}, v{vT2}, v{vT0}, vcc')
        A('s_mov_b32 s69, 0')
    def poll(sAddr, mask):
        Lp=A.label('k4_poll'); Lpd=A.label('k4_polld')
        A(f's_and_b32 s60, s69, {mask}'); A(f's_cmp_eq_u32 s60, {mask}'); A(f's_cbranch_scc1 {Lpd}')
        A('s_mov_b32 s61, 0')
        A(f'{Lp}:')
        A(f'v_mov_b32 v{vT2}, 0')
        A(f'buffer_atomic_add v{vT2}, v{vT0}, s[16:19], s{sAddr} offen sc0')
        A('s_waitcnt vmcnt(0)')
        A(f'v_cmp_eq_u32 vcc, 4, v{vT2}')
        A('s_add_u32 s61, s61, 1')
        A('s_mov_b32 s69, vcc_lo')
        A(f's_and_b32 s60, s69, {mask}'); A(f's_cmp_eq_u32 s60, {mask}'); A(f's_cbranch_scc1 {Lpd}')
        A('s_cmp_lt_u32 s61, 0x40000'); A(f's_cbranch_scc1 {Lp}')
        A(f'{Lpd}:')
    A('s_waitcnt lgkmcnt(0)')
    Ln8=A.label('k4_n8')
    A(f's_cmp_lg_u32 s{sW}, 3'); A(f's_cbranch_scc1 {Ln8}')
    R8,P8,A8,T8=96,112,176,200
    poll_setup()
    A(f's_add_u32 s59, s63, {8*128}')
    poll(59,0xff)
    A(f's_mul_i32 s60, s{sMT}, {72*1024}'); A(f's_lshl_b32 s61, s{sFC}, 10'); A('s_add_u32 s60, s60, s61'); A(f's_add_u32 s60, s60, {WS_PART+64*1024}')
    for j in range(8):
        A(f'buffer_load_dwordx4 {v(P8+4*j,4)}, v{vL16}, s[16:19], s60 offen sc1')
        A(f's_add_u32 s60, s60, {32*72*1024}')
    A(f's_lshr_b32 s68, s{sFC}, 1'); A('s_add_u32 s68, s68, 32'); A(f's_and_b32 s59, s{sFC}, 1')
    out_block_pre(A,R8,68,59,sMT,vT1,'c')
    A('s_waitcnt vmcnt(0)')
    for j in range(8): add_partial(A,A8,P8+4*j,T8,first=(j==0))
    out_block_post(A,R8,68,A8,T8)
    A(f'{Ln8}:')
    A('s_barrier')
    A.endpgm()
    Lred=A.label('k4_red')
    def reduce_code():
        sH=62
        RB=[64,80,96]; PD=112; AC=[176,184,192]; TT=200; OW=208
        A(f'{Lred}:')
        poll_setup()
        A(f's_lshl_b32 s59, s{sFC}, 7'); A('s_add_u32 s59, s59, s63')
        poll(59,(1<<NE)-2)
        A(f's_lshl_b32 s52, s{sFC}, 2'); A(f's_and_b32 s53, s{sH}, 2'); A('s_add_u32 s52, s52, s53')
        A('s_add_u32 s58, s52, 1')
        A(f's_and_b32 s53, s{sH}, 1')
        A(f's_mul_i32 s68, s{sMT}, {72*1024}'); A(f's_lshl_b32 s60, s52, 11'); A('s_add_u32 s68, s68, s60')
        A('s_lshl_b32 s60, s53, 10'); A('s_add_u32 s68, s68, s60'); A(f's_add_u32 s68, s68, {WS_PART}')
        def ploads(ps):
            for p in ps:
                A(f's_sub_u32 s60, s{sFC}, {p}'); A('s_and_b32 s60, s60, 7'); A(f's_mul_i32 s60, s60, {32*72*1024}'); A('s_add_u32 s60, s60, s68')
                for z in range(2):
                    A(f'buffer_load_dwordx4 {v(PD+8*(p-1)+4*z,4)}, v{vL16}, s[16:19], s60 offen offset:{2048*z} sc1')
        A.stamp(3)
        ploads(range(1,NE))
        out_block_pre(A,RB[0],52,53,sMT,vT1,'a')
        out_block_pre(A,RB[1],58,53,sMT,vT1,'b')
        poll(59,0x100-(1<<NE))
        A.stamp(4)
        ploads(range(NE,8))
        for p in range(1,8):
            A(f's_waitcnt vmcnt({2*(7-max(p,NE-1))})')
            for z in range(2): add_partial(A,AC[z],PD+8*(p-1)+4*z,TT,first=(p==1))
        A.stamp(5)
        A(f's_lshl_b32 s60, s{sH}, 12')
        A(f'v_add_u32 v{vT0}, s60, v{vL16}')
        A('s_barrier')
        for x in range(4): A(f'ds_read_b128 {v(OW+4*x,4)}, v{vT0} offset:{1024*x}')
        A('s_waitcnt lgkmcnt(0)')
        for z in range(2):
            for i in range(8): A(f'v_add_f32 v{AC[z]+i}, v{AC[z]+i}, v{OW+8*z+i}')
        A.stamp(6)
        out_block_post(A,RB[0],52,AC[0],TT)
        out_block_post(A,RB[1],58,AC[1],PD)
        A.endpgm()
    A(f'{Lhelp}:')
    if DPR is not None: A(f's_setprio {DPR}')
    elif prio==2: A('s_setprio 2')
    VA,VB,VC=14,23,32
    sBuf,sS,sN,sSkip,sPh=44,45,46,47,48
    A(f's_mul_i32 s38, s{sFC}, 1152')
    A(f's_mul_i32 s39, s{sFC}, {576*1152}')
    A(f's_sub_u32 s{sW}, s{sW}, 4')
    A(f's_mul_i32 s{sM0}, s{sW}, 18432')
    A(f's_mov_b32 s{sBuf}, s{sM0}')
    A(f's_add_u32 s49, s{sM0}, {4*TILE}')
    A(f's_mul_i32 s37, s{sW}, {144*1152}')
    A('s_add_u32 s39, s39, s37')
    A(f's_mul_i32 s37, s{sW}, {4*9216}')
    A(f's_add_u32 s{sS}, s38, s37')
    A('s_sub_u32 s35, s38, s37')
    A(f's_sub_u32 s40, {565*9216}, s37')
    A(f's_cmp_eq_u32 s{sW}, 0')
    A(f's_cselect_b32 s41, {277*9216}, s40')
    A('s_movk_i32 s37, 911')
    for j in range(9):
        A(f'v_add_u32 v{vT0}, {64*j}, v{vT1}')
        A(f'v_mul_u32_u24 v{vT2}, s37, v{vT0}')
        A(f'v_lshrrev_b32 v{vT2}, 16, v{vT2}')
        A(f'v_mul_u32_u24 v{VB+j}, 72, v{vT2}')
        A(f'v_sub_u32 v{vT0}, v{vT0}, v{VB+j}')
        A(f'v_and_b32 v{VB+j}, 6, v{vT2}')
        A(f'v_xor_b32 v{vT0}, v{vT0}, v{VB+j}')
        A(f'v_lshlrev_b32 v{vT0}, 4, v{vT0}')
        A(f'v_and_b32 v{VA+j}, 4, v{vT2}')
        A(f'v_add_u32 v{VA+j}, v{VA+j}, v{vT2}')
        A(f'v_sub_u32 v{VB+j}, 11, v{VA+j}')
        A(f'v_mul_u32_u24 v{VA+j}, 9216, v{VA+j}')
        A(f'v_mul_u32_u24 v{VB+j}, 9216, v{VB+j}')
        A(f'v_add_u32 v{VA+j}, v{VA+j}, v{vT0}')
        A(f'v_add_u32 v{VB+j}, v{VB+j}, v{vT0}')
    A(f'v_lshrrev_b32 v{vT0}, 3, v{vT1}')
    A(f'v_and_b32 v{vT2}, 6, v{vT0}')
    A(f'v_and_b32 v{VC}, 7, v{vT1}')
    A(f'v_xor_b32 v{VC}, v{VC}, v{vT2}')
    A(f'v_lshlrev_b32 v{VC}, 4, v{VC}')
    A(f'v_mul_u32_u24 v{vT0}, 1152, v{vT0}')
    A(f'v_add_u32 v{VC}, v{VC}, v{vT0}')
    if A.prof: A('s_mov_b32 s72, 0')
    def rec():
        if A.prof and recon:
            A('s_memtime s[70:71]'); A('s_waitcnt lgkmcnt(0)')
            A(f'v_cmp_eq_u32 vcc, s72, v{vT1}'); A('v_mov_b32 v61, s70'); A('s_add_u32 s72, s72, 1'); A('v_cndmask_b32 v60, v60, v61, vcc')
    def bar(n):
        A(f's_waitcnt vmcnt({n})'); A('s_barrier'); rec()
    sNB=51
    def nb_ops():
        return [lambda: A(f's_add_u32 s{sNB}, s{sBuf}, {TILE}'), lambda: A(f's_cmp_ge_u32 s{sNB}, s49'), lambda: A(f's_cselect_b32 s{sNB}, s{sM0}, s{sNB}')]
    def issue1(V, step, jr, tail=None):
        for j in jr:
            A(f's_add_u32 m0, s{sBuf}, {1024*j}')
            if j==9: A(f's_add_u32 s{sS}, s{sS}, {step}')
            elif j==12:
                for o in nb_ops(): o()
            elif j==13: A(f's_add_u32 s{sN}, s{sN}, 1')
            elif j==17:
                A(f's_mov_b32 s{sBuf}, s{sNB}'); A(f's_mov_b32 s50, s{sS}'); A(f's_add_u32 s{sS}, s{sS}, {step}'); tail()
            else: A('s_nop 0')
            if dma_on: A(f'buffer_load_dwordx4 v{V+j%9}, s[20:23], s{50 if j==17 else sS} offen lds')
    A('s_waitcnt lgkmcnt(0)')
    Ld=A.label('k4_dd'); Lds=A.label('k4_dds')
    A(f's_mov_b32 s{sN}, 0')
    A(f's_branch {Lds}')
    A('.p2align 6')
    A(f'{Ld}:')
    bar(36)
    A(f'{Lds}:')
    issue1(VA,16*9216,range(18),lambda: (A(f's_sub_u32 s52, s{sN}, 3'), A('s_cmp_lt_u32 s52, 6')))
    A(f's_cbranch_scc1 {Ld}')
    A(f's_cmp_lt_u32 s{sN}, 3')
    A(f's_cbranch_scc1 {Lds}')
    for j in range(9):
        A(f'v_cmp_le_u32 vcc, {11*9216}, v{VB+j}')
        A(f'v_add_u32 v{VA+j}, s40, v{VB+j}')
        A(f'v_add_u32 v{vT2}, s41, v{VB+j}')
        A(f'v_cndmask_b32 v{VA+j}, v{VA+j}, v{vT2}, vcc')
    A(f's_mov_b32 s{sS}, s38')
    bar(36)
    issue1(VA,0,range(9))
    A(f's_add_u32 s{sS}, s35, {(853-32*9)*9216}')
    Lm=A.label('k4_dm'); Lms=A.label('k4_dms')
    A(f's_branch {Lms}')
    A('.p2align 6')
    A(f'{Lm}:')
    bar(36)
    issue1(VB,0,range(9))
    A(f'{Lms}:')
    issue1(VB,-16*9216,range(9,18),lambda: A(f's_cmp_lt_u32 s{sN}, 18'))
    A(f's_cbranch_scc1 {Lm}')
    Lw=A.label('k4_dw'); Lws=A.label('k4_dws'); Lx20=A.label('k4_x20'); Lx21=A.label('k4_x21'); Lfin=A.label('k4_dfin')
    A(f's_add_u32 s{sS}, s39, {8*128}')
    A('.p2align 6')
    A(f'{Lw}:')
    bar(36)
    A(f'{Lws}:')
    for j in range(18):
        A(f's_add_u32 m0, s{sBuf}, {1024*j}')
        if j: A(f's_add_u32 s50, s50, {8*1152}')
        else: A(f's_mov_b32 s50, s{sS}')
        if j==10:
            A(f's_sub_u32 s53, s{sN}, 17'); A('s_lshr_b32 s54, s53, 1')
            A(f's_add_u32 s55, s54, s{sFC}'); A('s_and_b32 s55, s55, 7')
            A('s_cmp_eq_u32 s54, 0'); A('s_cselect_b32 s55, 8, s55'); A('s_lshl_b32 s55, s55, 7')
            A('s_and_b32 s53, s53, 1'); A(f's_mul_i32 s53, s53, {288*1152}')
            A('s_add_u32 s55, s55, s53'); A(f's_add_u32 s{sS}, s39, s55')
        if j==12:
            for o in nb_ops(): o()
        if j==13: A(f's_add_u32 s{sN}, s{sN}, 1')
        if j==17:
            A(f's_mov_b32 s{sBuf}, s{sNB}'); A(f's_sub_u32 s52, s{sN}, 23'); A('s_cmp_lt_u32 s52, 13')
        if dma_on: A(f'buffer_load_dwordx4 v{VC}, s[24:27], s50 offen lds')
    A(f's_cbranch_scc1 {Lw}')
    A(f's_cmp_eq_u32 s{sN}, 19'); A(f's_cbranch_scc1 {Lw}')
    A(f's_cmp_eq_u32 s{sN}, 20'); A(f's_cbranch_scc1 {Lx20}')
    A(f's_cmp_eq_u32 s{sN}, 21'); A(f's_cbranch_scc1 {Lx21}')
    A(f's_cmp_eq_u32 s{sN}, 22'); A(f's_cbranch_scc1 {Lws}')
    A(f's_branch {Lfin}')
    A(f'{Lx20}:')
    bar(36); bar(18)
    A('s_barrier'); rec(); A('s_barrier'); rec()
    A(f's_branch {Lws}')
    A(f'{Lx21}:')
    bar(18)
    A(f's_branch {Lws}')
    A(f'{Lfin}:')
    bar(36); bar(18); bar(0)
    if A.prof:
        A(f'v_lshrrev_b32 v61, 2, v{vL16}')
        A('s_lshl_b32 s60, s2, 8')
        A(f's_add_u32 s60, s60, {0x8000000+A.kidx*0x100000+0x80000}')
        A('buffer_store_dword v60, v61, s[16:19], s60 offen')
    A(f's_mov_b32 s62, s{sW}')
    reduce_code()
    A(f'{Lnorm}:')
    if prio==2: A('s_setprio 2')
    vHBw,vGS=9,10
    vR,vNmr=11,13
    TP=20; XR=76
    A(f's_sub_u32 s{sW}, s{sW}, 6')
    A(f's_lshl_b32 s34, s{sMT}, 1')
    A(f's_add_u32 s34, s34, s{sW}')
    A(f's_mul_i32 s35, s34, {36*1024}')
    A(f's_add_u32 s35, s35, {WS_X2}')
    A(f's_add_u32 s31, s35, {18*1024}')
    A(f'v_and_b32 v{vT0}, 15, v0')
    A(f's_lshl_b32 s36, s34, 5')
    A(f'v_add_u32 v{vT0}, s36, v{vT0}')
    A(f'v_lshlrev_b32 v{vT0}, 3, v{vT0}')
    A(f's_mov_b32 s36, {WS_STAT}')
    A(f's_mov_b32 m0, {L_GS}')
    A(f's_mov_b32 s37, {WS_MOD+3*2304}')
    A('s_waitcnt lgkmcnt(0)')
    ST=TP+16
    for i in range(6):
        for b in range(2):
            A(f'buffer_load_dwordx2 {v(ST+12*b+2*i,2)}, v{vT0}, s[16:19], s36 offen offset:{128*b}')
        A('s_add_u32 s36, s36, 16384')
    for k in range(4):
        A(f'buffer_load_dwordx4 v{vL16}, s[16:19], s37 offen offset:{1024*k} lds')
    A(f's_mov_b32 m0, {L_GS+4096}')
    A(f's_mov_b32 s37, {WS_MOD+3*2304+4096}')
    A(f'buffer_load_dwordx4 v{vL16}, s[16:19], s37 offen lds')
    nx=[0]
    def xbatch(n):
        for _ in range(n):
            ks=nx[0]; nx[0]+=1
            for b in range(2):
                A(f'buffer_load_dwordx4 {v(XR+8*ks+4*b,4)}, v{vL16}, s[16:19], s{35 if b==0 else 31} offen offset:{(ks&3)*1024}')
            if ks&3==3: A('s_add_u32 s35, s35, 4096'); A('s_add_u32 s31, s31, 4096')
    xbatch(XB[0])
    A(f's_lshl_b32 s37, s{sW}, 11')
    A(f's_add_u32 s37, s37, {L_HB}')
    A(f'v_add_u32 v{vHBw}, s37, v{vL16}')
    A(f'v_lshrrev_b32 v{vGS}, 4, v{vT1}')
    A(f'v_lshlrev_b32 v{vGS}, 5, v{vGS}')
    A(f'v_add_u32 v{vGS}, {L_GS}, v{vGS}')
    A(f's_mov_b32 s36, 0x3ae38e39')
    A(f's_mov_b32 s37, 0x3727c5ac')
    A.stamp(1)
    A(f's_waitcnt vmcnt({2*XB[0]})')
    GSr=TP; UX=TP+16; HO=TP+40
    def gs_read():
        for k in range(4):
            A(f'ds_read_b128 {v(GSr+4*k,4)}, v{vGS} offset:{(k>>1)*2304+16*(k&1)}')
        A(f'v_add_u32 v{vGS}, 128, v{vGS}')
    gs_read()
    for b in range(2):
        S_=ST+12*b
        for i in range(1,6):
            A(f'v_pk_add_f32 {v(S_,2)}, {v(S_,2)}, {v(S_+2*i,2)}')
        A(f'v_mul_f32 v{S_}, s36, v{S_}')
        A(f'v_mul_f32 v{S_+1}, s36, v{S_+1}')
        A(f'v_fma_f32 v{S_+1}, -v{S_}, v{S_}, v{S_+1}')
        A(f'v_max_f32 v{S_+1}, 0, v{S_+1}')
        bf16_round(A,f'v{S_+1}',f'v{S_+1}')
        A(f'v_add_f32 v{S_+1}, s37, v{S_+1}')
        bf16_round(A,f'v{S_+1}',f'v{S_+1}')
        A(f'v_sqrt_f32 v{S_+1}, v{S_+1}')
        A('s_nop 0')
        bf16_round(A,f'v{S_+1}',f'v{S_+1}')
        A(f'v_rcp_f32 v{vR+b}, v{S_+1}')
        bf16_round(A,f'v{S_}',f'v{S_}')
        A(f'v_mul_f32 v{vNmr+b}, -v{S_}, v{vR+b}')
    def store_phase():
        Ls=A.label('k4_sl')
        A('s_mov_b32 s52, 0')
        A(f'{Ls}:')
        A('s_barrier')
        A('s_add_u32 s52, s52, 1')
        A('s_cmp_lt_u32 s52, 20'); A(f's_cbranch_scc1 {Ls}')
        A(f's_add_u32 s62, s{sW}, 2')
        A(f's_branch {Lred}')
    sK,sIdx,sEv=44,45,46
    def part1():
        A(f's_set_gpr_idx_on s{sIdx}, gpr_idx(SRC1)')
        A(f's_add_u32 s{sK}, s{sK}, 1')
        for b in range(2):
            for p in range(4):
                A(f'v_lshlrev_b32 v{UX+8*b+2*p}, 16, v{XR+4*b+p}')
                A(f'v_and_b32 v{UX+8*b+2*p+1}, 0xffff0000, v{XR+4*b+p}')
        A('s_set_gpr_idx_off')
        A(f's_add_u32 s{sIdx}, s{sIdx}, 8')
        for b in range(2):
            for e in range(8): A(f'v_fma_f32 v{UX+8*b+e}, v{UX+8*b+e}, v{vR+b}, v{vNmr+b}')
    def hwrite():
        for b in range(2): A(f'ds_write_b128 v{vHBw}, {v(HO+4*b,4)} offset:{1024*b}')
        A(f'v_xor_b32 v{vHBw}, 4096, v{vHBw}')
    def part2(first=False):
        A('s_waitcnt lgkmcnt(0)' if first else 's_waitcnt lgkmcnt(2)')
        for b in range(2):
            for e in range(8): A(f'v_fma_f32 v{UX+8*b+e}, v{UX+8*b+e}, v{GSr+8+e}, v{GSr+e}')
        if not first: A('s_waitcnt lgkmcnt(0)')
        gs_read()
        for b in range(2):
            for p in range(4): A(f'v_cvt_pk_bf16_f32 v{HO+4*b+p}, v{UX+8*b+2*p}, v{UX+8*b+2*p+1}')
    ev={}
    ev.setdefault(2,[]).append(('w0',))
    ev.setdefault(XI[0]+1,[]).append(('i',1)); ev.setdefault(XI[1]+1,[]).append(('i',2))
    ev.setdefault(XB[0],[]).append(('w',1)); ev.setdefault(XB[0]+XB[1],[]).append(('w',2))
    ev.setdefault(18,[]).append(('end',))
    evk=sorted(ev)
    A(f's_mov_b32 s{sK}, 0')
    A(f's_mov_b32 s{sIdx}, 0')
    A(f's_mov_b32 s{sEv}, {evk[0]}')
    A(f's_waitcnt vmcnt({2*XB[0]-4})')
    part1(); part2(True)
    Ln=A.label('k4_nl'); Lin=A.label('k4_nin'); Lev=A.label('k4_nev')
    A(f's_branch {Lin}')
    A('.p2align 6')
    A(f'{Ln}:')
    A('s_barrier')
    A(f'{Lin}:')
    part1(); hwrite(); part2()
    A(f's_cmp_lg_u32 s{sK}, s{sEv}')
    A(f's_cbranch_scc1 {Ln}')
    issued=1
    labs={k:A.label('k4_ev') for k in evk}
    A('s_barrier')
    for x,k in enumerate(evk):
        A(f'{labs[k]}:')
        if x+1<len(evk):
            A(f's_cmp_lg_u32 s{sK}, {k}'); A(f's_cbranch_scc1 {labs[evk[x+1]]}')
        for e in ev[k]:
            if e[0]=='w0': A(f's_waitcnt vmcnt({sum(2*x_ for x_ in XB[1:issued])})')
            elif e[0]=='i': xbatch(XB[e[1]]); issued+=1
            elif e[0]=='w': A(f's_waitcnt vmcnt({sum(2*x_ for x_ in XB[e[1]+1:issued])})')
            else:
                hwrite()
                A('s_waitcnt lgkmcnt(0)')
                A('s_barrier')
                store_phase()
        if x+1<len(evk):
            A(f's_mov_b32 s{sEv}, {evk[x+1]}')
            A(f's_branch {Lin}')
    A('code_end:')
    A(f'{Lend}:')
    A.endpgm()
    A.end(name, 236, 76)
```

```python
import sys
from asmlib import *
from gen1 import *
from gen1b import *
from gen2b import *
from gen2c import gen_k2c
from gen3b import *
from gen4b import gen_k5b
from gen4e import gen_k4e
from gen4g import *
A=Asm()
A.prof = len(sys.argv)>2 and sys.argv[2]=='prof'
kw=eval(sys.argv[3]) if len(sys.argv)>3 else {}
k4=dict(); k4.update(kw.get('k4',{}))

if not kw.get('merge'): gen_k1b(A,**kw.get('k1',{})); gen_k2b(A,**kw.get('k2',{}))
else: gen_k2c(A,**kw.get('k2',{}))
gen_k3b(A,**kw.get('k3',{})); (gen_k4e if kw.get('e') else gen_k4g)(A,**k4)
out=sys.argv[1] if len(sys.argv)>1 else 'adaLN_cond__spectral_fnet__dense_activation_relu__prompt.s'
open(out,'w').write(A.text())
```

```python
from asmlib import *
from gen1 import *
from gen4 import Cnt

WS_CNT=0x0050000
OOB=0x40000000
OSF=['']

def out_block_pre(A, R, sU, sBeta, sMT, vLane, tag):
    vO,vA,vB,vN=R,R+1,R+2,R+3
    Lm=A.label('ob_m'); Lj=A.label('ob_j')
    A(f'v_lshrrev_b32 v{vN}, 4, v{vLane}')
    A(f's_lshl_b32 s54, s{sU}, 2')
    A(f'v_add_u32 v{vN}, s54, v{vN}')
    A(f's_lshl_b32 s55, s{sMT}, 1'); A(f's_add_u32 s55, s55, s{sBeta}')
    A(f's_mul_i32 s56, s55, {36*1024}'); A(f's_add_u32 s56, s56, {WS_X2}'); A(f's_add_u32 s57, s56, {18*1024}')
    A(f'v_lshlrev_b32 v{vA}, 4, v{vN}')
    A(f's_mov_b32 s54, {WS_MOD+5*576*4}')
    A(f'buffer_load_dwordx4 {v(R+4,4)}, v{vA}, s[16:19], s54 offen')
    A('s_lshl_b32 s55, s55, 5')
    A(f'v_and_b32 v{vB}, 15, v{vLane}')
    A(f'v_add_u32 v{vO}, s55, v{vB}')
    A(f'v_mul_u32_u24 v{vO}, 1152, v{vO}')
    A(f'v_lshl_add_u32 v{vO}, v{vN}, 3, v{vO}')
    A(f'v_lshlrev_b32 v{vB}, 4, v{vB}')
    def quad(dst,k4,t):
        A(f'v_lshrrev_b32 v{t}, 1, v{k4}'); A(f'v_lshl_add_u32 v{dst}, v{t}, 8, v{vB}')
        A(f'v_and_b32 v{t}, 1, v{k4}'); A(f'v_lshl_add_u32 v{dst}, v{t}, 3, v{dst}')
    A(f's_cmp_lt_u32 s{sU}, 18')
    A(f's_cbranch_scc1 {Lj}')
    A(f'v_sub_u32 v{vN}, 216, v{vN}')
    A(f'v_cmp_eq_u32 vcc, 144, v{vN}'); A(f'v_mov_b32 v{R+12}, 72'); A('s_nop 0')
    A(f'v_cndmask_b32 v{R+12}, v{vN}, v{R+12}, vcc')
    quad(vA,R+12,R+13)
    A(f'buffer_load_ushort v{R+12}, v{vA}, s[16:19], s56 offen')
    A(f'buffer_load_ushort v{R+13}, v{vA}, s[16:19], s57 offen')
    A(f'v_add_u32 v{vN}, -1, v{vN}')
    A(f'{Lj}:')
    quad(vA,vN,R+14)
    A(f'buffer_load_dwordx2 {v(R+8,2)}, v{vA}, s[16:19], s56 offen')
    A(f'buffer_load_dwordx2 {v(R+10,2)}, v{vA}, s[16:19], s57 offen')

def out_block_post(A, R, sU, AC, T):
    Lm=A.label('op_m'); Lj=A.label('op_j')
    XR=R+8; XE=R+12
    A(f's_cmp_ge_u32 s{sU}, 18')
    A(f's_cbranch_scc1 {Lm}')
    for p in range(4):
        A(f'v_lshlrev_b32 v{T+2*p}, 16, v{XR+p}'); A(f'v_and_b32 v{T+2*p+1}, 0xffff0000, v{XR+p}')
    A(f's_branch {Lj}')
    A(f'{Lm}:')
    for h in range(2):
        A(f'v_lshlrev_b32 v{T+4*h}, 16, v{XE+h}')
        A(f'v_and_b32 v{T+4*h+1}, 0xffff0000, v{XR+2*h+1}')
        A(f'v_lshlrev_b32 v{T+4*h+2}, 16, v{XR+2*h+1}')
        A(f'v_and_b32 v{T+4*h+3}, 0xffff0000, v{XR+2*h}')
    A(f'{Lj}:')
    for i in range(8): A(f'v_fmac_f32 v{T+i}, v{AC+i}, v{R+4+(i&3)}')
    for p in range(4): A(f'v_cvt_pk_bf16_f32 v{AC+p}, v{T+2*p}, v{T+2*p+1}')
    A(f's_movk_i32 s54, {16*1152}')
    A(f'buffer_store_dwordx2 {v(AC,2)}, v{R}, s[64:67], 0 offen {OSF[0]}')
    A(f'buffer_store_dwordx2 {v(AC+2,2)}, v{R}, s[64:67], s54 offen {OSF[0]}')

def add_partial(A, AC, P, T, first=False):
    for p in range(4):
        if first:
            A(f'v_lshlrev_b32 v{AC+2*p}, 16, v{P+p}'); A(f'v_and_b32 v{AC+2*p+1}, 0xffff0000, v{P+p}')
        else:
            A(f'v_lshlrev_b32 v{T}, 16, v{P+p}'); A(f'v_and_b32 v{T+1}, 0xffff0000, v{P+p}')
            A(f'v_add_f32 v{AC+2*p}, v{AC+2*p}, v{T}'); A(f'v_add_f32 v{AC+2*p+1}, v{AC+2*p+1}, v{T+1}')

def gen_k4g(A, name='k4_mlp_kernel', store_flags='sc1', prewarm=False, prio=2, XB=(6,6,6), XI=(1,3), recon=True, dma_on=True, st_on=True, SIG=18, NEARLY=6, NE=6, SPR=3, DPR=None, ST0=14, ST1=23, NPW=4, STB=None, osf=''):
    OSF[0]=osf
    NW=256; TILE=36864; L_HB=4*TILE; L_GS=L_HB+8192
    A.launch(name, NW, 512, L_GS+5120)
    A.begin(name)
    Lend=A.label('k4_end'); Lhelp=A.label('k4_help'); Lnorm=A.label('k4_norm')
    load_srds(A,[('ws',16),('w1',20),('w2',24),('out',64)])
    A(f's_cmp_ge_u32 s2, {NW}')
    A(f's_cbranch_scc1 {Lend}')
    sFC,sMT,sW,sM0,sDst=28,29,30,32,33
    vL16,vT0,vT1,vT2=1,2,3,4
    A(f's_and_b32 s{sFC}, s2, 7')
    A(f's_lshr_b32 s{sMT}, s2, 3')
    A(f'v_lshrrev_b32 v{vT0}, 6, v0')
    A(f'v_and_b32 v{vT1}, 63, v0')
    A(f'v_readfirstlane_b32 s{sW}, v{vT0}')
    A(f'v_lshlrev_b32 v{vL16}, 4, v{vT1}')
    A('s_nop 1')
    A(f's_cmp_ge_u32 s{sW}, 6')
    A(f's_cbranch_scc1 {Lnorm}')
    A(f's_cmp_ge_u32 s{sW}, 4')
    A(f's_cbranch_scc1 {Lhelp}')
    lg=Cnt('lgkm',15)
    def lgwait(i):
        w=lg.need(i)
        if w is not None: A(f's_waitcnt lgkmcnt({w})')
    def lgpre(k):
        if lg.n-lg.done+k>15: lgwait(lg.n-(15-k))
    vRd=5; vR2=9; vHBr=11
    NA=9
    FR=12
    BF=48
    OUT=80
    ACC=88
    acc=lambda q,b: ACC+16*q+4*b
    sCnt,sDel=46,47
    if prio==1: A('s_setprio 1')
    A(f'v_lshrrev_b32 v{vT0}, 2, v{vT1}')
    A(f'v_bfe_u32 v{vT2}, v{vT1}, 3, 2')
    A(f'v_and_b32 v{vHBr}, 3, v{vT1}')
    A(f'v_lshlrev_b32 v{vHBr}, 3, v{vHBr}')
    A(f'v_lshl_add_u32 v{vR2+1}, v{vT0}, 7, v{vHBr}')
    A(f'v_mul_u32_u24 v{vT0}, 1152, v{vT0}')
    A(f'v_add_u32 v{vT0}, v{vT0}, v{vHBr}')
    A(f's_mul_i32 s36, s{sW}, 9')
    for qq in range(4):
        A(f's_add_u32 s37, s36, {qq}')
        A(f'v_xor_b32 v{vRd+qq}, s37, v{vT2}')
        A(f'v_lshl_add_u32 v{vRd+qq}, v{vRd+qq}, 5, v{vT0}')
    A(f's_and_b32 s37, s{sW}, 2')
    A(f'v_add_u32 v{vR2+1}, {2*TILE}, v{vR2+1}')
    A(f'v_xor_b32 v{vT0}, s37, v{vT2}')
    A(f'v_lshl_add_u32 v{vR2}, v{vT0}, 5, v{vR2+1}')
    A(f'v_xor_b32 v{vT0}, 1, v{vT0}')
    A(f'v_lshl_add_u32 v{vR2+1}, v{vT0}, 5, v{vR2+1}')
    A(f'v_add_u32 v{vHBr}, {L_HB}, v{vL16}')
    A(f's_lshl_b32 s37, s{sFC}, 5')
    A(f's_add_u32 s37, s37, s{sMT}')
    A(f's_mul_i32 s48, s37, {72*1024}')
    A(f's_and_b32 s37, s{sW}, 2')
    A('s_lshl_b32 s37, s37, 11')
    A('s_add_u32 s48, s48, s37')
    A(f's_and_b32 s37, s{sW}, 1')
    A('s_lshl_b32 s37, s37, 10')
    A('s_add_u32 s48, s48, s37')
    A(f's_add_u32 s48, s48, {WS_PART}')
    A(f's_add_u32 s{sDst}, s48, {8*8192}')
    A(f's_mul_i32 s50, s{sMT}, {9*128}')
    A(f's_add_u32 s50, s50, {WS_CNT}')
    A(f's_mov_b32 s51, s{sFC}')
    vAt,vOne,vAtB=232,233,234
    A(f'v_add_u32 v{vAtB}, s{sFC}, v{vT1}')
    A(f'v_and_b32 v{vAtB}, 7, v{vAtB}')
    A(f'v_lshlrev_b32 v{vAtB}, 7, v{vAtB}')
    A(f'v_lshl_add_u32 v{vAtB}, v{vT1}, 2, v{vAtB}')
    A(f's_lshl_b32 s52, s{sFC}, 2'); A('s_add_u32 s52, s52, 1024')
    A(f'v_cmp_eq_u32 vcc, 0, v{vT1}')
    A(f'v_mov_b32 v{vAt}, s52')
    A(f'v_mov_b32 v{vOne}, 0x{OOB:x}')
    A(f'v_cndmask_b32 v{vAtB}, v{vAtB}, v{vAt}, vcc')
    A(f'v_cmp_gt_u32 vcc, {NE}, v{vT1}'); A('s_nop 1')
    A(f'v_cndmask_b32 v{vAt}, v{vOne}, v{vAtB}, vcc')
    A(f'v_cndmask_b32 v{vAtB}, v{vAtB}, v{vOne}, vcc')
    A(f'v_cmp_gt_u32 vcc, 8, v{vT1}'); A('s_nop 1')
    A(f'v_cndmask_b32 v{vAtB}, v{vOne}, v{vAtB}, vcc')
    A(f'v_mov_b32 v{vOne}, 1')
    A('s_lshl_b32 s44, s37, 1')
    A('s_lshr_b32 s37, s36, 1'); A('s_lshl_b32 s37, s37, 12'); A('s_and_b32 s40, s36, 1'); A('s_lshl_b32 s40, s40, 3'); A('s_add_u32 s42, s37, s40')
    A('s_add_u32 s36, s36, 1')
    A('s_lshr_b32 s37, s36, 1'); A('s_lshl_b32 s37, s37, 12'); A('s_and_b32 s40, s36, 1'); A('s_lshl_b32 s40, s40, 3'); A('s_add_u32 s43, s37, s40')
    for r in range(144): A(f'v_mov_b32 v{ACC+r}, 0')
    A(f's_mov_b32 s{sCnt}, 0')
    A(f's_mov_b32 s{sDel}, {2*TILE}')
    A('s_waitcnt lgkmcnt(0)')
    if prewarm:
        A(f's_mul_i32 s39, s{sFC}, {576*1152}')
        A(f'v_min_u32 v{vT2}, 161, v0')
        A(f'v_lshlrev_b32 v{vT2}, 7, v{vT2}')
        A(f's_mul_i32 s40, s{sMT}, {18*1152}')
        A('s_add_u32 s40, s40, s39')
    rd_id={}; b_id={}; h_id={}
    def a_half(ph,t,q,h):
        r=FR+4*(q%NA)+2*h
        lgpre(1)
        toff = TILE if t==1 else 0
        if ph==1: A(f'ds_read_b64_tr_b16 {v(r,2)}, v{vRd+(q&3)} offset:{toff+128*(q>>2)+16*1152*h}')
        else:
            k,z=divmod(q,2)
            if t==1: A(f'ds_read_b64_tr_b16 {v(r,2)}, v{vRd+z} offset:{4096*k+2048*h}')
            else: A(f'ds_read_b64_tr_b16 {v(r,2)}, v{vR2+z} offset:{4096*k+2048*h}')
        rd_id[(t&1,q)]=lg.issue()
    def b_one(par,b):
        lgpre(1)
        A(f'ds_read_b128 {v(BF+16*par+4*b,4)}, v{vHBr} offset:{par*4096+1024*b}'); b_id[par]=lg.issue()
    H1=lambda k2,b: ACC+8*k2+4*b
    def barrier():
        lgwait(lg.n); A('s_barrier')
    AC2=BF; TM2=BF+16
    def cvt_ops(q,b):
        r=acc(q,b)
        return [lambda: A(f'v_cvt_pk_bf16_f32 v{r}, v{r}, v{r+1}'), lambda: A(f'v_cvt_pk_bf16_f32 v{r+1}, v{r+2}, v{r+3}'),
                lambda: A(f'v_pk_max_i16 v{r}, v{r}, 0'), lambda: A(f'v_pk_max_i16 v{r+1}, v{r+1}, 0')]
    class Sl:
        def __init__(s): s.d={}
        def add(s,m,f): s.d.setdefault(m,[]).append(f)
        def spread(s,ops,m0,m1):
            n=len(ops)
            for x,o in enumerate(ops): s.add(m0+(x*(m1-m0))//max(n,1), o)
        def rd2(s,m,ph,t,q):
            s.add(m,lambda: a_half(ph,t,q,0)); s.add(m+1,lambda: a_half(ph,t,q,1))
    TAIL1=[(20,'a',0,0),(21,'a',0,1),(22,'b',0,0),(23,'b',1,0),(24,'a',1,0),(25,'a',1,1),(26,'b',2,0),(27,'b',3,0),
           (28,'a',2,0),(29,'a',2,1),(30,'a',3,0),(31,'a',3,1),(32,'a',4,0),(33,'a',4,1)]
    G2=[26,26,27,27,28,28,29,30,30,31,32,33,34,35]
    def h_write(q,b):
        if lg.n-lg.done>=15: lgwait(lg.n-8)
        A(f'ds_write_b64 v{vT0 if q%2==0 else vT2}, {v(acc(q,b),2)} offset:{(q>>1)*4096+1024*b}'); lg.issue()
    def body1(last):
        S=Sl()
        for t in range(2):
            M=36*t
            for s_ in range(4): S.rd2(M+4*s_,1,t,s_+5)
            if t==1 and not last:
                for x in range(4): S.add(M+15+x, lambda x=x: A(f'v_add_u32 v{vRd+x}, s{sDel}, v{vRd+x}'))
            S.add(M+19, barrier)
            if t==1 and last:
                for f,m in enumerate((20,22,24,26,28,30,33)): S.rd2(M+m,2,0,f)
                for q in range(6):
                    ops=[]
                    for b in range(4): ops+=cvt_ops(q,b)
                    S.spread(ops, M+4*q+12, M+4*q+16)
                S.add(M+14, lambda: A(f'v_add_u32 v{vT0}, s42, v{vL16}'))
                S.add(M+15, lambda: A(f'v_add_u32 v{vT2}, s43, v{vL16}'))
                S.spread([lambda q=q,b=b: h_write(q,b) for q in range(NPW) for b in range(4)], M+20, M+36)
            else:
                for (m,kind,x,h) in TAIL1:
                    if kind=='a': S.add(M+m, lambda t=t,x=x,h=h: a_half(1,t+1,x,h))
                    else: S.add(M+m, lambda t=t,x=x: b_one((t+1)&1,x))
        if not last:
            S.add(70, lambda: A(f's_sub_u32 s{sDel}, 0, s{sDel}'))
            S.add(70, lambda: A(f's_add_u32 s{sCnt}, s{sCnt}, 1'))
            S.add(71, lambda: A(f's_cmp_lt_u32 s{sCnt}, 8'))
        for m in range(72):
            t,mm=divmod(m,36); q,b=divmod(mm,4)
            if b==0:
                lgwait(rd_id[(t,q)])
                if q==0: lgwait(b_id[t])
            A(f'v_mfma_f32_16x16x32_bf16 {v(acc(q,b),4)}, {v(FR+4*q,4)}, {v(BF+16*t+4*b,4)}, {v(acc(q,b),4)}')
            for f in S.d.get(m,[]): f()
    def st_ops():
        ops=[]
        for z in range(2):
            o=OUT+4*z
            for b in range(2):
                r=TM2+8*z+4*b
                ops.append(lambda r=r,o=o,b=b: A(f'v_cvt_pk_bf16_f32 v{o+2*b}, v{r}, v{r+1}'))
                ops.append(lambda r=r,o=o,b=b: A(f'v_cvt_pk_bf16_f32 v{o+2*b+1}, v{r+2}, v{r+3}'))
            ops.append(lambda z=z,o=o: A(f'buffer_store_dwordx4 {v(o,4)}, v{vL16}, s[16:19], s{sDst} offen offset:{2048*z} {store_flags}'))
        return ops
    def early():
        L=A.label('k4_ne')
        A(f's_cmp_lg_u32 s{sCnt}, 7'); A(f's_cbranch_scc1 {L}')
        A('s_waitcnt vmcnt(2)')
        A(f'buffer_atomic_add v{vOne}, v{vAt}, s[16:19], s50 offen')
        A(f'{L}:')
    def next_ops():
        def nxt():
            A('s_add_u32 s51, s51, 1'); A('s_and_b32 s51, s51, 7')
        def nxt2():
            A(f's_lshl_b32 s{sDst}, s51, 13'); A(f's_add_u32 s{sDst}, s{sDst}, s48')
        return [nxt,nxt2]
    def h_read(k2,b):
        lgpre(1)
        A(f'ds_read_b128 {v(H1(k2,b),4)}, v{vT0 if k2<9 else vT2} offset:{(k2%9)*4096+1024*b}'); h_id[(k2,b)]=lg.issue()
    def body2(first):
        S=Sl()
        for t in range(2):
            M=36*t
            for s_ in range(11): S.rd2(M+2*s_,2,t,s_+7)
            regs = vR2 if t==0 else vRd
            for x in range(2): S.add(M+22+x, lambda x=x,regs=regs: A(f'v_add_u32 v{regs+x}, s{sDel}, v{regs+x}'))
            if t==1 and not first:
                def cbar():
                    L=A.label('k4_nb')
                    lgwait(lg.n); A(f's_cbranch_scc1 {L}'); A('s_barrier'); A(f'{L}:')
                S.add(M+24, lambda: A(f's_cmp_eq_u32 s{sCnt}, 7'))
                S.add(M+25, cbar)
            else: S.add(M+25, barrier)
            seq=[(f,h) for f in range(7) for h in range(2)]
            for (f,h),g in zip(seq,G2): S.add(M+g, lambda t=t,f=f,h=h: a_half(2,t+1,f,h))
        if first:
            S.spread([lambda k2=k2,b=b: h_read(k2,b) for k2 in range(5,9) for b in range(2)], 0, 6)
            S.add(9, barrier)
            S.spread([lambda k2=k2,b=b: h_read(k2,b) for k2 in range(9,18) for b in range(2)], 10, 23)
        else:
            so=st_ops()
            S.add(2, early)
            if STB:
                S.spread(so[:4]+so[5:9], 6, 22)
                S.add(STB[0], so[4]); S.add(STB[1], so[9])
            else:
                S.spread(so[:5], ST0-8, ST0+1); S.spread(so[5:], ST1-8, ST1+1)
            S.spread(next_ops(), 64, 68)
        S.add(70, lambda: A(f's_sub_u32 s{sDel}, 0, s{sDel}'))
        if not first:
            S.add(70, lambda: A(f's_add_u32 s{sCnt}, s{sCnt}, 1'))
            S.add(71, lambda: A(f's_cmp_lt_u32 s{sCnt}, 8'))
        for m in range(72):
            t,mm=divmod(m,36); s_,b=divmod(mm,2); k,z=divmod(s_,2); k2=9*t+k
            if b==0 and z==0: lgwait(rd_id[(t,s_+1)])
            if first: lgwait(h_id[(k2,b)])
            c='0' if k2==0 else v(AC2+8*z+4*b,4)
            d=v(TM2+8*z+4*b,4) if k2==17 else v(AC2+8*z+4*b,4)
            A(f'v_mfma_f32_16x16x32_bf16 {d}, {v(FR+4*(s_%NA),4)}, {v(H1(k2,b),4)}, {c}')
            for f in S.d.get(m,[]): f()
    A('s_barrier')
    A.stamp(1)
    for (m,kind,x,h) in TAIL1:
        if kind=='a': a_half(1,0,x,h)
        else: b_one(0,x)
    if prewarm: A(f'buffer_load_dword v{OUT}, v{vT2}, s[24:27], s40 offen')
    L1=A.label('k4_l1')
    A('.p2align 6')
    A(f'{L1}:')
    st0=(lg.n-lg.done)
    body1(False)
    assert lg.n-lg.done==st0,(lg.n-lg.done,st0)
    A(f's_cbranch_scc1 {L1}')
    body1(True)
    A.stamp(2)
    for q in range(NPW,6):
        for b in range(4): h_write(q,b)
    for q in range(6,9):
        for b in range(4):
            for o in cvt_ops(q,b): o()
        for b in range(4): h_write(q,b)
    A(f'v_add_u32 v{vT0}, s44, v{vL16}')
    A(f'v_add_u32 v{vT2}, {TILE}, v{vT0}')
    for z in range(2): A(f'v_add_u32 v{vRd+z}, {TILE}, v{vR2+z}')
    A(f's_mov_b32 s{sDel}, {-2*TILE}')
    A(f's_mov_b32 s{sCnt}, 0')
    barrier()
    for k2 in range(5):
        for b in range(2): h_read(k2,b)
    A.stamp(3)
    body2(True)
    L2=A.label('k4_l2')
    A('.p2align 6')
    A(f'{L2}:')
    st0=(lg.n-lg.done)
    body2(False)
    assert lg.n-lg.done==st0,(lg.n-lg.done,st0)
    A(f's_cbranch_scc1 {L2}')
    A('s_waitcnt vmcnt(0)')
    A(f'buffer_atomic_add v{vOne}, v{vAtB}, s[16:19], s50 offen')
    A.stamp(4)
    A(f's_lshl_b32 s52, s{sW}, 12')
    A(f'v_add_u32 v{vT0}, s52, v{vL16}')
    A('s_nop 4')
    for x in range(4): A(f'ds_write_b128 v{vT0}, {v(TM2+4*x,4)} offset:{1024*x}')
    def poll_setup():
        A(f'v_lshlrev_b32 v{vT0}, 2, v{vT1}')
        A(f'v_cmp_gt_u32 vcc, 8, v{vT1}')
        A(f'v_mov_b32 v{vT2}, 0x{OOB:x}')
        A(f's_mul_i32 s63, s{sMT}, {9*128}'); A(f's_add_u32 s63, s63, {WS_CNT}')
        A(f'v_cndmask_b32 v{vT0}, v{vT2}, v{vT0}, vcc')
        A('s_mov_b32 s69, 0')
    def poll(sAddr, mask):
        Lp=A.label('k4_poll'); Lpd=A.label('k4_polld')
        A(f's_and_b32 s60, s69, {mask}'); A(f's_cmp_eq_u32 s60, {mask}'); A(f's_cbranch_scc1 {Lpd}')
        A('s_mov_b32 s61, 0')
        A(f'{Lp}:')
        A(f'v_mov_b32 v{vT2}, 0')
        A(f'buffer_atomic_add v{vT2}, v{vT0}, s[16:19], s{sAddr} offen sc0')
        A('s_waitcnt vmcnt(0)')
        A(f'v_cmp_eq_u32 vcc, 4, v{vT2}')
        A('s_add_u32 s61, s61, 1')
        A('s_mov_b32 s69, vcc_lo')
        A(f's_and_b32 s60, s69, {mask}'); A(f's_cmp_eq_u32 s60, {mask}'); A(f's_cbranch_scc1 {Lpd}')
        A('s_cmp_lt_u32 s61, 0x40000'); A(f's_cbranch_scc1 {Lp}')
        A(f'{Lpd}:')
    A('s_waitcnt lgkmcnt(0)')
    Ln8=A.label('k4_n8')
    A(f's_cmp_lg_u32 s{sW}, 3'); A(f's_cbranch_scc1 {Ln8}')
    R8,P8,A8,T8=96,112,176,200
    poll_setup()
    A(f's_add_u32 s59, s63, {8*128}')
    poll(59,0xff)
    A(f's_mul_i32 s60, s{sMT}, {72*1024}'); A(f's_lshl_b32 s61, s{sFC}, 10'); A('s_add_u32 s60, s60, s61'); A(f's_add_u32 s60, s60, {WS_PART+64*1024}')
    for j in range(8):
        A(f'buffer_load_dwordx4 {v(P8+4*j,4)}, v{vL16}, s[16:19], s60 offen sc1')
        A(f's_add_u32 s60, s60, {32*72*1024}')
    A(f's_lshr_b32 s68, s{sFC}, 1'); A('s_add_u32 s68, s68, 32'); A(f's_and_b32 s59, s{sFC}, 1')
    out_block_pre(A,R8,68,59,sMT,vT1,'c')
    A('s_waitcnt vmcnt(0)')
    for j in range(8): add_partial(A,A8,P8+4*j,T8,first=(j==0))
    out_block_post(A,R8,68,A8,T8)
    A(f'{Ln8}:')
    A('s_barrier')
    A.endpgm()
    Lred=A.label('k4_red')
    def reduce_code():
        sH=62
        RB=[64,80,96]; PD=112; AC=[176,184,192]; TT=200; OW=208
        A(f'{Lred}:')
        poll_setup()
        A(f's_lshl_b32 s59, s{sFC}, 7'); A('s_add_u32 s59, s59, s63')
        poll(59,(1<<NE)-2)
        A(f's_lshl_b32 s52, s{sFC}, 2'); A(f's_and_b32 s53, s{sH}, 2'); A('s_add_u32 s52, s52, s53')
        A('s_add_u32 s58, s52, 1')
        A(f's_and_b32 s53, s{sH}, 1')
        A(f's_mul_i32 s68, s{sMT}, {72*1024}'); A(f's_lshl_b32 s60, s52, 11'); A('s_add_u32 s68, s68, s60')
        A('s_lshl_b32 s60, s53, 10'); A('s_add_u32 s68, s68, s60'); A(f's_add_u32 s68, s68, {WS_PART}')
        def ploads(ps):
            for p in ps:
                A(f's_sub_u32 s60, s{sFC}, {p}'); A('s_and_b32 s60, s60, 7'); A(f's_mul_i32 s60, s60, {32*72*1024}'); A('s_add_u32 s60, s60, s68')
                for z in range(2):
                    A(f'buffer_load_dwordx4 {v(PD+8*(p-1)+4*z,4)}, v{vL16}, s[16:19], s60 offen offset:{2048*z} sc1')
        A.stamp(3)
        ploads(range(1,NE))
        out_block_pre(A,RB[0],52,53,sMT,vT1,'a')
        out_block_pre(A,RB[1],58,53,sMT,vT1,'b')
        poll(59,0x100-(1<<NE))
        A.stamp(4)
        ploads(range(NE,8))
        for p in range(1,8):
            A(f's_waitcnt vmcnt({2*(7-max(p,NE-1))})')
            for z in range(2): add_partial(A,AC[z],PD+8*(p-1)+4*z,TT,first=(p==1))
        A.stamp(5)
        A(f's_lshl_b32 s60, s{sH}, 12')
        A(f'v_add_u32 v{vT0}, s60, v{vL16}')
        A('s_barrier')
        for x in range(4): A(f'ds_read_b128 {v(OW+4*x,4)}, v{vT0} offset:{1024*x}')
        A('s_waitcnt lgkmcnt(0)')
        for z in range(2):
            for i in range(8): A(f'v_add_f32 v{AC[z]+i}, v{AC[z]+i}, v{OW+8*z+i}')
        A.stamp(6)
        out_block_post(A,RB[0],52,AC[0],TT)
        out_block_post(A,RB[1],58,AC[1],PD)
        A.endpgm()
    A(f'{Lhelp}:')
    if DPR is not None: A(f's_setprio {DPR}')
    elif prio==2: A('s_setprio 2')
    VA,VB,VC=14,23,32
    sBuf,sS,sN,sSkip,sPh=44,45,46,47,48
    A(f's_mul_i32 s38, s{sFC}, 1152')
    A(f's_mul_i32 s39, s{sFC}, {576*1152}')
    A(f's_sub_u32 s{sW}, s{sW}, 4')
    A(f's_mul_i32 s{sM0}, s{sW}, 18432')
    A(f's_mov_b32 s{sBuf}, s{sM0}')
    A(f's_add_u32 s49, s{sM0}, {4*TILE}')
    A(f's_mul_i32 s37, s{sW}, {144*1152}')
    A('s_add_u32 s39, s39, s37')
    A(f's_mul_i32 s37, s{sW}, {4*9216}')
    A(f's_add_u32 s{sS}, s38, s37')
    A('s_sub_u32 s35, s38, s37')
    A(f's_sub_u32 s40, {565*9216}, s37')
    A(f's_cmp_eq_u32 s{sW}, 0')
    A(f's_cselect_b32 s41, {277*9216}, s40')
    A('s_movk_i32 s37, 911')
    for j in range(9):
        A(f'v_add_u32 v{vT0}, {64*j}, v{vT1}')
        A(f'v_mul_u32_u24 v{vT2}, s37, v{vT0}')
        A(f'v_lshrrev_b32 v{vT2}, 16, v{vT2}')
        A(f'v_mul_u32_u24 v{VB+j}, 72, v{vT2}')
        A(f'v_sub_u32 v{vT0}, v{vT0}, v{VB+j}')
        A(f'v_and_b32 v{VB+j}, 6, v{vT2}')
        A(f'v_xor_b32 v{vT0}, v{vT0}, v{VB+j}')
        A(f'v_lshlrev_b32 v{vT0}, 4, v{vT0}')
        A(f'v_and_b32 v{VA+j}, 4, v{vT2}')
        A(f'v_add_u32 v{VA+j}, v{VA+j}, v{vT2}')
        A(f'v_sub_u32 v{VB+j}, 11, v{VA+j}')
        A(f'v_mul_u32_u24 v{VA+j}, 9216, v{VA+j}')
        A(f'v_mul_u32_u24 v{VB+j}, 9216, v{VB+j}')
        A(f'v_add_u32 v{VA+j}, v{VA+j}, v{vT0}')
        A(f'v_add_u32 v{VB+j}, v{VB+j}, v{vT0}')
    A(f'v_lshrrev_b32 v{vT0}, 3, v{vT1}')
    A(f'v_and_b32 v{vT2}, 6, v{vT0}')
    A(f'v_and_b32 v{VC}, 7, v{vT1}')
    A(f'v_xor_b32 v{VC}, v{VC}, v{vT2}')
    A(f'v_lshlrev_b32 v{VC}, 4, v{VC}')
    A(f'v_mul_u32_u24 v{vT0}, 1152, v{vT0}')
    A(f'v_add_u32 v{VC}, v{VC}, v{vT0}')
    if A.prof: A('s_mov_b32 s72, 0')
    def rec():
        if A.prof and recon:
            A('s_memtime s[70:71]'); A('s_waitcnt lgkmcnt(0)')
            A(f'v_cmp_eq_u32 vcc, s72, v{vT1}'); A('v_mov_b32 v61, s70'); A('s_add_u32 s72, s72, 1'); A('v_cndmask_b32 v60, v60, v61, vcc')
    def bar(n):
        A(f's_waitcnt vmcnt({n})'); A('s_barrier'); rec()
    sNB=51
    def nb_ops():
        return [lambda: A(f's_add_u32 s{sNB}, s{sBuf}, {TILE}'), lambda: A(f's_cmp_ge_u32 s{sNB}, s49'), lambda: A(f's_cselect_b32 s{sNB}, s{sM0}, s{sNB}')]
    def issue1(V, step, jr, tail=None):
        for j in jr:
            A(f's_add_u32 m0, s{sBuf}, {1024*j}')
            if j==9: A(f's_add_u32 s{sS}, s{sS}, {step}')
            elif j==12:
                for o in nb_ops(): o()
            elif j==13: A(f's_add_u32 s{sN}, s{sN}, 1')
            elif j==17:
                A(f's_mov_b32 s{sBuf}, s{sNB}'); A(f's_mov_b32 s50, s{sS}'); A(f's_add_u32 s{sS}, s{sS}, {step}'); tail()
            else: A('s_nop 0')
            if dma_on: A(f'buffer_load_dwordx4 v{V+j%9}, s[20:23], s{50 if j==17 else sS} offen lds')
    A('s_waitcnt lgkmcnt(0)')
    Ld=A.label('k4_dd'); Lds=A.label('k4_dds')
    A(f's_mov_b32 s{sN}, 0')
    A(f's_branch {Lds}')
    A('.p2align 6')
    A(f'{Ld}:')
    bar(36)
    A(f'{Lds}:')
    issue1(VA,16*9216,range(18),lambda: (A(f's_sub_u32 s52, s{sN}, 3'), A('s_cmp_lt_u32 s52, 6')))
    A(f's_cbranch_scc1 {Ld}')
    A(f's_cmp_lt_u32 s{sN}, 3')
    A(f's_cbranch_scc1 {Lds}')
    for j in range(9):
        A(f'v_cmp_le_u32 vcc, {11*9216}, v{VB+j}')
        A(f'v_add_u32 v{VA+j}, s40, v{VB+j}')
        A(f'v_add_u32 v{vT2}, s41, v{VB+j}')
        A(f'v_cndmask_b32 v{VA+j}, v{VA+j}, v{vT2}, vcc')
    A(f's_mov_b32 s{sS}, s38')
    bar(36)
    issue1(VA,0,range(9))
    A(f's_add_u32 s{sS}, s35, {(853-32*9)*9216}')
    Lm=A.label('k4_dm'); Lms=A.label('k4_dms')
    A(f's_branch {Lms}')
    A('.p2align 6')
    A(f'{Lm}:')
    bar(36)
    issue1(VB,0,range(9))
    A(f'{Lms}:')
    issue1(VB,-16*9216,range(9,18),lambda: A(f's_cmp_lt_u32 s{sN}, 18'))
    A(f's_cbranch_scc1 {Lm}')
    Lw=A.label('k4_dw'); Lws=A.label('k4_dws'); Lx20=A.label('k4_x20'); Lx21=A.label('k4_x21'); Lfin=A.label('k4_dfin')
    A(f's_add_u32 s{sS}, s39, {8*128}')
    A('.p2align 6')
    A(f'{Lw}:')
    bar(36)
    A(f'{Lws}:')
    for j in range(18):
        A(f's_add_u32 m0, s{sBuf}, {1024*j}')
        if j: A(f's_add_u32 s50, s50, {8*1152}')
        else: A(f's_mov_b32 s50, s{sS}')
        if j==10:
            A(f's_sub_u32 s53, s{sN}, 17'); A('s_lshr_b32 s54, s53, 1')
            A(f's_add_u32 s55, s54, s{sFC}'); A('s_and_b32 s55, s55, 7')
            A('s_cmp_eq_u32 s54, 0'); A('s_cselect_b32 s55, 8, s55'); A('s_lshl_b32 s55, s55, 7')
            A('s_and_b32 s53, s53, 1'); A(f's_mul_i32 s53, s53, {288*1152}')
            A('s_add_u32 s55, s55, s53'); A(f's_add_u32 s{sS}, s39, s55')
        if j==12:
            for o in nb_ops(): o()
        if j==13: A(f's_add_u32 s{sN}, s{sN}, 1')
        if j==17:
            A(f's_mov_b32 s{sBuf}, s{sNB}'); A(f's_sub_u32 s52, s{sN}, 23'); A('s_cmp_lt_u32 s52, 13')
        if dma_on: A(f'buffer_load_dwordx4 v{VC}, s[24:27], s50 offen lds')
    A(f's_cbranch_scc1 {Lw}')
    A(f's_cmp_eq_u32 s{sN}, 19'); A(f's_cbranch_scc1 {Lw}')
    A(f's_cmp_eq_u32 s{sN}, 20'); A(f's_cbranch_scc1 {Lx20}')
    A(f's_cmp_eq_u32 s{sN}, 21'); A(f's_cbranch_scc1 {Lx21}')
    A(f's_cmp_eq_u32 s{sN}, 22'); A(f's_cbranch_scc1 {Lws}')
    A(f's_branch {Lfin}')
    A(f'{Lx20}:')
    bar(36); bar(18)
    A('s_barrier'); rec(); A('s_barrier'); rec()
    A(f's_branch {Lws}')
    A(f'{Lx21}:')
    bar(18)
    A(f's_branch {Lws}')
    A(f'{Lfin}:')
    bar(36); bar(18); bar(0)
    if A.prof:
        A(f'v_lshrrev_b32 v61, 2, v{vL16}')
        A('s_lshl_b32 s60, s2, 8')
        A(f's_add_u32 s60, s60, {0x8000000+A.kidx*0x100000+0x80000}')
        A('buffer_store_dword v60, v61, s[16:19], s60 offen')
    A(f's_mov_b32 s62, s{sW}')
    reduce_code()
    A(f'{Lnorm}:')
    if prio==2: A('s_setprio 2')
    vHBw,vGS=9,10
    vR,vNmr=11,13
    TP=20; XR=76
    A(f's_sub_u32 s{sW}, s{sW}, 6')
    A(f's_lshl_b32 s34, s{sMT}, 1')
    A(f's_add_u32 s34, s34, s{sW}')
    A(f's_mul_i32 s35, s34, {36*1024}')
    A(f's_add_u32 s35, s35, {WS_X2}')
    A(f's_add_u32 s31, s35, {18*1024}')
    A(f'v_and_b32 v{vT0}, 15, v0')
    A(f's_lshl_b32 s36, s34, 5')
    A(f'v_add_u32 v{vT0}, s36, v{vT0}')
    A(f'v_lshlrev_b32 v{vT0}, 3, v{vT0}')
    A(f's_mov_b32 s36, {WS_STAT}')
    A(f's_mov_b32 m0, {L_GS}')
    A(f's_mov_b32 s37, {WS_MOD+3*2304}')
    A('s_waitcnt lgkmcnt(0)')
    ST=TP+16
    for i in range(6):
        for b in range(2):
            A(f'buffer_load_dwordx2 {v(ST+12*b+2*i,2)}, v{vT0}, s[16:19], s36 offen offset:{128*b}')
        A('s_add_u32 s36, s36, 16384')
    for k in range(4):
        A(f'buffer_load_dwordx4 v{vL16}, s[16:19], s37 offen offset:{1024*k} lds')
    A(f's_mov_b32 m0, {L_GS+4096}')
    A(f's_mov_b32 s37, {WS_MOD+3*2304+4096}')
    A(f'buffer_load_dwordx4 v{vL16}, s[16:19], s37 offen lds')
    nx=[0]
    def xbatch(n):
        for _ in range(n):
            ks=nx[0]; nx[0]+=1
            for b in range(2):
                A(f'buffer_load_dwordx4 {v(XR+8*ks+4*b,4)}, v{vL16}, s[16:19], s{35 if b==0 else 31} offen offset:{(ks&3)*1024}')
            if ks&3==3: A('s_add_u32 s35, s35, 4096'); A('s_add_u32 s31, s31, 4096')
    xbatch(XB[0])
    A(f's_lshl_b32 s37, s{sW}, 11')
    A(f's_add_u32 s37, s37, {L_HB}')
    A(f'v_add_u32 v{vHBw}, s37, v{vL16}')
    A(f'v_lshrrev_b32 v{vGS}, 4, v{vT1}')
    A(f'v_lshlrev_b32 v{vGS}, 5, v{vGS}')
    A(f'v_add_u32 v{vGS}, {L_GS}, v{vGS}')
    A(f's_mov_b32 s36, 0x3ae38e39')
    A(f's_mov_b32 s37, 0x3727c5ac')
    A.stamp(1)
    A(f's_waitcnt vmcnt({2*XB[0]})')
    GSr=TP; UX=TP+16; HO=TP+40
    def gs_read():
        for k in range(4):
            A(f'ds_read_b128 {v(GSr+4*k,4)}, v{vGS} offset:{(k>>1)*2304+16*(k&1)}')
        A(f'v_add_u32 v{vGS}, 128, v{vGS}')
    gs_read()
    for b in range(2):
        S_=ST+12*b
        for i in range(1,6):
            A(f'v_pk_add_f32 {v(S_,2)}, {v(S_,2)}, {v(S_+2*i,2)}')
        A(f'v_mul_f32 v{S_}, s36, v{S_}')
        A(f'v_mul_f32 v{S_+1}, s36, v{S_+1}')
        A(f'v_fma_f32 v{S_+1}, -v{S_}, v{S_}, v{S_+1}')
        A(f'v_max_f32 v{S_+1}, 0, v{S_+1}')
        bf16_round(A,f'v{S_+1}',f'v{S_+1}')
        A(f'v_add_f32 v{S_+1}, s37, v{S_+1}')
        bf16_round(A,f'v{S_+1}',f'v{S_+1}')
        A(f'v_sqrt_f32 v{S_+1}, v{S_+1}')
        A('s_nop 0')
        bf16_round(A,f'v{S_+1}',f'v{S_+1}')
        A(f'v_rcp_f32 v{vR+b}, v{S_+1}')
        bf16_round(A,f'v{S_}',f'v{S_}')
        A(f'v_mul_f32 v{vNmr+b}, -v{S_}, v{vR+b}')
    def store_phase():
        Ls=A.label('k4_sl')
        A('s_mov_b32 s52, 0')
        A(f'{Ls}:')
        A('s_barrier')
        A('s_add_u32 s52, s52, 1')
        A('s_cmp_lt_u32 s52, 20'); A(f's_cbranch_scc1 {Ls}')
        A(f's_add_u32 s62, s{sW}, 2')
        A(f's_branch {Lred}')
    sK,sIdx,sEv=44,45,46
    def part1():
        A(f's_set_gpr_idx_on s{sIdx}, gpr_idx(SRC1)')
        A(f's_add_u32 s{sK}, s{sK}, 1')
        for b in range(2):
            for p in range(4):
                A(f'v_lshlrev_b32 v{UX+8*b+2*p}, 16, v{XR+4*b+p}')
                A(f'v_and_b32 v{UX+8*b+2*p+1}, 0xffff0000, v{XR+4*b+p}')
        A('s_set_gpr_idx_off')
        A(f's_add_u32 s{sIdx}, s{sIdx}, 8')
        for b in range(2):
            for e in range(8): A(f'v_fma_f32 v{UX+8*b+e}, v{UX+8*b+e}, v{vR+b}, v{vNmr+b}')
    def hwrite():
        for b in range(2): A(f'ds_write_b128 v{vHBw}, {v(HO+4*b,4)} offset:{1024*b}')
        A(f'v_xor_b32 v{vHBw}, 4096, v{vHBw}')
    def part2(first=False):
        A('s_waitcnt lgkmcnt(0)' if first else 's_waitcnt lgkmcnt(2)')
        for b in range(2):
            for e in range(8): A(f'v_fma_f32 v{UX+8*b+e}, v{UX+8*b+e}, v{GSr+8+e}, v{GSr+e}')
        if not first: A('s_waitcnt lgkmcnt(0)')
        gs_read()
        for b in range(2):
            for p in range(4): A(f'v_cvt_pk_bf16_f32 v{HO+4*b+p}, v{UX+8*b+2*p}, v{UX+8*b+2*p+1}')
    ev={}
    ev.setdefault(2,[]).append(('w0',))
    ev.setdefault(XI[0]+1,[]).append(('i',1)); ev.setdefault(XI[1]+1,[]).append(('i',2))
    ev.setdefault(XB[0],[]).append(('w',1)); ev.setdefault(XB[0]+XB[1],[]).append(('w',2))
    ev.setdefault(18,[]).append(('end',))
    evk=sorted(ev)
    A(f's_mov_b32 s{sK}, 0')
    A(f's_mov_b32 s{sIdx}, 0')
    A(f's_mov_b32 s{sEv}, {evk[0]}')
    A(f's_waitcnt vmcnt({2*XB[0]-4})')
    part1(); part2(True)
    Ln=A.label('k4_nl'); Lin=A.label('k4_nin'); Lev=A.label('k4_nev')
    A(f's_branch {Lin}')
    A('.p2align 6')
    A(f'{Ln}:')
    A('s_barrier')
    A(f'{Lin}:')
    part1(); hwrite(); part2()
    A(f's_cmp_lg_u32 s{sK}, s{sEv}')
    A(f's_cbranch_scc1 {Ln}')
    issued=1
    labs={k:A.label('k4_ev') for k in evk}
    A('s_barrier')
    for x,k in enumerate(evk):
        A(f'{labs[k]}:')
        if x+1<len(evk):
            A(f's_cmp_lg_u32 s{sK}, {k}'); A(f's_cbranch_scc1 {labs[evk[x+1]]}')
        for e in ev[k]:
            if e[0]=='w0': A(f's_waitcnt vmcnt({sum(2*x_ for x_ in XB[1:issued])})')
            elif e[0]=='i': xbatch(XB[e[1]]); issued+=1
            elif e[0]=='w': A(f's_waitcnt vmcnt({sum(2*x_ for x_ in XB[e[1]+1:issued])})')
            else:
                hwrite()
                A('s_waitcnt lgkmcnt(0)')
                A('s_barrier')
                store_phase()
        if x+1<len(evk):
            A(f's_mov_b32 s{sEv}, {evk[x+1]}')
            A(f's_branch {Lin}')
    A('code_end:')
    A(f'{Lend}:')
    A.endpgm()
    A.end(name, 236, 76)
```

```python
from asmlib import *
from gen1 import *
from gen4 import Cnt

WS_CNT=0x0050000
OOB=0x40000000
OSF=['']

def out_block_pre(A, R, sU, sBeta, sMT, vLane, tag):
    vO,vA,vB,vN=R,R+1,R+2,R+3
    Lm=A.label('ob_m'); Lj=A.label('ob_j')
    A(f'v_lshrrev_b32 v{vN}, 4, v{vLane}')
    A(f's_lshl_b32 s54, s{sU}, 2')
    A(f'v_add_u32 v{vN}, s54, v{vN}')
    A(f's_lshl_b32 s55, s{sMT}, 1'); A(f's_add_u32 s55, s55, s{sBeta}')
    A(f's_mul_i32 s56, s55, {36*1024}'); A(f's_add_u32 s56, s56, {WS_X2}'); A(f's_add_u32 s57, s56, {18*1024}')
    A(f'v_lshlrev_b32 v{vA}, 4, v{vN}')
    A(f's_mov_b32 s54, {WS_MOD+5*576*4}')
    A(f'buffer_load_dwordx4 {v(R+4,4)}, v{vA}, s[16:19], s54 offen')
    A('s_lshl_b32 s55, s55, 5')
    A(f'v_and_b32 v{vB}, 15, v{vLane}')
    A(f'v_add_u32 v{vO}, s55, v{vB}')
    A(f'v_mul_u32_u24 v{vO}, 1152, v{vO}')
    A(f'v_lshl_add_u32 v{vO}, v{vN}, 3, v{vO}')
    A(f'v_lshlrev_b32 v{vB}, 4, v{vB}')
    def quad(dst,k4,t):
        A(f'v_lshrrev_b32 v{t}, 1, v{k4}'); A(f'v_lshl_add_u32 v{dst}, v{t}, 8, v{vB}')
        A(f'v_and_b32 v{t}, 1, v{k4}'); A(f'v_lshl_add_u32 v{dst}, v{t}, 3, v{dst}')
    A(f's_cmp_lt_u32 s{sU}, 18')
    A(f's_cbranch_scc1 {Lj}')
    A(f'v_sub_u32 v{vN}, 216, v{vN}')
    A(f'v_cmp_eq_u32 vcc, 144, v{vN}'); A(f'v_mov_b32 v{R+12}, 72'); A('s_nop 0')
    A(f'v_cndmask_b32 v{R+12}, v{vN}, v{R+12}, vcc')
    quad(vA,R+12,R+13)
    A(f'buffer_load_ushort v{R+12}, v{vA}, s[16:19], s56 offen')
    A(f'buffer_load_ushort v{R+13}, v{vA}, s[16:19], s57 offen')
    A(f'v_add_u32 v{vN}, -1, v{vN}')
    A(f'{Lj}:')
    quad(vA,vN,R+14)
    A(f'buffer_load_dwordx2 {v(R+8,2)}, v{vA}, s[16:19], s56 offen')
    A(f'buffer_load_dwordx2 {v(R+10,2)}, v{vA}, s[16:19], s57 offen')

def out_block_post(A, R, sU, AC, T, dst=None):
    Lm=A.label('op_m'); Lj=A.label('op_j')
    XR=R+8; XE=R+12
    A(f's_cmp_ge_u32 s{sU}, 18')
    A(f's_cbranch_scc1 {Lm}')
    for p in range(4):
        A(f'v_lshlrev_b32 v{T+2*p}, 16, v{XR+p}'); A(f'v_and_b32 v{T+2*p+1}, 0xffff0000, v{XR+p}')
    A(f's_branch {Lj}')
    A(f'{Lm}:')
    for h in range(2):
        A(f'v_lshlrev_b32 v{T+4*h}, 16, v{XE+h}')
        A(f'v_and_b32 v{T+4*h+1}, 0xffff0000, v{XR+2*h+1}')
        A(f'v_lshlrev_b32 v{T+4*h+2}, 16, v{XR+2*h+1}')
        A(f'v_and_b32 v{T+4*h+3}, 0xffff0000, v{XR+2*h}')
    A(f'{Lj}:')
    for i in range(8): A(f'v_fmac_f32 v{T+i}, v{AC+i}, v{R+4+(i&3)}')
    if dst is not None:
        for p in range(4): A(f'v_cvt_pk_bf16_f32 v{dst[p]}, v{T+2*p}, v{T+2*p+1}')
        return
    for p in range(4): A(f'v_cvt_pk_bf16_f32 v{AC+p}, v{T+2*p}, v{T+2*p+1}')
    A(f's_movk_i32 s54, {16*1152}')
    A(f'buffer_store_dwordx2 {v(AC,2)}, v{R}, s[64:67], 0 offen {OSF[0]}')
    A(f'buffer_store_dwordx2 {v(AC+2,2)}, v{R}, s[64:67], s54 offen {OSF[0]}')

def add_partial(A, AC, P, T, first=False):
    for p in range(4):
        if first:
            A(f'v_lshlrev_b32 v{AC+2*p}, 16, v{P+p}'); A(f'v_and_b32 v{AC+2*p+1}, 0xffff0000, v{P+p}')
        else:
            A(f'v_lshlrev_b32 v{T}, 16, v{P+p}'); A(f'v_and_b32 v{T+1}, 0xffff0000, v{P+p}')
            A(f'v_add_f32 v{AC+2*p}, v{AC+2*p}, v{T}'); A(f'v_add_f32 v{AC+2*p+1}, v{AC+2*p+1}, v{T+1}')

def gen_k4g(A, name='k4_mlp_kernel', store_flags='sc1', prewarm=False, prio=2, XB=(6,6,6), XI=(1,3), recon=True, dma_on=True, st_on=True, SIG=18, NEARLY=6, NE=6, SPR=3, DPR=None, ST0=14, ST1=23, NPW=4, STB=None, osf='sc1'):
    OSF[0]=osf
    NW=256; TILE=36864; L_HB=4*TILE; L_GS=L_HB+8192
    A.launch(name, NW, 512, L_GS+5120)
    A.begin(name)
    Lend=A.label('k4_end'); Lhelp=A.label('k4_help'); Lnorm=A.label('k4_norm')
    load_srds(A,[('ws',16),('w1',20),('w2',24),('out',64)])
    A(f's_cmp_ge_u32 s2, {NW}')
    A(f's_cbranch_scc1 {Lend}')
    sFC,sMT,sW,sM0,sDst=28,29,30,32,33
    vL16,vT0,vT1,vT2=1,2,3,4
    A(f's_and_b32 s{sFC}, s2, 7')
    A(f's_lshr_b32 s{sMT}, s2, 3')
    A(f'v_lshrrev_b32 v{vT0}, 6, v0')
    A(f'v_and_b32 v{vT1}, 63, v0')
    A(f'v_readfirstlane_b32 s{sW}, v{vT0}')
    A(f'v_lshlrev_b32 v{vL16}, 4, v{vT1}')
    A('s_nop 1')
    A(f's_cmp_ge_u32 s{sW}, 6')
    A(f's_cbranch_scc1 {Lnorm}')
    A(f's_cmp_ge_u32 s{sW}, 4')
    A(f's_cbranch_scc1 {Lhelp}')
    lg=Cnt('lgkm',15)
    def lgwait(i):
        w=lg.need(i)
        if w is not None: A(f's_waitcnt lgkmcnt({w})')
    def lgpre(k):
        if lg.n-lg.done+k>15: lgwait(lg.n-(15-k))
    vRd=5; vR2=9; vHBr=11
    NA=9
    FR=12
    BF=48
    OUT=80
    ACC=88
    acc=lambda q,b: ACC+16*q+4*b
    sCnt,sDel=46,47
    if prio==1: A('s_setprio 1')
    A(f'v_lshrrev_b32 v{vT0}, 2, v{vT1}')
    A(f'v_bfe_u32 v{vT2}, v{vT1}, 3, 2')
    A(f'v_and_b32 v{vHBr}, 3, v{vT1}')
    A(f'v_lshlrev_b32 v{vHBr}, 3, v{vHBr}')
    A(f'v_lshl_add_u32 v{vR2+1}, v{vT0}, 7, v{vHBr}')
    A(f'v_mul_u32_u24 v{vT0}, 1152, v{vT0}')
    A(f'v_add_u32 v{vT0}, v{vT0}, v{vHBr}')
    A(f's_mul_i32 s36, s{sW}, 9')
    for qq in range(4):
        A(f's_add_u32 s37, s36, {qq}')
        A(f'v_xor_b32 v{vRd+qq}, s37, v{vT2}')
        A(f'v_lshl_add_u32 v{vRd+qq}, v{vRd+qq}, 5, v{vT0}')
    A(f's_and_b32 s37, s{sW}, 2')
    A(f'v_add_u32 v{vR2+1}, {2*TILE}, v{vR2+1}')
    A(f'v_xor_b32 v{vT0}, s37, v{vT2}')
    A(f'v_lshl_add_u32 v{vR2}, v{vT0}, 5, v{vR2+1}')
    A(f'v_xor_b32 v{vT0}, 1, v{vT0}')
    A(f'v_lshl_add_u32 v{vR2+1}, v{vT0}, 5, v{vR2+1}')
    A(f'v_add_u32 v{vHBr}, {L_HB}, v{vL16}')
    A(f's_lshl_b32 s37, s{sFC}, 5')
    A(f's_add_u32 s37, s37, s{sMT}')
    A(f's_mul_i32 s48, s37, {72*1024}')
    A(f's_and_b32 s37, s{sW}, 2')
    A('s_lshl_b32 s37, s37, 11')
    A('s_add_u32 s48, s48, s37')
    A(f's_and_b32 s37, s{sW}, 1')
    A('s_lshl_b32 s37, s37, 10')
    A('s_add_u32 s48, s48, s37')
    A(f's_add_u32 s48, s48, {WS_PART}')
    A(f's_add_u32 s{sDst}, s48, {8*8192}')
    A(f's_mul_i32 s50, s{sMT}, {9*128}')
    A(f's_add_u32 s50, s50, {WS_CNT}')
    A(f's_mov_b32 s51, s{sFC}')
    vAt,vOne,vAtB=232,233,234
    A(f'v_add_u32 v{vAtB}, s{sFC}, v{vT1}')
    A(f'v_and_b32 v{vAtB}, 7, v{vAtB}')
    A(f'v_lshlrev_b32 v{vAtB}, 7, v{vAtB}')
    A(f'v_lshl_add_u32 v{vAtB}, v{vT1}, 2, v{vAtB}')
    A(f's_lshl_b32 s52, s{sFC}, 2'); A('s_add_u32 s52, s52, 1024')
    A(f'v_cmp_eq_u32 vcc, 0, v{vT1}')
    A(f'v_mov_b32 v{vAt}, s52')
    A(f'v_mov_b32 v{vOne}, 0x{OOB:x}')
    A(f'v_cndmask_b32 v{vAtB}, v{vAtB}, v{vAt}, vcc')
    A(f'v_cmp_gt_u32 vcc, {NE}, v{vT1}'); A('s_nop 1')
    A(f'v_cndmask_b32 v{vAt}, v{vOne}, v{vAtB}, vcc')
    A(f'v_cndmask_b32 v{vAtB}, v{vAtB}, v{vOne}, vcc')
    A(f'v_cmp_gt_u32 vcc, 8, v{vT1}'); A('s_nop 1')
    A(f'v_cndmask_b32 v{vAtB}, v{vOne}, v{vAtB}, vcc')
    A(f'v_mov_b32 v{vOne}, 1')
    A('s_lshl_b32 s44, s37, 1')
    A('s_lshr_b32 s37, s36, 1'); A('s_lshl_b32 s37, s37, 12'); A('s_and_b32 s40, s36, 1'); A('s_lshl_b32 s40, s40, 3'); A('s_add_u32 s42, s37, s40')
    A('s_add_u32 s36, s36, 1')
    A('s_lshr_b32 s37, s36, 1'); A('s_lshl_b32 s37, s37, 12'); A('s_and_b32 s40, s36, 1'); A('s_lshl_b32 s40, s40, 3'); A('s_add_u32 s43, s37, s40')
    for r in range(144): A(f'v_mov_b32 v{ACC+r}, 0')
    A(f's_mov_b32 s{sCnt}, 0')
    A(f's_mov_b32 s{sDel}, {2*TILE}')
    A('s_waitcnt lgkmcnt(0)')
    if prewarm:
        A(f's_mul_i32 s39, s{sFC}, {576*1152}')
        A(f'v_min_u32 v{vT2}, 161, v0')
        A(f'v_lshlrev_b32 v{vT2}, 7, v{vT2}')
        A(f's_mul_i32 s40, s{sMT}, {18*1152}')
        A('s_add_u32 s40, s40, s39')
    rd_id={}; b_id={}; h_id={}
    def a_half(ph,t,q,h):
        r=FR+4*(q%NA)+2*h
        lgpre(1)
        toff = TILE if t==1 else 0
        if ph==1: A(f'ds_read_b64_tr_b16 {v(r,2)}, v{vRd+(q&3)} offset:{toff+128*(q>>2)+16*1152*h}')
        else:
            k,z=divmod(q,2)
            if t==1: A(f'ds_read_b64_tr_b16 {v(r,2)}, v{vRd+z} offset:{4096*k+2048*h}')
            else: A(f'ds_read_b64_tr_b16 {v(r,2)}, v{vR2+z} offset:{4096*k+2048*h}')
        rd_id[(t&1,q)]=lg.issue()
    def b_one(par,b):
        lgpre(1)
        A(f'ds_read_b128 {v(BF+16*par+4*b,4)}, v{vHBr} offset:{par*4096+1024*b}'); b_id[par]=lg.issue()
    H1=lambda k2,b: ACC+8*k2+4*b
    def barrier():
        lgwait(lg.n); A('s_barrier')
    AC2=BF; TM2=BF+16
    def cvt_ops(q,b):
        r=acc(q,b)
        return [lambda: A(f'v_cvt_pk_bf16_f32 v{r}, v{r}, v{r+1}'), lambda: A(f'v_cvt_pk_bf16_f32 v{r+1}, v{r+2}, v{r+3}'),
                lambda: A(f'v_pk_max_i16 v{r}, v{r}, 0'), lambda: A(f'v_pk_max_i16 v{r+1}, v{r+1}, 0')]
    class Sl:
        def __init__(s): s.d={}
        def add(s,m,f): s.d.setdefault(m,[]).append(f)
        def spread(s,ops,m0,m1):
            n=len(ops)
            for x,o in enumerate(ops): s.add(m0+(x*(m1-m0))//max(n,1), o)
        def rd2(s,m,ph,t,q):
            s.add(m,lambda: a_half(ph,t,q,0)); s.add(m+1,lambda: a_half(ph,t,q,1))
    TAIL1=[(20,'a',0,0),(21,'a',0,1),(22,'b',0,0),(23,'b',1,0),(24,'a',1,0),(25,'a',1,1),(26,'b',2,0),(27,'b',3,0),
           (28,'a',2,0),(29,'a',2,1),(30,'a',3,0),(31,'a',3,1),(32,'a',4,0),(33,'a',4,1)]
    G2=[26,26,27,27,28,28,29,30,30,31,32,33,34,35]
    def h_write(q,b):
        if lg.n-lg.done>=15: lgwait(lg.n-8)
        A(f'ds_write_b64 v{vT0 if q%2==0 else vT2}, {v(acc(q,b),2)} offset:{(q>>1)*4096+1024*b}'); lg.issue()
    def body1(last):
        S=Sl()
        for t in range(2):
            M=36*t
            for s_ in range(4): S.rd2(M+4*s_,1,t,s_+5)
            if t==1 and not last:
                for x in range(4): S.add(M+15+x, lambda x=x: A(f'v_add_u32 v{vRd+x}, s{sDel}, v{vRd+x}'))
            S.add(M+19, barrier)
            if t==1 and last:
                for f,m in enumerate((20,22,24,26,28,30,33)): S.rd2(M+m,2,0,f)
                for q in range(6):
                    ops=[]
                    for b in range(4): ops+=cvt_ops(q,b)
                    S.spread(ops, M+4*q+12, M+4*q+16)
                S.add(M+14, lambda: A(f'v_add_u32 v{vT0}, s42, v{vL16}'))
                S.add(M+15, lambda: A(f'v_add_u32 v{vT2}, s43, v{vL16}'))
                S.spread([lambda q=q,b=b: h_write(q,b) for q in range(NPW) for b in range(4)], M+20, M+36)
            else:
                for (m,kind,x,h) in TAIL1:
                    if kind=='a': S.add(M+m, lambda t=t,x=x,h=h: a_half(1,t+1,x,h))
                    else: S.add(M+m, lambda t=t,x=x: b_one((t+1)&1,x))
        if not last:
            S.add(70, lambda: A(f's_sub_u32 s{sDel}, 0, s{sDel}'))
            S.add(70, lambda: A(f's_add_u32 s{sCnt}, s{sCnt}, 1'))
            S.add(71, lambda: A(f's_cmp_lt_u32 s{sCnt}, 8'))
        for m in range(72):
            t,mm=divmod(m,36); q,b=divmod(mm,4)
            if b==0:
                lgwait(rd_id[(t,q)])
                if q==0: lgwait(b_id[t])
            A(f'v_mfma_f32_16x16x32_bf16 {v(acc(q,b),4)}, {v(FR+4*q,4)}, {v(BF+16*t+4*b,4)}, {v(acc(q,b),4)}')
            for f in S.d.get(m,[]): f()
    def st_ops():
        ops=[]
        for z in range(2):
            o=OUT+4*z
            for b in range(2):
                r=TM2+8*z+4*b
                ops.append(lambda r=r,o=o,b=b: A(f'v_cvt_pk_bf16_f32 v{o+2*b}, v{r}, v{r+1}'))
                ops.append(lambda r=r,o=o,b=b: A(f'v_cvt_pk_bf16_f32 v{o+2*b+1}, v{r+2}, v{r+3}'))
            ops.append(lambda z=z,o=o: A(f'buffer_store_dwordx4 {v(o,4)}, v{vL16}, s[16:19], s{sDst} offen offset:{2048*z} {store_flags}'))
        return ops
    def early():
        L=A.label('k4_ne')
        A(f's_cmp_lg_u32 s{sCnt}, 7'); A(f's_cbranch_scc1 {L}')
        A('s_waitcnt vmcnt(2)')
        A(f'buffer_atomic_add v{vOne}, v{vAt}, s[16:19], s50 offen')
        A(f'{L}:')
    def next_ops():
        def nxt():
            A('s_add_u32 s51, s51, 1'); A('s_and_b32 s51, s51, 7')
        def nxt2():
            A(f's_lshl_b32 s{sDst}, s51, 13'); A(f's_add_u32 s{sDst}, s{sDst}, s48')
        return [nxt,nxt2]
    def h_read(k2,b):
        lgpre(1)
        A(f'ds_read_b128 {v(H1(k2,b),4)}, v{vT0 if k2<9 else vT2} offset:{(k2%9)*4096+1024*b}'); h_id[(k2,b)]=lg.issue()
    def body2(first):
        S=Sl()
        for t in range(2):
            M=36*t
            for s_ in range(11): S.rd2(M+2*s_,2,t,s_+7)
            regs = vR2 if t==0 else vRd
            for x in range(2): S.add(M+22+x, lambda x=x,regs=regs: A(f'v_add_u32 v{regs+x}, s{sDel}, v{regs+x}'))
            if t==1 and not first:
                def cbar():
                    L=A.label('k4_nb')
                    lgwait(lg.n); A(f's_cbranch_scc1 {L}'); A('s_barrier'); A(f'{L}:')
                S.add(M+24, lambda: A(f's_cmp_eq_u32 s{sCnt}, 7'))
                S.add(M+25, cbar)
            else: S.add(M+25, barrier)
            seq=[(f,h) for f in range(7) for h in range(2)]
            for (f,h),g in zip(seq,G2): S.add(M+g, lambda t=t,f=f,h=h: a_half(2,t+1,f,h))
        if first:
            S.spread([lambda k2=k2,b=b: h_read(k2,b) for k2 in range(5,9) for b in range(2)], 0, 6)
            S.add(9, barrier)
            S.spread([lambda k2=k2,b=b: h_read(k2,b) for k2 in range(9,18) for b in range(2)], 10, 23)
        else:
            so=st_ops()
            S.add(2, early)
            if STB:
                S.spread(so[:4]+so[5:9], 6, 22)
                S.add(STB[0], so[4]); S.add(STB[1], so[9])
            else:
                S.spread(so[:5], ST0-8, ST0+1); S.spread(so[5:], ST1-8, ST1+1)
            S.spread(next_ops(), 64, 68)
        S.add(70, lambda: A(f's_sub_u32 s{sDel}, 0, s{sDel}'))
        if not first:
            S.add(70, lambda: A(f's_add_u32 s{sCnt}, s{sCnt}, 1'))
            S.add(71, lambda: A(f's_cmp_lt_u32 s{sCnt}, 8'))
        for m in range(72):
            t,mm=divmod(m,36); s_,b=divmod(mm,2); k,z=divmod(s_,2); k2=9*t+k
            if b==0 and z==0: lgwait(rd_id[(t,s_+1)])
            if first: lgwait(h_id[(k2,b)])
            c='0' if k2==0 else v(AC2+8*z+4*b,4)
            d=v(TM2+8*z+4*b,4) if k2==17 else v(AC2+8*z+4*b,4)
            A(f'v_mfma_f32_16x16x32_bf16 {d}, {v(FR+4*(s_%NA),4)}, {v(H1(k2,b),4)}, {c}')
            for f in S.d.get(m,[]): f()
    A('s_barrier')
    A.stamp(1)
    for (m,kind,x,h) in TAIL1:
        if kind=='a': a_half(1,0,x,h)
        else: b_one(0,x)
    if prewarm: A(f'buffer_load_dword v{OUT}, v{vT2}, s[24:27], s40 offen')
    L1=A.label('k4_l1')
    A('.p2align 6')
    A(f'{L1}:')
    st0=(lg.n-lg.done)
    body1(False)
    assert lg.n-lg.done==st0,(lg.n-lg.done,st0)
    A(f's_cbranch_scc1 {L1}')
    body1(True)
    A.stamp(2)
    for q in range(NPW,6):
        for b in range(4): h_write(q,b)
    for q in range(6,9):
        for b in range(4):
            for o in cvt_ops(q,b): o()
        for b in range(4): h_write(q,b)
    A(f'v_add_u32 v{vT0}, s44, v{vL16}')
    A(f'v_add_u32 v{vT2}, {TILE}, v{vT0}')
    for z in range(2): A(f'v_add_u32 v{vRd+z}, {TILE}, v{vR2+z}')
    A(f's_mov_b32 s{sDel}, {-2*TILE}')
    A(f's_mov_b32 s{sCnt}, 0')
    barrier()
    for k2 in range(5):
        for b in range(2): h_read(k2,b)
    A.stamp(3)
    body2(True)
    L2=A.label('k4_l2')
    A('.p2align 6')
    A(f'{L2}:')
    st0=(lg.n-lg.done)
    body2(False)
    assert lg.n-lg.done==st0,(lg.n-lg.done,st0)
    A(f's_cbranch_scc1 {L2}')
    A('s_waitcnt vmcnt(0)')
    A(f'buffer_atomic_add v{vOne}, v{vAtB}, s[16:19], s50 offen')
    A.stamp(4)
    A(f's_lshl_b32 s52, s{sW}, 12')
    A(f'v_add_u32 v{vT0}, s52, v{vL16}')
    A('s_nop 4')
    for x in range(4): A(f'ds_write_b128 v{vT0}, {v(TM2+4*x,4)} offset:{1024*x}')
    def poll_setup():
        A(f'v_lshlrev_b32 v{vT0}, 2, v{vT1}')
        A(f'v_cmp_gt_u32 vcc, 8, v{vT1}')
        A(f'v_mov_b32 v{vT2}, 0x{OOB:x}')
        A(f's_mul_i32 s63, s{sMT}, {9*128}'); A(f's_add_u32 s63, s63, {WS_CNT}')
        A(f'v_cndmask_b32 v{vT0}, v{vT2}, v{vT0}, vcc')
        A('s_mov_b32 s69, 0')
    def poll(sAddr, mask):
        Lp=A.label('k4_poll'); Lpd=A.label('k4_polld')
        A(f's_and_b32 s60, s69, {mask}'); A(f's_cmp_eq_u32 s60, {mask}'); A(f's_cbranch_scc1 {Lpd}')
        A('s_mov_b32 s61, 0')
        A(f'{Lp}:')
        A(f'v_mov_b32 v{vT2}, 0')
        A(f'buffer_atomic_add v{vT2}, v{vT0}, s[16:19], s{sAddr} offen sc0')
        A('s_waitcnt vmcnt(0)')
        A(f'v_cmp_eq_u32 vcc, 4, v{vT2}')
        A('s_add_u32 s61, s61, 1')
        A('s_mov_b32 s69, vcc_lo')
        A(f's_and_b32 s60, s69, {mask}'); A(f's_cmp_eq_u32 s60, {mask}'); A(f's_cbranch_scc1 {Lpd}')
        A('s_cmp_lt_u32 s61, 0x40000'); A(f's_cbranch_scc1 {Lp}')
        A(f'{Lpd}:')
    A('s_waitcnt lgkmcnt(0)')
    Ln8=A.label('k4_n8')
    A(f's_cmp_lg_u32 s{sW}, 3'); A(f's_cbranch_scc1 {Ln8}')
    R8,P8,A8,T8=96,112,176,200
    poll_setup()
    A(f's_add_u32 s59, s63, {8*128}')
    poll(59,0xff)
    A(f's_mul_i32 s60, s{sMT}, {72*1024}'); A(f's_lshl_b32 s61, s{sFC}, 10'); A('s_add_u32 s60, s60, s61'); A(f's_add_u32 s60, s60, {WS_PART+64*1024}')
    for j in range(8):
        A(f'buffer_load_dwordx4 {v(P8+4*j,4)}, v{vL16}, s[16:19], s60 offen sc1')
        A(f's_add_u32 s60, s60, {32*72*1024}')
    A(f's_lshr_b32 s68, s{sFC}, 1'); A('s_add_u32 s68, s68, 32'); A(f's_and_b32 s59, s{sFC}, 1')
    out_block_pre(A,R8,68,59,sMT,vT1,'c')
    A('s_waitcnt vmcnt(0)')
    for j in range(8): add_partial(A,A8,P8+4*j,T8,first=(j==0))
    out_block_post(A,R8,68,A8,T8)
    A(f'{Ln8}:')
    A('s_barrier')
    A.endpgm()
    Lred=A.label('k4_red')
    def reduce_code():
        sH=62
        RB=[64,80,96]; PD=112; AC=[176,184,192]; TT=200; OW=208
        A(f'{Lred}:')
        poll_setup()
        A(f's_lshl_b32 s59, s{sFC}, 7'); A('s_add_u32 s59, s59, s63')
        poll(59,(1<<NE)-2)
        A(f's_lshl_b32 s52, s{sFC}, 2'); A(f's_and_b32 s53, s{sH}, 2'); A('s_add_u32 s52, s52, s53')
        A('s_add_u32 s58, s52, 1')
        A(f's_and_b32 s53, s{sH}, 1')
        A(f's_mul_i32 s68, s{sMT}, {72*1024}'); A(f's_lshl_b32 s60, s52, 11'); A('s_add_u32 s68, s68, s60')
        A('s_lshl_b32 s60, s53, 10'); A('s_add_u32 s68, s68, s60'); A(f's_add_u32 s68, s68, {WS_PART}')
        def ploads(ps):
            for p in ps:
                A(f's_sub_u32 s60, s{sFC}, {p}'); A('s_and_b32 s60, s60, 7'); A(f's_mul_i32 s60, s60, {32*72*1024}'); A('s_add_u32 s60, s60, s68')
                for z in range(2):
                    A(f'buffer_load_dwordx4 {v(PD+8*(p-1)+4*z,4)}, v{vL16}, s[16:19], s60 offen offset:{2048*z} sc1')
        A.stamp(3)
        ploads(range(1,NE))
        out_block_pre(A,RB[0],52,53,sMT,vT1,'a')
        out_block_pre(A,RB[1],58,53,sMT,vT1,'b')
        A(f'v_lshrrev_b32 v{TT}, 4, v{vT1}')
        A(f'v_lshlrev_b32 v{TT+1}, 3, v{TT}')
        A(f'v_sub_u32 v{RB[0]+15}, v{RB[0]}, v{TT+1}')
        A(f'v_and_b32 v{TT+1}, 1, v{TT}')
        A(f'v_lshl_add_u32 v{RB[0]+15}, v{TT+1}, 5, v{RB[0]+15}')
        A(f'v_lshrrev_b32 v{TT+1}, 1, v{TT}')
        A(f'v_lshl_add_u32 v{RB[0]+15}, v{TT+1}, 4, v{RB[0]+15}')
        poll(59,0x100-(1<<NE))
        A.stamp(4)
        ploads(range(NE,8))
        for p in range(1,8):
            A(f's_waitcnt vmcnt({2*(7-max(p,NE-1))})')
            for z in range(2): add_partial(A,AC[z],PD+8*(p-1)+4*z,TT,first=(p==1))
        A.stamp(5)
        A(f's_lshl_b32 s60, s{sH}, 12')
        A(f'v_add_u32 v{vT0}, s60, v{vL16}')
        A('s_barrier')
        for x in range(4): A(f'ds_read_b128 {v(OW+4*x,4)}, v{vT0} offset:{1024*x}')
        A('s_waitcnt lgkmcnt(0)')
        for z in range(2):
            for i in range(8): A(f'v_add_f32 v{AC[z]+i}, v{AC[z]+i}, v{OW+8*z+i}')
        A.stamp(6)
        W0,W1=OW,OW+4
        out_block_post(A,RB[0],52,AC[0],TT,dst=[W0,W0+1,W1,W1+1])
        out_block_post(A,RB[1],58,AC[1],PD,dst=[W0+2,W0+3,W1+2,W1+3])
        A('s_nop 1')
        for W in (W0,W1):
            for i in range(2): A(f'v_permlane16_swap_b32 v{W+i}, v{W+2+i}')
        A(f's_movk_i32 s54, {16*1152}')
        A(f'buffer_store_dwordx4 {v(W0,4)}, v{RB[0]+15}, s[64:67], 0 offen {OSF[0]}')
        A(f'buffer_store_dwordx4 {v(W1,4)}, v{RB[0]+15}, s[64:67], s54 offen {OSF[0]}')
        A.endpgm()
    A(f'{Lhelp}:')
    if DPR is not None: A(f's_setprio {DPR}')
    elif prio==2: A('s_setprio 2')
    VA,VB,VC=14,23,32
    sBuf,sS,sN,sSkip,sPh=44,45,46,47,48
    A(f's_mul_i32 s38, s{sFC}, 1152')
    A(f's_mul_i32 s39, s{sFC}, {576*1152}')
    A(f's_sub_u32 s{sW}, s{sW}, 4')
    A(f's_mul_i32 s{sM0}, s{sW}, 18432')
    A(f's_mov_b32 s{sBuf}, s{sM0}')
    A(f's_add_u32 s49, s{sM0}, {4*TILE}')
    A(f's_mul_i32 s37, s{sW}, {144*1152}')
    A('s_add_u32 s39, s39, s37')
    A(f's_mul_i32 s37, s{sW}, {4*9216}')
    A(f's_add_u32 s{sS}, s38, s37')
    A('s_sub_u32 s35, s38, s37')
    A(f's_sub_u32 s40, {565*9216}, s37')
    A(f's_cmp_eq_u32 s{sW}, 0')
    A(f's_cselect_b32 s41, {277*9216}, s40')
    A('s_movk_i32 s37, 911')
    for j in range(9):
        A(f'v_add_u32 v{vT0}, {64*j}, v{vT1}')
        A(f'v_mul_u32_u24 v{vT2}, s37, v{vT0}')
        A(f'v_lshrrev_b32 v{vT2}, 16, v{vT2}')
        A(f'v_mul_u32_u24 v{VB+j}, 72, v{vT2}')
        A(f'v_sub_u32 v{vT0}, v{vT0}, v{VB+j}')
        A(f'v_and_b32 v{VB+j}, 6, v{vT2}')
        A(f'v_xor_b32 v{vT0}, v{vT0}, v{VB+j}')
        A(f'v_lshlrev_b32 v{vT0}, 4, v{vT0}')
        A(f'v_and_b32 v{VA+j}, 4, v{vT2}')
        A(f'v_add_u32 v{VA+j}, v{VA+j}, v{vT2}')
        A(f'v_sub_u32 v{VB+j}, 11, v{VA+j}')
        A(f'v_mul_u32_u24 v{VA+j}, 9216, v{VA+j}')
        A(f'v_mul_u32_u24 v{VB+j}, 9216, v{VB+j}')
        A(f'v_add_u32 v{VA+j}, v{VA+j}, v{vT0}')
        A(f'v_add_u32 v{VB+j}, v{VB+j}, v{vT0}')
    A(f'v_lshrrev_b32 v{vT0}, 3, v{vT1}')
    A(f'v_and_b32 v{vT2}, 6, v{vT0}')
    A(f'v_and_b32 v{VC}, 7, v{vT1}')
    A(f'v_xor_b32 v{VC}, v{VC}, v{vT2}')
    A(f'v_lshlrev_b32 v{VC}, 4, v{VC}')
    A(f'v_mul_u32_u24 v{vT0}, 1152, v{vT0}')
    A(f'v_add_u32 v{VC}, v{VC}, v{vT0}')
    if A.prof: A('s_mov_b32 s72, 0')
    def rec():
        if A.prof and recon:
            A('s_memtime s[70:71]'); A('s_waitcnt lgkmcnt(0)')
            A(f'v_cmp_eq_u32 vcc, s72, v{vT1}'); A('v_mov_b32 v61, s70'); A('s_add_u32 s72, s72, 1'); A('v_cndmask_b32 v60, v60, v61, vcc')
    def bar(n):
        A(f's_waitcnt vmcnt({n})'); A('s_barrier'); rec()
    sNB=51
    def nb_ops():
        return [lambda: A(f's_add_u32 s{sNB}, s{sBuf}, {TILE}'), lambda: A(f's_cmp_ge_u32 s{sNB}, s49'), lambda: A(f's_cselect_b32 s{sNB}, s{sM0}, s{sNB}')]
    def issue1(V, step, jr, tail=None):
        for j in jr:
            A(f's_add_u32 m0, s{sBuf}, {1024*j}')
            if j==9: A(f's_add_u32 s{sS}, s{sS}, {step}')
            elif j==12:
                for o in nb_ops(): o()
            elif j==13: A(f's_add_u32 s{sN}, s{sN}, 1')
            elif j==17:
                A(f's_mov_b32 s{sBuf}, s{sNB}'); A(f's_mov_b32 s50, s{sS}'); A(f's_add_u32 s{sS}, s{sS}, {step}'); tail()
            else: A('s_nop 0')
            if dma_on: A(f'buffer_load_dwordx4 v{V+j%9}, s[20:23], s{50 if j==17 else sS} offen lds')
    A('s_waitcnt lgkmcnt(0)')
    Ld=A.label('k4_dd'); Lds=A.label('k4_dds')
    A(f's_mov_b32 s{sN}, 0')
    A(f's_branch {Lds}')
    A('.p2align 6')
    A(f'{Ld}:')
    bar(36)
    A(f'{Lds}:')
    issue1(VA,16*9216,range(18),lambda: (A(f's_sub_u32 s52, s{sN}, 3'), A('s_cmp_lt_u32 s52, 6')))
    A(f's_cbranch_scc1 {Ld}')
    A(f's_cmp_lt_u32 s{sN}, 3')
    A(f's_cbranch_scc1 {Lds}')
    for j in range(9):
        A(f'v_cmp_le_u32 vcc, {11*9216}, v{VB+j}')
        A(f'v_add_u32 v{VA+j}, s40, v{VB+j}')
        A(f'v_add_u32 v{vT2}, s41, v{VB+j}')
        A(f'v_cndmask_b32 v{VA+j}, v{VA+j}, v{vT2}, vcc')
    A(f's_mov_b32 s{sS}, s38')
    bar(36)
    issue1(VA,0,range(9))
    A(f's_add_u32 s{sS}, s35, {(853-32*9)*9216}')
    Lm=A.label('k4_dm'); Lms=A.label('k4_dms')
    A(f's_branch {Lms}')
    A('.p2align 6')
    A(f'{Lm}:')
    bar(36)
    issue1(VB,0,range(9))
    A(f'{Lms}:')
    issue1(VB,-16*9216,range(9,18),lambda: A(f's_cmp_lt_u32 s{sN}, 18'))
    A(f's_cbranch_scc1 {Lm}')
    Lw=A.label('k4_dw'); Lws=A.label('k4_dws'); Lx20=A.label('k4_x20'); Lx21=A.label('k4_x21'); Lfin=A.label('k4_dfin')
    A(f's_add_u32 s{sS}, s39, {8*128}')
    A('.p2align 6')
    A(f'{Lw}:')
    bar(36)
    A(f'{Lws}:')
    for j in range(18):
        A(f's_add_u32 m0, s{sBuf}, {1024*j}')
        if j: A(f's_add_u32 s50, s50, {8*1152}')
        else: A(f's_mov_b32 s50, s{sS}')
        if j==10:
            A(f's_sub_u32 s53, s{sN}, 17'); A('s_lshr_b32 s54, s53, 1')
            A(f's_add_u32 s55, s54, s{sFC}'); A('s_and_b32 s55, s55, 7')
            A('s_cmp_eq_u32 s54, 0'); A('s_cselect_b32 s55, 8, s55'); A('s_lshl_b32 s55, s55, 7')
            A('s_and_b32 s53, s53, 1'); A(f's_mul_i32 s53, s53, {288*1152}')
            A('s_add_u32 s55, s55, s53'); A(f's_add_u32 s{sS}, s39, s55')
        if j==12:
            for o in nb_ops(): o()
        if j==13: A(f's_add_u32 s{sN}, s{sN}, 1')
        if j==17:
            A(f's_mov_b32 s{sBuf}, s{sNB}'); A(f's_sub_u32 s52, s{sN}, 23'); A('s_cmp_lt_u32 s52, 13')
        if dma_on: A(f'buffer_load_dwordx4 v{VC}, s[24:27], s50 offen lds')
    A(f's_cbranch_scc1 {Lw}')
    A(f's_cmp_eq_u32 s{sN}, 19'); A(f's_cbranch_scc1 {Lw}')
    A(f's_cmp_eq_u32 s{sN}, 20'); A(f's_cbranch_scc1 {Lx20}')
    A(f's_cmp_eq_u32 s{sN}, 21'); A(f's_cbranch_scc1 {Lx21}')
    A(f's_cmp_eq_u32 s{sN}, 22'); A(f's_cbranch_scc1 {Lws}')
    A(f's_branch {Lfin}')
    A(f'{Lx20}:')
    bar(36); bar(18)
    A('s_barrier'); rec(); A('s_barrier'); rec()
    A(f's_branch {Lws}')
    A(f'{Lx21}:')
    bar(18)
    A(f's_branch {Lws}')
    A(f'{Lfin}:')
    bar(36); bar(18); bar(0)
    if A.prof:
        A(f'v_lshrrev_b32 v61, 2, v{vL16}')
        A('s_lshl_b32 s60, s2, 8')
        A(f's_add_u32 s60, s60, {0x8000000+A.kidx*0x100000+0x80000}')
        A('buffer_store_dword v60, v61, s[16:19], s60 offen')
    A(f's_mov_b32 s62, s{sW}')
    reduce_code()
    A(f'{Lnorm}:')
    if prio==2: A('s_setprio 2')
    vHBw,vGS=9,10
    vR,vNmr=11,13
    TP=20; XR=76
    A(f's_sub_u32 s{sW}, s{sW}, 6')
    A(f's_lshl_b32 s34, s{sMT}, 1')
    A(f's_add_u32 s34, s34, s{sW}')
    A(f's_mul_i32 s35, s34, {36*1024}')
    A(f's_add_u32 s35, s35, {WS_X2}')
    A(f's_add_u32 s31, s35, {18*1024}')
    A(f'v_and_b32 v{vT0}, 15, v0')
    A(f's_lshl_b32 s36, s34, 5')
    A(f'v_add_u32 v{vT0}, s36, v{vT0}')
    A(f'v_lshlrev_b32 v{vT0}, 3, v{vT0}')
    A(f's_mov_b32 s36, {WS_STAT}')
    A(f's_mov_b32 m0, {L_GS}')
    A(f's_mov_b32 s37, {WS_MOD+3*2304}')
    A('s_waitcnt lgkmcnt(0)')
    ST=TP+16
    for i in range(6):
        for b in range(2):
            A(f'buffer_load_dwordx2 {v(ST+12*b+2*i,2)}, v{vT0}, s[16:19], s36 offen offset:{128*b}')
        A('s_add_u32 s36, s36, 16384')
    for k in range(4):
        A(f'buffer_load_dwordx4 v{vL16}, s[16:19], s37 offen offset:{1024*k} lds')
    A(f's_mov_b32 m0, {L_GS+4096}')
    A(f's_mov_b32 s37, {WS_MOD+3*2304+4096}')
    A(f'buffer_load_dwordx4 v{vL16}, s[16:19], s37 offen lds')
    nx=[0]
    def xbatch(n):
        for _ in range(n):
            ks=nx[0]; nx[0]+=1
            for b in range(2):
                A(f'buffer_load_dwordx4 {v(XR+8*ks+4*b,4)}, v{vL16}, s[16:19], s{35 if b==0 else 31} offen offset:{(ks&3)*1024}')
            if ks&3==3: A('s_add_u32 s35, s35, 4096'); A('s_add_u32 s31, s31, 4096')
    xbatch(XB[0])
    A(f's_lshl_b32 s37, s{sW}, 11')
    A(f's_add_u32 s37, s37, {L_HB}')
    A(f'v_add_u32 v{vHBw}, s37, v{vL16}')
    A(f'v_lshrrev_b32 v{vGS}, 4, v{vT1}')
    A(f'v_lshlrev_b32 v{vGS}, 5, v{vGS}')
    A(f'v_add_u32 v{vGS}, {L_GS}, v{vGS}')
    A(f's_mov_b32 s36, 0x3ae38e39')
    A(f's_mov_b32 s37, 0x3727c5ac')
    A.stamp(1)
    A(f's_waitcnt vmcnt({2*XB[0]})')
    GSr=TP; UX=TP+16; HO=TP+40
    def gs_read():
        for k in range(4):
            A(f'ds_read_b128 {v(GSr+4*k,4)}, v{vGS} offset:{(k>>1)*2304+16*(k&1)}')
        A(f'v_add_u32 v{vGS}, 128, v{vGS}')
    gs_read()
    for b in range(2):
        S_=ST+12*b
        for i in range(1,6):
            A(f'v_pk_add_f32 {v(S_,2)}, {v(S_,2)}, {v(S_+2*i,2)}')
        A(f'v_mul_f32 v{S_}, s36, v{S_}')
        A(f'v_mul_f32 v{S_+1}, s36, v{S_+1}')
        A(f'v_fma_f32 v{S_+1}, -v{S_}, v{S_}, v{S_+1}')
        A(f'v_max_f32 v{S_+1}, 0, v{S_+1}')
        bf16_round(A,f'v{S_+1}',f'v{S_+1}')
        A(f'v_add_f32 v{S_+1}, s37, v{S_+1}')
        bf16_round(A,f'v{S_+1}',f'v{S_+1}')
        A(f'v_sqrt_f32 v{S_+1}, v{S_+1}')
        A('s_nop 0')
        bf16_round(A,f'v{S_+1}',f'v{S_+1}')
        A(f'v_rcp_f32 v{vR+b}, v{S_+1}')
        bf16_round(A,f'v{S_}',f'v{S_}')
        A(f'v_mul_f32 v{vNmr+b}, -v{S_}, v{vR+b}')
    def store_phase():
        Ls=A.label('k4_sl')
        A('s_mov_b32 s52, 0')
        A(f'{Ls}:')
        A('s_barrier')
        A('s_add_u32 s52, s52, 1')
        A('s_cmp_lt_u32 s52, 20'); A(f's_cbranch_scc1 {Ls}')
        A(f's_add_u32 s62, s{sW}, 2')
        A(f's_branch {Lred}')
    sK,sIdx,sEv=44,45,46
    def part1():
        A(f's_set_gpr_idx_on s{sIdx}, gpr_idx(SRC1)')
        A(f's_add_u32 s{sK}, s{sK}, 1')
        for b in range(2):
            for p in range(4):
                A(f'v_lshlrev_b32 v{UX+8*b+2*p}, 16, v{XR+4*b+p}')
                A(f'v_and_b32 v{UX+8*b+2*p+1}, 0xffff0000, v{XR+4*b+p}')
        A('s_set_gpr_idx_off')
        A(f's_add_u32 s{sIdx}, s{sIdx}, 8')
        for b in range(2):
            for e in range(8): A(f'v_fma_f32 v{UX+8*b+e}, v{UX+8*b+e}, v{vR+b}, v{vNmr+b}')
    def hwrite():
        for b in range(2): A(f'ds_write_b128 v{vHBw}, {v(HO+4*b,4)} offset:{1024*b}')
        A(f'v_xor_b32 v{vHBw}, 4096, v{vHBw}')
    def part2(first=False):
        A('s_waitcnt lgkmcnt(0)' if first else 's_waitcnt lgkmcnt(2)')
        for b in range(2):
            for e in range(8): A(f'v_fma_f32 v{UX+8*b+e}, v{UX+8*b+e}, v{GSr+8+e}, v{GSr+e}')
        if not first: A('s_waitcnt lgkmcnt(0)')
        gs_read()
        for b in range(2):
            for p in range(4): A(f'v_cvt_pk_bf16_f32 v{HO+4*b+p}, v{UX+8*b+2*p}, v{UX+8*b+2*p+1}')
    ev={}
    ev.setdefault(2,[]).append(('w0',))
    ev.setdefault(XI[0]+1,[]).append(('i',1)); ev.setdefault(XI[1]+1,[]).append(('i',2))
    ev.setdefault(XB[0],[]).append(('w',1)); ev.setdefault(XB[0]+XB[1],[]).append(('w',2))
    ev.setdefault(18,[]).append(('end',))
    evk=sorted(ev)
    A(f's_mov_b32 s{sK}, 0')
    A(f's_mov_b32 s{sIdx}, 0')
    A(f's_mov_b32 s{sEv}, {evk[0]}')
    A(f's_waitcnt vmcnt({2*XB[0]-4})')
    part1(); part2(True)
    Ln=A.label('k4_nl'); Lin=A.label('k4_nin'); Lev=A.label('k4_nev')
    A(f's_branch {Lin}')
    A('.p2align 6')
    A(f'{Ln}:')
    A('s_barrier')
    A(f'{Lin}:')
    part1(); hwrite(); part2()
    A(f's_cmp_lg_u32 s{sK}, s{sEv}')
    A(f's_cbranch_scc1 {Ln}')
    issued=1
    labs={k:A.label('k4_ev') for k in evk}
    A('s_barrier')
    for x,k in enumerate(evk):
        A(f'{labs[k]}:')
        if x+1<len(evk):
            A(f's_cmp_lg_u32 s{sK}, {k}'); A(f's_cbranch_scc1 {labs[evk[x+1]]}')
        for e in ev[k]:
            if e[0]=='w0': A(f's_waitcnt vmcnt({sum(2*x_ for x_ in XB[1:issued])})')
            elif e[0]=='i': xbatch(XB[e[1]]); issued+=1
            elif e[0]=='w': A(f's_waitcnt vmcnt({sum(2*x_ for x_ in XB[e[1]+1:issued])})')
            else:
                hwrite()
                A('s_waitcnt lgkmcnt(0)')
                A('s_barrier')
                store_phase()
        if x+1<len(evk):
            A(f's_mov_b32 s{sEv}, {evk[x+1]}')
            A(f's_branch {Lin}')
    A('code_end:')
    A(f'{Lend}:')
    A.endpgm()
    A.end(name, 236, 76)
```

```python
from asmlib import *
from gen1 import *
WS_PMOD=0x0008000
OOB=0x40000000

def silu_bf16(A, c, t, sLog2e):
    A(f'v_lshlrev_b32 v{c}, 16, v{c}')
    A(f'v_mul_f32 v{t}, s{sLog2e}, v{c}')
    A(f'v_exp_f32 v{t}, -v{t}')
    A('s_nop 0')
    A(f'v_add_f32 v{t}, 1.0, v{t}')
    A(f'v_rcp_f32 v{t}, v{t}')
    A('s_nop 0')
    A(f'v_mul_f32 v{c}, v{c}, v{t}')
    bf16_round(A,f'v{c}',f'v{c}')

def mod_issue(A, NRG, NP, sCol, sRow0, nrows, srdW, srdC, vC=8, vW=32):
    vCC,vRG,vOff,vCo=1,2,3,4; vT=120
    A(f'v_and_b32 v{vCC}, 7, v0')
    A(f'v_lshrrev_b32 v{vRG}, 3, v0')
    A(f'v_add_u32 v{vCo}, s{sRow0}, v{vRG}')
    A(f'v_mul_u32_u24 v{vOff}, 6912, v{vCo}')
    A(f'v_lshl_add_u32 v{vOff}, v{vCC}, 4, v{vOff}')
    A(f'v_lshlrev_b32 v{vCo}, 1, v{vCo}')
    last_partial = nrows%NRG
    if last_partial:
        A(f'v_cmp_gt_u32 vcc, {last_partial}, v{vRG}')
        A(f'v_mov_b32 v{vT}, 0x{OOB:x}')
        A('s_nop 0')
        A(f'v_cndmask_b32 v5, v{vT}, v{vOff}, vcc')
    A('s_waitcnt lgkmcnt(0)')
    for p in range(NP):
        A(f'buffer_load_dwordx4 {v(vW+4*p,4)}, v{5 if (last_partial and p==NP-1) else vOff}, {srdW}, s{sCol} offen')
        if p<NP-1: A(f's_add_u32 s{sCol}, s{sCol}, {NRG*6912}')
    for p in range(NP):
        A(f'buffer_load_ushort v{vC+p}, v{vCo}, {srdC}, 0 offen offset:{2*NRG*p}')

def mod_compute(A, NRG, NP, Lend, finish, extra=0, vC=8, vW=32):
    vCC=1; vAcc=112; vT=120; vX=96
    for i in range(8): A(f'v_mov_b32 v{vAcc+i}, 0')
    A(f's_mov_b32 s25, 0x{LOG2E:x}')
    A.stamp(1)
    A(f's_waitcnt vmcnt({extra})')
    A.stamp(2)
    for p in range(NP): silu_bf16(A,vC+p,vT,25)
    for p in range(NP):
        for i in range(4):
            w=vW+4*p+i
            A(f'v_lshlrev_b32 v{vT}, 16, v{w}')
            A(f'v_and_b32 v{vT+1}, 0xffff0000, v{w}')
            A(f'v_fmac_f32 v{vAcc+2*i}, v{vT}, v{vC+p}')
            A(f'v_fmac_f32 v{vAcc+2*i+1}, v{vT+1}, v{vC+p}')
    def xr(kind):
        for i in range(8):
            r=vAcc+i
            if kind=='8': A(f'v_add_f32_dpp v{r}, v{r}, v{r} row_ror:8 row_mask:0xf bank_mask:0xf')
            else: A(f'v_mov_b32 v{vX+i}, v{r}')
        if kind!='8':
            A('s_nop 1')
            for i in range(8): A(f'v_permlane{kind}_swap_b32 v{vX+i}, v{vAcc+i}')
            A('s_nop 1')
            for i in range(8): A(f'v_add_f32 v{vAcc+i}, v{vAcc+i}, v{vX+i}')
    A('s_nop 1'); xr('8'); xr('16'); xr('32')
    NWV=NRG//8
    A(f'v_lshrrev_b32 v{vT}, 6, v0')
    A(f'v_lshlrev_b32 v{vT}, 8, v{vT}')
    A(f'v_lshl_add_u32 v{vT}, v{vCC}, 5, v{vT}')
    A('s_mov_b64 exec, 0xff')
    A(f'ds_write_b128 v{vT}, {v(vAcc,4)}')
    A(f'ds_write_b128 v{vT}, {v(vAcc+4,4)} offset:16')
    A('s_mov_b64 exec, -1')
    A('s_waitcnt lgkmcnt(0)')
    A('s_barrier')
    A.stamp(3)
    A('v_cmp_gt_u32 vcc, 64, v0')
    A('s_and_saveexec_b64 s[26:27], vcc')
    A(f's_cbranch_execz {Lend}')
    A(f'v_lshlrev_b32 v{vT}, 2, v0')
    for r in range(NWV): A(f'ds_read_b32 v{32+r}, v{vT} offset:{256*r}')
    finish('pre')
    A('s_waitcnt lgkmcnt(0)')
    st=NWV//2
    while st:
        for r in range(st): A(f'v_add_f32 v{32+r}, v{32+r}, v{32+r+st}')
        st//=2
    finish('post')

def mod_block(A, NRG, NP, sCol, sRow0, nrows, srdW, srdC, Lend, finish, after_issue=None, extra=0):
    mod_issue(A,NRG,NP,sCol,sRow0,nrows,srdW,srdC)
    if after_issue: after_issue()
    mod_compute(A,NRG,NP,Lend,finish,extra)

def kappa_pos(A, vD, vTmp, sMask=None):
    A(f'v_sub_u32 v{vTmp}, 864, v{vD}')
    A(f'v_cmp_lt_u32 vcc, 288, v{vD}')
    if sMask: A(sMask)
    A('s_nop 1')
    A(f'v_cndmask_b32 v{vD}, v{vD}, v{vTmp}, vcc')

def k1_prefetch(A, V, lite=None):
    v1,v2,v3,v4,v5,v6,v7,v8=[f'v{V+i}' for i in range(8)]
    Lpc=A.label('k1_pc')
    A('s_and_b32 s56, s2, 7')
    A('s_lshr_b32 s57, s2, 3')
    A(f'v_mov_b32 {v6}, 0x{OOB:x}')
    Lx=A.label('pfx'); Lh=A.label('pfh'); Ls=A.label('pfs'); Lc=A.label('pfc'); Ld=A.label('pfd')
    A('s_cmp_lt_u32 s57, 9'); A(f's_cbranch_scc1 {Lx}')
    A('s_cmp_lt_u32 s57, 21'); A(f's_cbranch_scc1 {Lh}')
    A('s_cmp_lt_u32 s57, 30'); A(f's_cbranch_scc1 {Ls}')
    A('s_getpc_b64 s[58:59]')
    A(f'{Lpc}:')
    A('s_sub_u32 s57, s57, 30'); A('s_lshl_b32 s57, s57, 15')
    A(f'v_lshlrev_b32 {v1}, 7, v0'); A(f'v_add_u32 {v1}, s57, {v1}')
    A(f'v_min_u32 {v2}, code_end-{Lpc}, {v1}')
    A(f'global_load_dword v{V+8}, {v2}, s[58:59]')
    A(f's_branch {Ld}')
    A(f'{Lx}:')
    A('s_lshl_b32 s58, s57, 8'); A(f'v_add_u32 {v1}, s58, v0')
    A(f's_mov_b32 s59, {(2**32+8)//9}')
    A(f'v_mul_hi_u32 {v2}, {v1}, s59')
    A(f'v_mul_u32_u24 {v3}, 9, {v2}'); A(f'v_sub_u32 {v3}, {v1}, {v3}')
    A(f'v_lshrrev_b32 {v4}, 5, {v2}'); A(f'v_lshlrev_b32 {v4}, 3, {v4}'); A(f'v_add_u32 {v4}, s56, {v4}'); A(f'v_lshlrev_b32 {v4}, 4, {v4}')
    A(f'v_and_b32 {v5}, 15, {v2}'); A(f'v_add_u32 {v4}, {v4}, {v5}')
    A(f'v_sub_u32 {v5}, 2048, {v4}')
    A(f'v_and_b32 {v7}, 16, {v2}'); A(f'v_cmp_eq_u32 vcc, 0, {v7}'); A('s_nop 1')
    A(f'v_cndmask_b32 {v4}, {v5}, {v4}, vcc')
    A(f'v_mul_u32_u24 {v4}, 1152, {v4}'); A(f'v_lshl_add_u32 {v4}, {v3}, 7, {v4}')
    A(f'buffer_load_dword v{V+8}, {v4}, s[20:23], 0 offen')
    A(f's_branch {Ld}')
    A(f'{Lh}:')
    A('s_sub_u32 s57, s57, 9')
    A('s_cmp_ge_u32 s57, 6')
    A('s_cselect_b32 s60, s44, s40'); A('s_cselect_b32 s61, s45, s41'); A('s_cselect_b32 s58, 6, 0')
    A(f's_mov_b32 s62, {SZ["Cd"]}'); A('s_mov_b32 s63, 0x00020000')
    A('s_sub_u32 s57, s57, s58'); A('s_lshl_b32 s58, s57, 8'); A(f'v_add_u32 {v8}, s58, v0')
    A(f's_mov_b32 s59, {(2**32+4)//5}')
    A(f'v_mul_hi_u32 {v2}, {v8}, s59')
    A(f'v_mul_u32_u24 {v3}, 5, {v2}'); A(f'v_sub_u32 {v3}, {v8}, {v3}')
    A(f'v_mul_u32_u24 {v5}, 1152, {v2}'); A(f'v_lshl_add_u32 {v5}, {v3}, 7, {v5}')
    A(f'buffer_load_dword v{V+8}, {v5}, s[60:63], 0 offen')
    A(f's_branch {Ld}')
    A(f'{Ls}:')
    if lite is not None:
        A('s_sub_u32 s57, s57, 21'); A('s_lshl_b32 s58, s57, 8'); A(f'v_add_u32 {v1}, s58, v0')
        A(f's_mov_b32 s59, {(2**32+8)//9}')
        A(f'v_mul_hi_u32 {v2}, {v1}, s59')
        A(f'v_mul_u32_u24 {v3}, 9, {v2}'); A(f'v_sub_u32 {v3}, {v1}, {v3}')
        A(f'v_mul_u32_u24 {v2}, 9216, {v2}'); A(f'v_lshl_add_u32 {v2}, {v3}, 7, {v2}')
        A(f'v_cmp_gt_u32 vcc, {max(lite,0)}, {v1}'); A('s_nop 1'); A(f'v_cndmask_b32 {v2}, {v6}, {v2}, vcc')
        A('s_mul_i32 s58, s56, 1152')
        A(f'buffer_load_dword v{V+10}, {v2}, s[64:67], s58 offen')
        A(f'{Ld}:')
        return
    A('s_sub_u32 s57, s57, 21'); A('s_lshl_b32 s58, s57, 8'); A(f'v_add_u32 {v1}, s58, v0')
    A(f'v_lshrrev_b32 {v2}, 4, {v1}'); A(f'v_and_b32 {v3}, 15, {v1}')
    A('s_lshr_b32 s58, s56, 1'); A('s_lshl_b32 s58, s58, 7')
    A(f'v_add_u32 {v7}, s58, {v2}'); A(f'v_add_u32 {v8}, 384, {v2}')
    A(f'v_cmp_gt_u32 vcc, 128, {v2}'); A('s_nop 1')
    A(f'v_cndmask_b32 {v7}, {v8}, {v7}, vcc')
    A(f'v_lshlrev_b32 {v7}, 12, {v7}'); A(f'v_lshl_add_u32 {v7}, {v3}, 7, {v7}')
    A(f'v_cmp_gt_u32 vcc, 129, {v2}'); A('s_nop 1')
    A(f'v_cndmask_b32 {v7}, {v6}, {v7}, vcc')
    A(f'buffer_load_dword v{V+8}, {v7}, s[48:51], 0 offen')
    A(f'buffer_load_dword v{V+9}, {v7}, s[52:55], 0 offen')
    A(f'{Ld}:')
    Lnw=A.label('pfnw')
    A('s_lshr_b32 s57, s2, 3')
    A('s_sub_u32 s58, s57, 21'); A('s_cmp_lt_u32 s58, 8'); A(f's_cbranch_scc1 {Lnw}')
    A('s_cmp_ge_u32 s57, 29'); A('s_cselect_b32 s58, 8, 0'); A('s_sub_u32 s57, s57, s58')
    A('s_mul_i32 s57, s57, 152'); A('s_add_u32 s57, s57, 1536')
    A(f'v_min_u32 {v1}, 151, v0'); A(f'v_add_u32 {v1}, s57, {v1}')
    A(f's_mov_b32 s59, {(2**32+8)//9}')
    A(f'v_mul_hi_u32 {v2}, {v1}, s59')
    A(f'v_mul_u32_u24 {v3}, 9, {v2}'); A(f'v_sub_u32 {v3}, {v1}, {v3}')
    A(f'v_mul_u32_u24 {v2}, 9216, {v2}'); A(f'v_lshl_add_u32 {v2}, {v3}, 7, {v2}')
    A('s_mul_i32 s58, s56, 1152')
    A(f'buffer_load_dword v{V+10}, {v2}, s[64:67], s58 offen')
    A(f'{Lnw}:')

def gen_k1b(A, name='k1_mod_kernel', pf=True, sf='', lite=None):
    NMOD=144; NT=256 if pf else 144
    A.launch(name, NT, 256, 2048)
    A.begin(name)
    Lpf=A.label('k1_pf'); Lend=A.label('k1_end')
    load_srds(A,[('wmod',8),('c',12),('ws',16),('x',20),('Cd',40),('Sd',44),('Cs',48),('Ss',52),('w1',64)])
    A(f's_cmp_ge_u32 s2, {NT}')
    A(f's_cbranch_scc1 {Lend}')
    A(f's_cmp_ge_u32 s2, {NMOD}')
    A(f's_cbranch_scc1 {Lpf}')
    A('s_and_b32 s28, s2, 7')
    A('s_lshr_b32 s29, s2, 3')
    A('s_lshl_b32 s24, s29, 7')
    A('s_mul_i32 s30, s28, 72')
    def fin(ph):
        if ph=='pre':
            A('s_cmp_ge_u32 s29, 9'); A('s_cselect_b32 s31, 9, 0'); A('s_cselect_b32 s32, 576, 0')
            A('s_sub_u32 s31, s29, s31'); A('s_lshl_b32 s31, s31, 6')
            A('v_add_u32 v3, s31, v0')
            kappa_pos(A,3,4)
            A('s_mul_i32 s33, s28, 1152'); A('s_add_u32 s33, s33, s32')
            A('v_add_u32 v3, s33, v3'); A('v_lshlrev_b32 v3, 2, v3')
            A(f's_mov_b32 s33, {WS_PMOD}')
        else:
            A(f'buffer_store_dword v32, v3, s[16:19], s33 offen {sf}')
    mod_block(A,32,3,24,30,72,'s[8:11]','s[12:15]',Lend,fin, after_issue=(lambda: k1_prefetch(A,64,lite)) if pf else None, extra=(1 if lite is not None else 2) if pf else 0)
    A.endpgm()
    A(f'{Lpf}:')
    A('s_waitcnt lgkmcnt(0)')
    k1_prefetch(A,64,lite)
    A('s_waitcnt vmcnt(0)')
    A(f'{Lend}:')
    A.endpgm()
    A.end(name, 128, 72)
```

```python
from asmlib import *
from gen1 import *
from gen2 import row_allreduce16
from gen1b import *
OOB=0x40000000

def gen_k2d(A, name='k2_hid_kernel', prefetch=True, NB1=14, P2=None, late=False, sf='', W1K=0):
    ND=130; NT=256
    PITCH=592; L_HOO=16*PITCH; L_NQ=32*PITCH; L_MOD=19456; L_TB=L_MOD+5120
    A.launch(name, NT if prefetch else ND, 512, L_TB+12*9216)
    A.begin(name)
    Lp=A.label('k2_pf'); Lend=A.label('k2_end'); Lm=A.label('k2_mf')
    load_srds(A,[('x',8),('Cd',12),('ws',16),('Sd',20),('w1',24),('wmod',56),('c',60),('Cs',68),('Ss',72)])
    A(f's_cmp_ge_u32 s2, {NT if prefetch else ND}')
    A(f's_cbranch_scc1 {Lend}')
    if prefetch:
        A(f's_cmp_ge_u32 s2, {ND}')
        A(f's_cbranch_scc1 {Lp}')
    sST,sEG,sW=28,29,30
    A(f's_bfe_u32 s{sEG}, s2, 0x10003')
    A('s_lshr_b32 s32, s2, 4'); A('s_lshl_b32 s32, s32, 3'); A('s_and_b32 s33, s2, 7'); A(f's_add_u32 s{sST}, s32, s33')
    A('s_cmp_ge_u32 s2, 128')
    A(f's_cselect_b32 s{sST}, 64, s{sST}')
    A(f's_cselect_b32 s{sEG}, s33, s{sEG}')
    vRP,vL16,vS,vA1,vM1,vA3,vM3,vG1,vG2,vT0,vT1,vLane=1,2,3,4,5,6,7,8,9,10,11,12
    A(f'v_lshrrev_b32 v{vT0}, 6, v0')
    A(f'v_and_b32 v{vLane}, 63, v0')
    A(f'v_readfirstlane_b32 s{sW}, v{vT0}')
    A('s_nop 3')
    A(f's_cmp_ge_u32 s{sW}, 4')
    A(f's_cbranch_scc1 {Lm}')
    T=32; M=128
    def Tr(row,reg,i): return T+((row*2+reg)*3+i)*8
    G1=lambda i:M+8*i; G2=lambda i:M+24+8*i; SA1=lambda i:M+48+8*i; SA2=lambda i:M+72+8*i
    A(f'v_lshrrev_b32 v{vRP}, 4, v0')
    A(f'v_and_b32 v{vL16}, 15, v0')
    A(f's_lshl_b32 s31, s{sST}, 4')
    A(f'v_add_u32 v{vS}, s31, v{vRP}')
    A(f'v_cmp_gt_u32 s[32:33], 12, v{vL16}')
    A(f'v_cmp_eq_u32 s[34:35], 12, v{vL16}')
    A(f'v_cmp_ge_u32 vcc, 1024, v{vS}')
    A('s_and_b64 s[36:37], vcc, s[32:33]')
    A(f'v_add_u32 v{vT0}, -1, v{vS}')
    A(f'v_cmp_gt_u32 vcc, 1023, v{vT0}')
    A('s_mov_b64 s[38:39], vcc')
    A('s_and_b64 s[40:41], s[38:39], s[32:33]')
    A(f'v_lshlrev_b32 v{vT0}, 4, v{vL16}')
    A(f'v_mul_u32_u24 v{vA1}, 1152, v{vS}')
    A(f'v_sub_u32 v{vT1}, 2048, v{vS}')
    A(f'v_mul_u32_u24 v{vA3}, 1152, v{vT1}')
    A(f'v_sub_u32 v{vM1}, v{vA1}, v{vT0}')
    A(f'v_add_u32 v{vM1}, {1136-384}, v{vM1}')
    A(f'v_sub_u32 v{vM3}, v{vA3}, v{vT0}')
    A(f'v_add_u32 v{vM3}, {1136-384}, v{vM3}')
    A(f'v_add_u32 v{vA1}, v{vA1}, v{vT0}')
    A(f'v_add_u32 v{vA3}, v{vA3}, v{vT0}')
    A(f'v_mov_b32 v{vT1}, 0x{OOB:x}')
    for r,m in ((vA1,36),(vM1,36),(vA3,40),(vM3,40)):
        A(f'v_cndmask_b32 v{r}, v{vT1}, v{r}, s[{m}:{m+1}]')
    A('s_waitcnt lgkmcnt(0)')
    for row,(va,vm) in enumerate(((vA1,vM1),(vA3,vM3))):
        for i in range(3):
            A(f'buffer_load_dwordx4 {v(Tr(row,0,i)+4,4)}, v{va}, s[8:11], 0 offen offset:{192*i}')
        for i in range(3):
            A(f'buffer_load_dwordx4 {v(Tr(row,1,i)+4,4)}, v{vm}, s[8:11], 0 offen offset:{384-192*i}')
    A('s_barrier')
    A(f'v_min_u32 v{vG1}, 11, v{vL16}')
    A(f'v_lshlrev_b32 v{vG1}, 5, v{vG1}')
    A(f'v_add_u32 v{vG1}, {L_MOD}, v{vG1}')
    A(f'v_add_u32 v{vG2}, {288*4}, v{vG1}')
    A(f'v_mov_b32 v{vT1}, {L_MOD+288*4-768}')
    A(f'v_cndmask_b32 v{vG2}, v{vG2}, v{vT1}, s[34:35]')
    A.stamp(1)
    mu=[14,16]; rr=[18,20]; ac=[22,24]; mean=[26,27]; vWf=28
    for row in range(2):
        A(f's_waitcnt vmcnt({6*(1-row)})')
        if row==0: A.stamp(2)
        for i in range(3):
            R=Tr(row,0,i)
            for q in range(4):
                src=R+4+q
                A(f'v_lshlrev_b32 v{R+2*q}, 16, v{src}')
                A(f'v_and_b32 v{R+2*q+1}, 0xffff0000, v{src}')
            R=Tr(row,1,i)
            A(f'v_lshlrev_b32 v{R+0}, 16, v{R+5}'); A(f'v_and_b32 v{R+3}, 0xffff0000, v{R+5}')
            A(f'v_lshlrev_b32 v{R+2}, 16, v{R+6}'); A(f'v_and_b32 v{R+5}, 0xffff0000, v{R+6}')
            A(f'v_and_b32 v{R+1}, 0xffff0000, v{R+4}'); A(f'v_lshlrev_b32 v{R+6}, 16, v{R+4}')
            A(f'v_lshlrev_b32 v{R+4}, 16, v{R+7}'); A(f'v_and_b32 v{R+7}, 0xffff0000, v{R+7}')
    for row in range(2):
        base=Tr(row,0,0)
        A(f'v_pk_add_f32 {v(ac[row],2)}, {v(base,2)}, {v(base+2,2)}')
    for p in range(2,24):
        for row in range(2):
            base=Tr(row,0,0)
            A(f'v_pk_add_f32 {v(ac[row],2)}, {v(ac[row],2)}, {v(base+2*p,2)}')
    for row in range(2): A(f'v_add_f32 v{mean[row]}, v{ac[row]}, v{ac[row]+1}')
    row_allreduce16(A,mean)
    A(f's_mov_b32 s52, 0x3ae38e39')
    for row in range(2):
        A(f'v_mul_f32 v{mean[row]}, s52, v{mean[row]}')
        bf16_round(A,f'v{mu[row]}',f'v{mean[row]}')
        A(f'v_sub_f32 v{mean[row]}, v{mean[row]}, v{mu[row]}')
        m=(36,40)[row]
        A(f'v_cndmask_b32 v{mu[row]}, 0, v{mu[row]}, s[{m}:{m+1}]')
    for p in range(24):
        for row in range(2):
            r=Tr(row,0,0)+2*p
            A(f'v_pk_add_f32 {v(r,2)}, {v(r,2)}, {v(mu[row],2)} op_sel_hi:[1,0] neg_lo:[0,1] neg_hi:[0,1]')
    for p in range(24):
        for row in range(2):
            r=Tr(row,0,0)+2*p
            if p==0: A(f'v_pk_mul_f32 {v(ac[row],2)}, {v(r,2)}, {v(r,2)}')
            else: A(f'v_pk_fma_f32 {v(ac[row],2)}, {v(r,2)}, {v(r,2)}, {v(ac[row],2)}')
    for row in range(2): A(f'v_add_f32 v{rr[row]}, v{ac[row]}, v{ac[row]+1}')
    def mod_reads(i):
        for hh in range(2):
            A(f'ds_read_b128 {v(G1(i)+4*hh,4)}, v{vG1} offset:{2304+384*i+16*hh}')
            A(f'ds_read_b128 {v(G2(i)+4*hh,4)}, v{vG2} offset:{2304+384*i+16*hh}')
            A(f'ds_read_b128 {v(SA1(i)+4*hh,4)}, v{vG1} offset:{384*i+16*hh}')
            A(f'ds_read_b128 {v(SA2(i)+4*hh,4)}, v{vG2} offset:{384*i+16*hh}')
    row_allreduce16(A,rr)
    A(f's_mov_b32 s53, 0x3727c5ac')
    for row in range(2):
        r=rr[row]
        A(f'v_mul_f32 v{r}, s52, v{r}')
        A(f'v_fma_f32 v{r}, -v{mean[row]}, v{mean[row]}, v{r}')
        A(f'v_max_f32 v{r}, 0, v{r}')
        bf16_round(A,f'v{r}',f'v{r}')
        A(f'v_add_f32 v{r}, s53, v{r}')
        bf16_round(A,f'v{r}',f'v{r}')
        A(f'v_sqrt_f32 v{r}, v{r}')
        A('s_nop 0')
        bf16_round(A,f'v{r}',f'v{r}')
        A(f'v_rcp_f32 v{r}, v{r}')
    A(f'v_cndmask_b32 v{vWf}, 1.0, 2.0, s[38:39]')
    A('s_mov_b32 s54, -2.0'); A('s_mov_b32 s55, -2.0')
    for p in range(24):
        r1=Tr(0,0,0)+2*p; r3=Tr(1,0,0)+2*p
        A(f'v_pk_mul_f32 {v(r3,2)}, {v(r3,2)}, {v(rr[1],2)} op_sel_hi:[1,0]')
        A(f'v_pk_fma_f32 {v(r1,2)}, {v(r1,2)}, {v(rr[0],2)}, {v(r3,2)} op_sel_hi:[1,0,1]')
        A(f'v_pk_fma_f32 {v(r3,2)}, {v(r3,2)}, s[54:55], {v(r1,2)}')
    A.stamp(4)
    A('s_barrier')
    A.stamp(5)
    mod_reads(0)
    for row in range(2):
        m0=[Tr(row,1,i)+6 for i in range(3)]
        tm=[vA1,vM1,vA3]
        A('s_nop 1')
        A(f'v_mov_b32 v{tm[0]}, 0')
        for i in (1,2): A(f'v_mov_b32_dpp v{tm[i]}, v{m0[i-1]} row_shl:11 row_mask:0xf bank_mask:0xf bound_ctrl:0')
        A('s_nop 1')
        for i in range(3): A(f'v_mov_b32_dpp v{tm[i]}, v{m0[i]} row_shr:1 row_mask:0xf bank_mask:0xf')
        for i in range(3): A(f'v_mov_b32 v{m0[i]}, v{tm[i]}')
    A(f'v_cmp_eq_u32 vcc, 0, v{vL16}')
    A(f'v_mul_u32_u24 v{vT0}, {PITCH}, v{vRP}')
    A(f'v_lshl_add_u32 v{vT0}, v{vL16}, 4, v{vT0}')
    A(f'v_lshlrev_b32 v{vT1}, 2, v{vRP}')
    A('s_waitcnt lgkmcnt(0)')
    mod_reads(1)
    A(f'v_cndmask_b32 v{SA2(0)}, v{SA2(0)}, 0, vcc')
    for i in range(3):
        if i==1:
            A('s_waitcnt lgkmcnt(2)')
            mod_reads(2)
        if i==2:
            A('s_waitcnt lgkmcnt(2)')
            A(f'v_cndmask_b32 v{SA1(2)}, v{SA1(2)}, 0, s[34:35]')
        for p in range(4):
            g1=G1(i)+2*p; g2=G2(i)+2*p; s1=SA1(i)+2*p; s2=SA2(i)+2*p
            ned=Tr(0,0,i)+2*p; neD=Tr(0,1,i)+2*(3-p); nod=Tr(1,0,i)+2*p; noD=Tr(1,1,i)+2*(3-p)
            A(f'v_pk_add_f32 {v(s1,2)}, {v(s1,2)}, {v(s2,2)}')
            A(f'v_pk_mul_f32 {v(s1,2)}, {v(s1,2)}, {v(vWf,2)} op_sel_hi:[1,0]')
            A(f'v_pk_fma_f32 {v(s1,2)}, {v(neD,2)}, {v(g2,2)}, {v(s1,2)}')
            A(f'v_pk_fma_f32 {v(s1,2)}, {v(ned,2)}, {v(g1,2)}, {v(s1,2)}')
            A(f'v_pk_mul_f32 {v(s2,2)}, {v(noD,2)}, {v(g2,2)}')
            A(f'v_pk_fma_f32 {v(s2,2)}, {v(nod,2)}, {v(g1,2)}, {v(s2,2)} neg_lo:[0,0,1] neg_hi:[0,0,1]')
        for p in range(4):
            A(f'v_cvt_pk_bf16_f32 v{G1(i)+p}, v{SA1(i)+2*p}, v{SA1(i)+2*p+1}')
            A(f'v_cvt_pk_bf16_f32 v{G1(i)+4+p}, v{SA2(i)+2*p}, v{SA2(i)+2*p+1}')
        A('s_mov_b64 exec, s[32:33]')
        A(f'ds_write_b128 v{vT0}, {v(G1(i),4)} offset:{192*i}')
        A(f'ds_write_b128 v{vT0}, {v(G1(i)+4,4)} offset:{L_HOO+192*i}')
        if i==2:
            A('s_mov_b64 exec, s[34:35]')
            A(f'ds_write_b32 v{vT1}, v{SA1(2)} offset:{L_NQ}')
        A('s_mov_b64 exec, -1')
    A.stamp(3)
    A('s_waitcnt lgkmcnt(0)')
    A('s_barrier')
    A.endpgm()
    A(f'{Lm}:')
    TB=56
    A(f's_sub_u32 s{sW}, s{sW}, 4')
    vTab=13; VO=16
    A(f's_and_b32 s49, s{sW}, 1')
    A('s_mul_i32 s49, s49, 5')
    A(f's_mul_i32 s50, s{sEG}, 9')
    A('s_add_u32 s49, s49, s50')
    A('s_mul_i32 s50, s49, 18432')
    A(f's_mul_i32 s31, s{sW}, {3*9216}')
    A(f's_add_u32 s31, s31, {L_TB}')
    A('s_movk_i32 s32, 1821')
    A('s_waitcnt lgkmcnt(0)')
    A(f's_cmp_lt_u32 s{sW}, 2')
    A('s_cselect_b32 s44, s12, s20')
    A('s_cselect_b32 s45, s13, s21')
    A(f's_mov_b32 s46, {SZ["Cd"]}')
    A('s_mov_b32 s47, 0x00020000')
    A('s_cselect_b32 s48, -1, 0')
    PM=TB+108; vH,vH2=26,27
    A(f'v_and_b32 v{vH}, 255, v0')
    A(f'v_lshlrev_b32 v{vH}, 4, v{vH}')
    A(f'v_add_u32 v{vH2}, 4096, v{vH}')
    A(f'v_min_u32 v{vH2}, {4608-16}, v{vH2}')
    A(f's_mov_b32 s33, {WS_PMOD}')
    Lq=A.label('k2_q')
    A('s_barrier')
    A('s_setprio 3')
    def ploads():
        A(f's_cmp_lg_u32 s{sW}, 0')
        A(f's_cbranch_scc1 {Lq}')
        for kq in range(8):
            A(f'buffer_load_dwordx4 {v(PM+8*kq+4,4)}, v{vH2}, s[16:19], s33 offen')
            A('s_add_u32 s33, s33, 4608')
        A(f's_mov_b32 s33, {WS_PMOD}')
        A(f'{Lq}:')
        for kq in range(8):
            A(f'buffer_load_dwordx4 {v(PM+8*kq,4)}, v{vH}, s[16:19], s33 offen')
            A('s_add_u32 s33, s33, 4608')
    if not late: ploads()
    def tpiece(t,j,sM,sS):
        A(f's_add_u32 m0, s{sM}, {t*9216+1024*j}'); A('s_nop 0')
        A(f'buffer_load_dwordx4 v{VO+j}, s[44:47], s{sS} offen lds')
    for j in range(9):
        A(f'v_add_u32 v{vT0}, {64*j}, v{vLane}')
        A(f'v_mul_u32_u24 v{vT1}, s32, v{vT0}')
        A(f'v_lshrrev_b32 v{vT1}, 16, v{vT1}')
        A(f'v_mul_u32_u24 v{VO+j}, {1152-576}, v{vT1}')
        A(f'v_lshl_add_u32 v{VO+j}, v{vT0}, 4, v{VO+j}')
        tpiece(0,j,31,50)
    def tread(t):
        for kd in range(9):
            A(f'ds_read_b128 {v(TB+36*t+4*kd,4)}, v{vTab} offset:{9216*(t%3)+64*kd}')
    def round2():
        A(f'v_and_b32 v{vT0}, 15, v{vLane}')
        A(f'v_lshrrev_b32 v{vT1}, 4, v{vLane}')
        A(f'v_mul_u32_u24 v{vTab}, 576, v{vT0}')
        A(f'v_lshl_add_u32 v{vTab}, v{vT1}, 4, v{vTab}')
        A(f'v_add_u32 v{vTab}, s31, v{vTab}')
        for t in range(2):
            A('s_waitcnt vmcnt(18)')
            tread(t)
            A('s_add_u32 s50, s50, 18432')
            A('s_waitcnt lgkmcnt(0)')
            for j in range(9): tpiece(t,j,31,50)
    A('s_add_u32 s50, s50, 18432')
    if late:
        for j in range(9): tpiece(1,j,31,50)
        A('s_add_u32 s50, s50, 18432')
        for j in range(9): tpiece(2,j,31,50)
        if late==2: round2()
        ploads()
        A('s_waitcnt vmcnt(0)')
    else:
        for j in range(NB1-9): tpiece(1,j,31,50)
        A(f's_waitcnt vmcnt({NB1})')
    A.stamp(5)
    for st in (4,2,1):
        for kq in range(st):
            for p in range(4):
                A(f'v_pk_add_f32 {v(PM+8*kq+2*p,2)}, {v(PM+8*kq+2*p,2)}, {v(PM+8*(kq+st)+2*p,2)}')
    A(f'v_cmp_le_u32 vcc, 2304, v{vH}')
    for i in range(8): bf16_round(A,f'v{PM+i}',f'v{PM+i}')
    A(f'v_cndmask_b32 v{PM+8}, 0, 1.0, vcc')
    for i in range(8):
        A(f'v_add_f32 v{PM+i}, {"v%d"%(PM+8) if i<4 else "1.0"}, v{PM+i}')
        bf16_round(A,f'v{PM+i}',f'v{PM+i}')
    A(f'ds_write_b128 v{vH}, {v(PM,4)} offset:{L_MOD}')
    Lq2=A.label('k2_q2')
    A(f's_cmp_lg_u32 s{sW}, 0')
    A(f's_cbranch_scc1 {Lq2}')
    A(f'ds_write_b128 v{vH2}, {v(PM+4,4)} offset:{L_MOD}')
    A(f'{Lq2}:')
    A('s_waitcnt lgkmcnt(0)')
    A.stamp(1)
    A('s_barrier')
    if P2 is not None: A(f's_setprio {P2}')
    if not late:
        for j in range(NB1-9,9): tpiece(1,j,31,50)
        A('s_add_u32 s50, s50, 18432')
        for j in range(9): tpiece(2,j,31,50)
    if late!=2: round2()
    for t in range(2,5):
        A(f's_waitcnt vmcnt({9*(4-t)}) lgkmcnt(4)')
        tread(t)
    A(f'v_mul_u32_u24 v{vA1}, {PITCH}, v{vT0}')
    A(f'v_lshl_add_u32 v{vA1}, v{vT1}, 4, v{vA1}')
    A(f's_andn2_b32 s52, {L_HOO}, s48')
    A(f'v_add_u32 v{vA1}, s52, v{vA1}')
    A(f'v_lshlrev_b32 v{vM1}, 4, v{vT1}')
    A(f'v_lshlrev_b32 v{vM3}, 31, v{vLane}')
    A(f'v_lshrrev_b32 v{vA3}, 1, v{vT1}')
    A(f'v_lshlrev_b32 v{vA3}, 8, v{vA3}')
    A(f'v_lshl_add_u32 v{vA3}, v{vT0}, 4, v{vA3}')
    A(f'v_and_b32 v{vG1}, 1, v{vT1}')
    A(f'v_lshl_add_u32 v{vA3}, v{vG1}, 3, v{vA3}')
    A(f's_lshr_b32 s52, s{sST}, 1')
    A('s_lshl_b32 s52, s52, 10')
    A(f's_and_b32 s53, s{sST}, 1')
    A('s_lshl_b32 s53, s53, 9')
    A('s_add_u32 s52, s52, s53')
    A(f's_cmp_lt_u32 s{sW}, 2')
    A(f's_cselect_b32 s53, 0, {WS_BO-WS_AE}')
    A(f's_add_u32 s53, s53, {WS_AE}')
    A('s_add_u32 s52, s52, s53')
    A('s_lshl_b32 s54, s49, 15')
    A('s_add_u32 s54, s54, s52')
    A('s_waitcnt lgkmcnt(0)')
    A.stamp(2)
    A('s_barrier')
    A.stamp(3)
    AF=16; CI=52; ACC=236
    A(f'ds_read_b128 {v(CI,4)}, v{vM1} offset:{L_NQ}')
    for kd in range(9):
        A(f'ds_read_b128 {v(AF+4*kd,4)}, v{vA1} offset:{64*kd}')
    A('s_waitcnt lgkmcnt(9)')
    for r in range(4):
        A(f'v_xor_b32 v{CI+r}, v{CI+r}, v{vM3}')
        A(f'v_and_b32 v{CI+r}, s48, v{CI+r}')
    A('s_nop 1')
    for kd in range(9):
        A(f's_waitcnt lgkmcnt({8-kd})')
        for t in range(5):
            c = v(CI,4) if kd==0 else v(ACC+4*t,4)
            A(f'v_mfma_f32_16x16x32_bf16 {v(ACC+4*t,4)}, {v(AF+4*kd,4)}, {v(TB+36*t+4*kd,4)}, {c}')
    Lny=A.label('k2_ny')
    A('s_nop 7')
    A.stamp(4)
    A(f's_cmp_eq_u32 s{sST}, 64')
    A(f's_cbranch_scc1 {Lny}')
    for t in range(5):
        A(f'v_cvt_pk_bf16_f32 v{ACC+4*t}, v{ACC+4*t}, v{ACC+4*t+1}')
        A(f'v_cvt_pk_bf16_f32 v{ACC+4*t+1}, v{ACC+4*t+2}, v{ACC+4*t+3}')
        A(f'buffer_store_dwordx2 {v(ACC+4*t,2)}, v{vA3}, s[16:19], s54 offen {sf}')
        A('s_add_u32 s54, s54, 32768')
    A.endpgm()
    A(f'{Lny}:')
    A(f's_cmp_ge_u32 s{sW}, 2')
    A(f's_cbranch_scc1 {Lend}')
    A(f'v_lshlrev_b32 v{vA3}, 2, v{vLane}')
    A('s_lshl_b32 s54, s49, 6')
    A('s_mov_b64 exec, 0xffff')
    A(f's_add_u32 s54, s54, {WS_AE1024}')
    for t in range(5):
        A(f'buffer_store_dword v{ACC+4*t}, v{vA3}, s[16:19], s54 offen offset:{64*t}')
    A.endpgm()
    if prefetch:
        A(f'{Lp}:')
        Lw=A.label('k2_w1')
        A('s_cmp_ge_u32 s2, 166')
        A(f's_cbranch_scc1 {Lw}')
        A(f's_sub_u32 s29, s2, {130-18}')
        A('s_lshl_b32 s64, s29, 7')
        A('s_mov_b32 s30, 0')
        def fin(ph):
            if ph=='pre':
                A('s_mul_i32 s28, s29, 7282'); A('s_lshr_b32 s28, s28, 16')
                A('s_mul_i32 s31, s28, 9'); A('s_sub_u32 s31, s29, s31'); A('s_lshl_b32 s31, s31, 6')
                A('v_add_u32 v3, s31, v0')
                A('s_cmp_eq_u32 s28, 5')
                kappa_pos(A,3,4,'s_cselect_b64 vcc, 0, vcc')
                A('s_mul_i32 s31, s28, 576')
                A('v_add_u32 v3, s31, v3'); A('v_lshlrev_b32 v3, 2, v3')
                A('s_cmp_eq_u32 s28, 4'); A('s_cselect_b32 s31, 1.0, 0')
            else:
                bf16_round(A,'v32','v32')
                A('v_add_f32 v32, s31, v32')
                bf16_round(A,'v32','v32')
                A(f'buffer_store_dword v32, v3, s[16:19], 0 offen offset:{WS_MOD}')
        mod_block(A,64,9,64,30,576,'s[56:59]','s[60:63]',Lend,fin)
        A.endpgm()
        A(f'{Lw}:')
        Lz=A.label('k2_z')
        A('s_cmp_ge_u32 s2, 168')
        A(f's_cbranch_scc1 {Lz}')
        A('v_min_u32 v1, 287, v0'); A('v_lshlrev_b32 v1, 7, v1')
        for r in range(4): A(f'v_mov_b32 v{4+r}, 0')
        A('s_mov_b32 s31, 0x50000')
        A('s_waitcnt lgkmcnt(0)')
        A('buffer_store_dwordx4 v[4:7], v1, s[16:19], s31 offen')
        A('buffer_store_dwordx4 v[4:7], v1, s[16:19], s31 offen offset:16')
        A(f's_branch {Lend}')
        A(f'{Lz}:')
        A('s_and_b32 s31, s2, 7')
        A('s_sub_u32 s32, s2, 168'); A('s_lshr_b32 s32, s32, 3')
        A('v_mul_u32_u24 v1, 11, v0'); A('v_add_u32 v1, s32, v1')
        A(f'v_mov_b32 v6, 0x{OOB:x}')
        A('v_lshrrev_b32 v8, 1, v1')
        A('v_lshrrev_b32 v2, 4, v8'); A('v_and_b32 v3, 15, v8')
        A('s_lshr_b32 s34, s31, 1'); A('s_lshl_b32 s34, s34, 7')
        A('v_add_u32 v7, s34, v2'); A('v_add_u32 v9, 384, v2')
        A('v_cmp_gt_u32 vcc, 128, v2'); A('s_nop 1')
        A('v_cndmask_b32 v7, v9, v7, vcc')
        A('v_lshlrev_b32 v7, 12, v7'); A('v_lshl_add_u32 v7, v3, 7, v7')
        A('v_cmp_gt_u32 vcc, 129, v2'); A('s_nop 1')
        A('v_cndmask_b32 v7, v6, v7, vcc')
        A('v_and_b32 v3, 1, v1'); A('v_cmp_eq_u32 vcc, 0, v3'); A('s_nop 1')
        A('v_cndmask_b32 v9, v6, v7, vcc'); A('v_cndmask_b32 v7, v7, v6, vcc')
        A('v_lshlrev_b32 v5, 7, v1'); A('v_cmp_gt_u32 vcc, 288, v1'); A(f's_mov_b32 s37, {WS_PMOD}'); A('s_nop 0'); A('v_cndmask_b32 v5, v6, v5, vcc')
        A('s_waitcnt lgkmcnt(0)')
        A('buffer_load_dword v15, v5, s[16:19], s37 offen')
        A('buffer_load_dword v12, v9, s[68:71], 0 offen')
        A('buffer_load_dword v13, v7, s[72:75], 0 offen')
        A(f'v_add_u32 v1, {W1K}, v1')
        A('s_mul_i32 s35, s31, 1152')
        A(f's_mov_b32 s36, {(2**32+8)//9}')
        A('v_mul_hi_u32 v2, v1, s36')
        A('v_mul_u32_u24 v3, 9, v2'); A('v_sub_u32 v3, v1, v3')
        A('v_mul_u32_u24 v4, 9216, v2'); A('v_lshl_add_u32 v4, v3, 7, v4')
        A('v_cmp_gt_u32 vcc, 576, v2'); A('s_nop 1')
        A('v_cndmask_b32 v4, v6, v4, vcc')
        A(f'buffer_load_dword v14, v4, s[24:27], s35 offen')
        A('s_waitcnt vmcnt(0)')
    A(f'{Lend}:')
    A.endpgm()
    A.end(name, 256, 80)
```

```python
import sys
from asmlib import *
from gen1 import *
from gen1b import *
from gen2b import *
from gen2c import gen_k2c
from gen2d import gen_k2d
from gen3b import *
from gen4b import gen_k5b
from gen4e import gen_k4e
from gen4g import *
A=Asm()
A.prof = len(sys.argv)>2 and sys.argv[2]=='prof'
kw=eval(sys.argv[3]) if len(sys.argv)>3 else {}
if 'old' not in kw:
    kw.setdefault('d',1152); kw.setdefault('k2',{}).setdefault('late',2)
k4=dict(); k4.update(kw.get('k4',{}))

if 'd' in kw:
    gen_k1b(A,lite=kw['d'],**kw.get('k1',{})); gen_k2d(A,W1K=kw['d'],**kw.get('k2',{}))
elif not kw.get('merge'): gen_k1b(A,**kw.get('k1',{})); gen_k2b(A,**kw.get('k2',{}))
else: gen_k2c(A,**kw.get('k2',{}))
gen_k3b(A,**kw.get('k3',{})); (gen_k4e if kw.get('e') else gen_k4g)(A,**k4)
out=sys.argv[1] if len(sys.argv)>1 else 'adaLN_cond__spectral_fnet__dense_activation_relu__prompt.s'
open(out,'w').write(A.text())
```

```python
from asmlib import *
from gen1 import *
WS_PMOD=0x0008000
OOB=0x40000000

def silu_bf16(A, c, t, sLog2e):
    A(f'v_lshlrev_b32 v{c}, 16, v{c}')
    A(f'v_mul_f32 v{t}, s{sLog2e}, v{c}')
    A(f'v_exp_f32 v{t}, -v{t}')
    A('s_nop 0')
    A(f'v_add_f32 v{t}, 1.0, v{t}')
    A(f'v_rcp_f32 v{t}, v{t}')
    A('s_nop 0')
    A(f'v_mul_f32 v{c}, v{c}, v{t}')
    bf16_round(A,f'v{c}',f'v{c}')

def mod_issue(A, NRG, NP, sCol, sRow0, nrows, srdW, srdC, vC=8, vW=32):
    vCC,vRG,vOff,vCo=1,2,3,4; vT=120
    A(f'v_and_b32 v{vCC}, 7, v0')
    A(f'v_lshrrev_b32 v{vRG}, 3, v0')
    A(f'v_add_u32 v{vCo}, s{sRow0}, v{vRG}')
    A(f'v_mul_u32_u24 v{vOff}, 6912, v{vCo}')
    A(f'v_lshl_add_u32 v{vOff}, v{vCC}, 4, v{vOff}')
    A(f'v_lshlrev_b32 v{vCo}, 1, v{vCo}')
    last_partial = nrows%NRG
    if last_partial:
        A(f'v_cmp_gt_u32 vcc, {last_partial}, v{vRG}')
        A(f'v_mov_b32 v{vT}, 0x{OOB:x}')
        A('s_nop 0')
        A(f'v_cndmask_b32 v5, v{vT}, v{vOff}, vcc')
    A('s_waitcnt lgkmcnt(0)')
    for p in range(NP):
        A(f'buffer_load_dwordx4 {v(vW+4*p,4)}, v{5 if (last_partial and p==NP-1) else vOff}, {srdW}, s{sCol} offen')
        if p<NP-1: A(f's_add_u32 s{sCol}, s{sCol}, {NRG*6912}')
    for p in range(NP):
        A(f'buffer_load_ushort v{vC+p}, v{vCo}, {srdC}, 0 offen offset:{2*NRG*p}')

def mod_compute(A, NRG, NP, Lend, finish, extra=0, vC=8, vW=32):
    vCC=1; vAcc=112; vT=120; vX=96
    for i in range(8): A(f'v_mov_b32 v{vAcc+i}, 0')
    A(f's_mov_b32 s25, 0x{LOG2E:x}')
    A.stamp(1)
    A(f's_waitcnt vmcnt({extra})')
    A.stamp(2)
    for p in range(NP): silu_bf16(A,vC+p,vT,25)
    for p in range(NP):
        for i in range(4):
            w=vW+4*p+i
            A(f'v_lshlrev_b32 v{vT}, 16, v{w}')
            A(f'v_and_b32 v{vT+1}, 0xffff0000, v{w}')
            A(f'v_fmac_f32 v{vAcc+2*i}, v{vT}, v{vC+p}')
            A(f'v_fmac_f32 v{vAcc+2*i+1}, v{vT+1}, v{vC+p}')
    def xr(kind):
        for i in range(8):
            r=vAcc+i
            if kind=='8': A(f'v_add_f32_dpp v{r}, v{r}, v{r} row_ror:8 row_mask:0xf bank_mask:0xf')
            else: A(f'v_mov_b32 v{vX+i}, v{r}')
        if kind!='8':
            A('s_nop 1')
            for i in range(8): A(f'v_permlane{kind}_swap_b32 v{vX+i}, v{vAcc+i}')
            A('s_nop 1')
            for i in range(8): A(f'v_add_f32 v{vAcc+i}, v{vAcc+i}, v{vX+i}')
    A('s_nop 1'); xr('8'); xr('16'); xr('32')
    NWV=NRG//8
    A(f'v_lshrrev_b32 v{vT}, 6, v0')
    A(f'v_lshlrev_b32 v{vT}, 8, v{vT}')
    A(f'v_lshl_add_u32 v{vT}, v{vCC}, 5, v{vT}')
    A('s_mov_b64 exec, 0xff')
    A(f'ds_write_b128 v{vT}, {v(vAcc,4)}')
    A(f'ds_write_b128 v{vT}, {v(vAcc+4,4)} offset:16')
    A('s_mov_b64 exec, -1')
    A('s_waitcnt lgkmcnt(0)')
    A('s_barrier')
    A.stamp(3)
    A('v_cmp_gt_u32 vcc, 64, v0')
    A('s_and_saveexec_b64 s[26:27], vcc')
    A(f's_cbranch_execz {Lend}')
    A(f'v_lshlrev_b32 v{vT}, 2, v0')
    for r in range(NWV): A(f'ds_read_b32 v{32+r}, v{vT} offset:{256*r}')
    finish('pre')
    A('s_waitcnt lgkmcnt(0)')
    st=NWV//2
    while st:
        for r in range(st): A(f'v_add_f32 v{32+r}, v{32+r}, v{32+r+st}')
        st//=2
    finish('post')

def mod_block(A, NRG, NP, sCol, sRow0, nrows, srdW, srdC, Lend, finish, after_issue=None, extra=0):
    mod_issue(A,NRG,NP,sCol,sRow0,nrows,srdW,srdC)
    if after_issue: after_issue()
    mod_compute(A,NRG,NP,Lend,finish,extra)

def kappa_pos(A, vD, vTmp, sMask=None):
    A(f'v_sub_u32 v{vTmp}, 864, v{vD}')
    A(f'v_cmp_lt_u32 vcc, 288, v{vD}')
    if sMask: A(sMask)
    A('s_nop 1')
    A(f'v_cndmask_b32 v{vD}, v{vD}, v{vTmp}, vcc')

def k1_prefetch(A, V, lite=None, tlb=0):
    v1,v2,v3,v4,v5,v6,v7,v8=[f'v{V+i}' for i in range(8)]
    Lpc=A.label('k1_pc')
    A('s_and_b32 s56, s2, 7')
    A('s_lshr_b32 s57, s2, 3')
    A(f'v_mov_b32 {v6}, 0x{OOB:x}')
    Lx=A.label('pfx'); Lh=A.label('pfh'); Ls=A.label('pfs'); Lc=A.label('pfc'); Ld=A.label('pfd')
    A('s_cmp_lt_u32 s57, 9'); A(f's_cbranch_scc1 {Lx}')
    A('s_cmp_lt_u32 s57, 21'); A(f's_cbranch_scc1 {Lh}')
    A('s_cmp_lt_u32 s57, 30'); A(f's_cbranch_scc1 {Ls}')
    A('s_getpc_b64 s[58:59]')
    A(f'{Lpc}:')
    A('s_sub_u32 s57, s57, 30'); A('s_lshl_b32 s57, s57, 15')
    A(f'v_lshlrev_b32 {v1}, 7, v0'); A(f'v_add_u32 {v1}, s57, {v1}')
    A(f'v_min_u32 {v2}, code_end-{Lpc}, {v1}')
    A(f'global_load_dword v{V+8}, {v2}, s[58:59]')
    if tlb:
        A(f'v_lshrrev_b32 {v3}, 7, {v1}')
        A(f's_mov_b32 s57, {tlb}')
        A(f'v_mul_lo_u32 {v3}, {v3}, s57')
        A(f'v_add_u32 {v3}, {tlb-128}, {v3}')
        A(f'v_min_u32 {v4}, {0x2400000-128}, {v3}')
        A(f'buffer_load_dword v{V+9}, {v4}, s[16:19], 0 offen')
        A(f'buffer_load_dword v{V+10}, {v3}, s[68:71], 0 offen')
    A(f's_branch {Ld}')
    A(f'{Lx}:')
    A('s_lshl_b32 s58, s57, 8'); A(f'v_add_u32 {v1}, s58, v0')
    A(f's_mov_b32 s59, {(2**32+8)//9}')
    A(f'v_mul_hi_u32 {v2}, {v1}, s59')
    A(f'v_mul_u32_u24 {v3}, 9, {v2}'); A(f'v_sub_u32 {v3}, {v1}, {v3}')
    A(f'v_lshrrev_b32 {v4}, 5, {v2}'); A(f'v_lshlrev_b32 {v4}, 3, {v4}'); A(f'v_add_u32 {v4}, s56, {v4}'); A(f'v_lshlrev_b32 {v4}, 4, {v4}')
    A(f'v_and_b32 {v5}, 15, {v2}'); A(f'v_add_u32 {v4}, {v4}, {v5}')
    A(f'v_sub_u32 {v5}, 2048, {v4}')
    A(f'v_and_b32 {v7}, 16, {v2}'); A(f'v_cmp_eq_u32 vcc, 0, {v7}'); A('s_nop 1')
    A(f'v_cndmask_b32 {v4}, {v5}, {v4}, vcc')
    A(f'v_mul_u32_u24 {v4}, 1152, {v4}'); A(f'v_lshl_add_u32 {v4}, {v3}, 7, {v4}')
    A(f'buffer_load_dword v{V+8}, {v4}, s[20:23], 0 offen')
    A(f's_branch {Ld}')
    A(f'{Lh}:')
    A('s_sub_u32 s57, s57, 9')
    A('s_cmp_ge_u32 s57, 6')
    A('s_cselect_b32 s60, s44, s40'); A('s_cselect_b32 s61, s45, s41'); A('s_cselect_b32 s58, 6, 0')
    A(f's_mov_b32 s62, {SZ["Cd"]}'); A('s_mov_b32 s63, 0x00020000')
    A('s_sub_u32 s57, s57, s58'); A('s_lshl_b32 s58, s57, 8'); A(f'v_add_u32 {v8}, s58, v0')
    A(f's_mov_b32 s59, {(2**32+4)//5}')
    A(f'v_mul_hi_u32 {v2}, {v8}, s59')
    A(f'v_mul_u32_u24 {v3}, 5, {v2}'); A(f'v_sub_u32 {v3}, {v8}, {v3}')
    A(f'v_mul_u32_u24 {v5}, 1152, {v2}'); A(f'v_lshl_add_u32 {v5}, {v3}, 7, {v5}')
    A(f'buffer_load_dword v{V+8}, {v5}, s[60:63], 0 offen')
    A(f's_branch {Ld}')
    A(f'{Ls}:')
    if lite is not None:
        A('s_sub_u32 s57, s57, 21'); A('s_lshl_b32 s58, s57, 8'); A(f'v_add_u32 {v1}, s58, v0')
        A(f's_mov_b32 s59, {(2**32+8)//9}')
        A(f'v_mul_hi_u32 {v2}, {v1}, s59')
        A(f'v_mul_u32_u24 {v3}, 9, {v2}'); A(f'v_sub_u32 {v3}, {v1}, {v3}')
        A(f'v_mul_u32_u24 {v2}, 9216, {v2}'); A(f'v_lshl_add_u32 {v2}, {v3}, 7, {v2}')
        A(f'v_cmp_gt_u32 vcc, {max(lite,0)}, {v1}'); A('s_nop 1'); A(f'v_cndmask_b32 {v2}, {v6}, {v2}, vcc')
        A('s_mul_i32 s58, s56, 1152')
        A(f'buffer_load_dword v{V+10}, {v2}, s[64:67], s58 offen')
        A(f'{Ld}:')
        return
    A('s_sub_u32 s57, s57, 21'); A('s_lshl_b32 s58, s57, 8'); A(f'v_add_u32 {v1}, s58, v0')
    A(f'v_lshrrev_b32 {v2}, 4, {v1}'); A(f'v_and_b32 {v3}, 15, {v1}')
    A('s_lshr_b32 s58, s56, 1'); A('s_lshl_b32 s58, s58, 7')
    A(f'v_add_u32 {v7}, s58, {v2}'); A(f'v_add_u32 {v8}, 384, {v2}')
    A(f'v_cmp_gt_u32 vcc, 128, {v2}'); A('s_nop 1')
    A(f'v_cndmask_b32 {v7}, {v8}, {v7}, vcc')
    A(f'v_lshlrev_b32 {v7}, 12, {v7}'); A(f'v_lshl_add_u32 {v7}, {v3}, 7, {v7}')
    A(f'v_cmp_gt_u32 vcc, 129, {v2}'); A('s_nop 1')
    A(f'v_cndmask_b32 {v7}, {v6}, {v7}, vcc')
    A(f'buffer_load_dword v{V+8}, {v7}, s[48:51], 0 offen')
    A(f'buffer_load_dword v{V+9}, {v7}, s[52:55], 0 offen')
    A(f'{Ld}:')
    Lnw=A.label('pfnw')
    A('s_lshr_b32 s57, s2, 3')
    A('s_sub_u32 s58, s57, 21'); A('s_cmp_lt_u32 s58, 8'); A(f's_cbranch_scc1 {Lnw}')
    A('s_cmp_ge_u32 s57, 29'); A('s_cselect_b32 s58, 8, 0'); A('s_sub_u32 s57, s57, s58')
    A('s_mul_i32 s57, s57, 152'); A('s_add_u32 s57, s57, 1536')
    A(f'v_min_u32 {v1}, 151, v0'); A(f'v_add_u32 {v1}, s57, {v1}')
    A(f's_mov_b32 s59, {(2**32+8)//9}')
    A(f'v_mul_hi_u32 {v2}, {v1}, s59')
    A(f'v_mul_u32_u24 {v3}, 9, {v2}'); A(f'v_sub_u32 {v3}, {v1}, {v3}')
    A(f'v_mul_u32_u24 {v2}, 9216, {v2}'); A(f'v_lshl_add_u32 {v2}, {v3}, 7, {v2}')
    A('s_mul_i32 s58, s56, 1152')
    A(f'buffer_load_dword v{V+10}, {v2}, s[64:67], s58 offen')
    A(f'{Lnw}:')

def gen_k1b(A, name='k1_mod_kernel', pf=True, sf='', lite=None, tlb=0):
    NMOD=144; NT=256 if pf else 144
    A.launch(name, NT, 256, 2048)
    A.begin(name)
    Lpf=A.label('k1_pf'); Lend=A.label('k1_end')
    load_srds(A,[('wmod',8),('c',12),('ws',16),('x',20),('Cd',40),('Sd',44),('w1',64)]+([('Cs',48),('Ss',52)] if lite is None else [])+([('out',68)] if tlb else []))
    A(f's_cmp_ge_u32 s2, {NT}')
    A(f's_cbranch_scc1 {Lend}')
    A(f's_cmp_ge_u32 s2, {NMOD}')
    A(f's_cbranch_scc1 {Lpf}')
    A('s_and_b32 s28, s2, 7')
    A('s_lshr_b32 s29, s2, 3')
    A('s_lshl_b32 s24, s29, 7')
    A('s_mul_i32 s30, s28, 72')
    def fin(ph):
        if ph=='pre':
            A('s_cmp_ge_u32 s29, 9'); A('s_cselect_b32 s31, 9, 0'); A('s_cselect_b32 s32, 576, 0')
            A('s_sub_u32 s31, s29, s31'); A('s_lshl_b32 s31, s31, 6')
            A('v_add_u32 v3, s31, v0')
            kappa_pos(A,3,4)
            A('s_mul_i32 s33, s28, 1152'); A('s_add_u32 s33, s33, s32')
            A('v_add_u32 v3, s33, v3'); A('v_lshlrev_b32 v3, 2, v3')
            A(f's_mov_b32 s33, {WS_PMOD}')
        else:
            A(f'buffer_store_dword v32, v3, s[16:19], s33 offen {sf}')
    mod_block(A,32,3,24,30,72,'s[8:11]','s[12:15]',Lend,fin, after_issue=(lambda: k1_prefetch(A,64,lite)) if pf else None, extra=(1 if lite is not None else 2) if pf else 0)
    A.endpgm()
    A(f'{Lpf}:')
    A('s_waitcnt lgkmcnt(0)')
    k1_prefetch(A,64,lite,tlb)
    A('s_waitcnt vmcnt(0)')
    A(f'{Lend}:')
    A.endpgm()
    A.end(name, 128, 76)
```

```python
import sys
from asmlib import *
from gen1 import *
from gen1b import *
from gen2b import *
from gen2c import gen_k2c
from gen2d import gen_k2d
from gen3b import *
from gen4b import gen_k5b
from gen4e import gen_k4e
from gen4g import *
A=Asm()
A.prof = len(sys.argv)>2 and sys.argv[2]=='prof'
kw=eval(sys.argv[3]) if len(sys.argv)>3 else {}
if 'old' not in kw:
    kw.setdefault('d',1152); kw.setdefault('k2',{}).setdefault('late',2)
k4=dict(); k4.update(kw.get('k4',{}))

if 'd' in kw:
    gen_k1b(A,lite=kw['d'],**kw.get('k1',{})); gen_k2d(A,W1K=kw['d'],**kw.get('k2',{}))
elif not kw.get('merge'): gen_k1b(A,**kw.get('k1',{})); gen_k2b(A,**kw.get('k2',{}))
else: gen_k2c(A,**kw.get('k2',{}))
gen_k3b(A,**kw.get('k3',{})); (gen_k4e if kw.get('e') else gen_k4g)(A,**k4)
out=sys.argv[1] if len(sys.argv)>1 else 'adaLN_cond__spectral_fnet__dense_activation_relu__prompt.s'
HDR="""
adaLN + FNet spectral mixing + ReLU MLP, four launches (generated by a python script of mine, hand-scheduled).
Kernarg: x, dft_seq_re, dft_seq_im, dft_hid_re, dft_hid_im, B_x(unused), w1, w2, c, w_mod, out, debug, ws.
The four DFT tables are constant parameters; only their even/odd symmetries are used (real-input 2-D DFT):
  h is folded over s<->S-s and d<->D-d into an even-even and an odd-odd part, P = C_S hee C_D^T, Q = S_S hoo S_D^T,
  y(t,e)=y(S-t,D-e)=P-Q, y(S-t,e)=y(t,D-e)=P+Q; rows t and 1024-t share table rows up to the sign (-1)^s.
k1: partial (shift|scale) = silu(c) @ w_mod[:, :1152] split over k; L2 prefetch of inputs/tables/code.
k2: LN1 + modulate + fold + hidden DFT (MFMA); spare workgroups: other modulation vectors, L2 prefetch, flag clearing.
k3: sequence DFT (MFMA) + residual -> x2 (column order kappa), partial LN2 sums; spare workgroups: L2 prefetch.
k4: fused MLP per (64 rows, 576 hidden): LDS-DMA weight ring, LN2 applied on the fly, transposing LDS reads;
    split-K partials are published with write-through stores + flags and reduced in the same launch.
"""
open(out,'w').write(A.text(HDR))
```
